```python
import torch

def _softmax(x, axis=-1):
    return torch.softmax(x, dim=axis)
def _gelu(x):
    return torch.nn.functional.gelu(x, approximate="tanh")
def _silu(x):
    return torch.nn.functional.silu(x)
def _sigmoid(x):
    return torch.sigmoid(x)
def _layernorm(x, axis=-1, eps=1e-5):
    m = x.mean(dim=axis, keepdim=True)
    v = x.var(dim=axis, keepdim=True, unbiased=False)
    return (x - m) / torch.sqrt(v + eps)
def _scatter_add(tgt, idx, src, axis=0):
    return tgt.clone().index_add_(axis, idx, src)
def _segment_sum(src, seg, n):
    out = torch.zeros((n,) + src.shape[1:], dtype=src.dtype)
    return out.index_add_(0, seg, src)
def _pad(x, pw):
    flat = tuple(v for pair in reversed(pw) for v in pair)
    return torch.nn.functional.pad(x, flat)

kernel_name = 'standalone__gqa_block_cached__near_ridge'

def setup_inputs():

    _w = (lambda a: (lambda t: t.to(torch.bfloat16) if t.is_floating_point() else t)(torch.as_tensor(a)))
    B, Sq, D = 8, 192, 640
    Hq, Hkv, Sk, Dh = 32, 32, 2048, 128
    assert Hq % Hkv == 0, (Hq, Hkv)
    return {
        "x": _w((lambda *s: torch.randn(*s, dtype=torch.bfloat16) * 0.8)(B, Sq, D)),
        "k_cache": _w((lambda *s: torch.randn(*s, dtype=torch.bfloat16) * 0.8)(B, Hkv, Sk, Dh)),
        "v_cache": _w((lambda *s: torch.randn(*s, dtype=torch.bfloat16) * 0.05)(B, Hkv, Sk, Dh)),
        "wq": _w((lambda *s: torch.randn(*s, dtype=torch.bfloat16) * 0.8)(D, Hq * Dh) * (D ** -0.5)),
        "wo": _w((lambda *s: torch.randn(*s, dtype=torch.bfloat16) * 0.05)(Hq * Dh, D) * ((Hq * Dh) ** -0.5)),
    }

def reference(x, k_cache, v_cache, wq, wo):
    B, Sq, D = x.shape
    Hq, Dh = 32, 128
    Hkv = k_cache.shape[1]
    rep = Hq // Hkv
    q = (lambda x, *d: x.permute(*d))((x @ wq).reshape(B, Sq, Hq, Dh), 0, 2, 1, 3)
    k = (lambda x, n, axis: torch.repeat_interleave(x, n, dim=axis))(k_cache, rep, axis=1)
    v = (lambda x, n, axis: torch.repeat_interleave(x, n, dim=axis))(v_cache, rep, axis=1)
    scores = torch.einsum("bhqd,bhkd->bhqk", q, k) * (Dh ** -0.5)
    p = _softmax(scores, axis=-1)
    o = torch.einsum("bhqk,bhkd->bhqd", p, v)
    return (lambda x, *d: x.permute(*d))(o, 0, 2, 1, 3).reshape(B, Sq, Hq * Dh) @ wo
```

```python
HEADER = """; Kernarg layout for this problem (64 bytes, ptrs only, base s[0:1]):
"""
class Asm:
    def __init__(self):
        self.lines = []
        self.kernels = []
        self.launches = []
        self.nlab = 0
    def __call__(self, s):
        for l in s.strip("\n").split("\n"):
            self.lines.append("    " + l.strip())
    def label(self, name):
        self.lines.append(name + ":")
    def newlabel(self, p="L"):
        self.nlab += 1
        return f"{p}_{self.nlab}"
    def comment(self, s):
        self.lines.append("    ; " + s)
    def begin_kernel(self, name, grid, block, lds, vgpr, sgpr=102, accum=None):
        self.launches.append((name, grid, block, lds))
        if accum is None:
            accum = (vgpr + 3) // 4 * 4
        self.kernels.append((name, vgpr, sgpr, accum))
        self.lines.append(".p2align 8")
        self.lines.append(f".globl {name}")
        self.lines.append(f".type {name},@function")
        self.lines.append(name + ":")
    def text(self):
        out = [HEADER.rstrip("\n")]
        for (n, g, b, lds) in self.launches:
            out.append(f"; @launch kernel={n} grid=({g},1,1) block=({b},1,1) lds={lds}")
        out.append('.amdgcn_target "amdgcn-amd-amdhsa--gfx950"')
        out.append(".text")
        out += self.lines
        out.append('.section .rodata,"a"')
        for (n, v, s, a) in self.kernels:
            out.append(".p2align 6")
            out.append(f".amdhsa_kernel {n}")
            out.append(f"  .amdhsa_next_free_vgpr {v}")
            out.append(f"  .amdhsa_next_free_sgpr {s}")
            out.append(f"  .amdhsa_accum_offset {a}")
            out.append("  .amdhsa_group_segment_fixed_size 0")
            out.append("  .amdhsa_kernarg_size 64")
            out.append("  .amdhsa_user_sgpr_count 2")
            out.append("  .amdhsa_user_sgpr_kernarg_segment_ptr 1")
            out.append("  .amdhsa_system_sgpr_workgroup_id_x 1")
            out.append(".end_amdhsa_kernel")
        return "\n".join(out) + "\n"
```

```python
import sys, struct
from asmlib import Asm

def f32(x):
    return "0x%08x" % struct.unpack("<I", struct.pack("<f", x))[0]

KP, VP = 1040, 1088
KSZ, VSZ = 16 * KP, 16 * VP
VB0 = 4 * KSZ
XP = 3088
XSZ = 8 * XP
SPARE = VB0 + 4 * VSZ
XST = [KSZ, KSZ + XSZ, SPARE]
WST = [VB0 + VSZ, VB0 + 2 * VSZ, VB0 + 3 * VSZ]
LDS1 = 163840
QEX_A = VB0 + 3 * VSZ
QEX_B = 3 * KSZ - 10 * 4096
THR = 1024.0
CSC = 1.4426950408889634 / (128 ** 0.5)

O = 0
Q = 64
S = 96
P = 112
F = 120
vKA, vKB, vVA, vVB, vDMA, vMC, vL = 152, 153, 154, 155, 156, 157, 158
vT = 159
vS0, vS1 = 163, 164
vLANE = 165
NV1 = 168
vXA, vWA, vXD, vWD, vXA2, vWA2 = 112, 113, 114, 115, 116, 117
XF = 96
WF = 120

sW, sB, sH = 32, 33, 34
sC, sTHR, sFLOOR = 35, 36, 37
sKVO, sKVL, sPIT = 38, 39, 40
sCH, sXO, sWO, sT0, sT1 = 41, 42, 43, 44, 45
sLOOP = 46
sXB, sWB = 47, 48
sSLOT = 51
sXS, sWS = 49, 50
SRD_KV, SRD_X, SRD_W, SRD_O = 16, 20, 24, 28

def vr(b, n):
    return f"v[{b}:{b+n-1}]"

class Gen:
    def __init__(self, stamps=False, kv0_step=4, dump_q=False, prio=False):
        self.a = Asm()
        self.stamps = stamps
        self.kv0_step = kv0_step
        self.dump_q = dump_q
        self.prio = prio
        self.slow = []

    def stamp(self, i):
        if self.stamps:
            self.a(f"s_memrealtime s[{60+2*i}:{61+2*i}]")

    def kv_issue(self, slot):
        a = self.a
        if slot == 0:
            a(f"s_mov_b32 m0, s{sKVL}")
        elif slot == 1:
            a(f"s_add_u32 m0, s{sKVL}, s{sSLOT}")
        else:
            a(f"s_mul_i32 s{sT0}, s{sSLOT}, {slot}")
            a(f"s_add_u32 m0, s{sKVL}, s{sT0}")
        for j in range(4):
            if j:
                a(f"s_add_u32 m0, m0, s{sPIT}")
            a("s_nop 0")
            off = f" offset:{j*256}" if j else ""
            a(f"buffer_load_dwordx4 v{vDMA}, s[{SRD_KV}:{SRD_KV+3}], s{sKVO} offen{off} nt lds")
        a(f"s_add_u32 s{sKVO}, s{sKVO}, 16384")

    def q_issue(self, c):
        a = self.a
        xb, wb = XST[(c + 2) % 3], WST[(c + 2) % 3]
        a(f"""
        s_lshl_b32 s{sXO}, s{sCH}, 7
        s_add_u32 s{sXO}, s{sXO}, s{sXS}
        s_lshl_b32 s{sWO}, s{sCH}, 19
        s_add_u32 s{sWO}, s{sWO}, s{sWS}
        s_add_u32 s{sCH}, s{sCH}, 1
        s_cmp_ge_u32 s{sCH}, 10
        s_cselect_b32 s{sCH}, 0, s{sCH}
        s_add_u32 m0, s{sWB}, {wb}
        s_add_u32 s{sT0}, s{sWO}, 8192
        buffer_load_dwordx4 v{vWD}, s[{SRD_W}:{SRD_W+3}], s{sWO} offen lds
        s_add_u32 m0, m0, {VP}
        s_nop 0
        buffer_load_dwordx4 v{vWD}, s[{SRD_W}:{SRD_W+3}], s{sT0} offen lds
        s_add_u32 m0, s{sXB}, {xb}
        s_add_u32 s{sT0}, s{sXO}, {64*1280}
        buffer_load_dwordx4 v{vXD}, s[{SRD_X}:{SRD_X+3}], s{sXO} offen lds
        s_add_u32 m0, m0, 1024
        s_add_u32 s{sT1}, s{sXO}, {128*1280}
        buffer_load_dwordx4 v{vXD}, s[{SRD_X}:{SRD_X+3}], s{sT0} offen lds
        s_add_u32 m0, m0, 1024
        s_nop 0
        buffer_load_dwordx4 v{vXD}, s[{SRD_X}:{SRD_X+3}], s{sT1} offen lds
        """)

    def loaders_only(self, fn):
        a = self.a
        lab = a.newlabel("L_skip")
        a(f"s_cmp_ge_u32 s{sW}, 8")
        a(f"s_cbranch_scc1 {lab}")
        fn()
        a.label(lab)

    def tile(self, slot, wait, issue):
        a = self.a
        a(f"s_waitcnt vmcnt({wait})")
        a("s_barrier")
        kb = slot * KSZ
        for s in range(8):
            ad = vKA if s < 4 else vKB
            a(f"ds_read_b128 {vr(F+4*s,4)}, v{ad} offset:{kb + 32*s}")
        if issue:
            self.loaders_only(lambda: self.kv_issue((slot + 3) % 4))
        for s in range(8):
            a(f"s_waitcnt lgkmcnt({7-s})")
            c = "0" if s == 0 else vr(S, 16)
            a(f"v_mfma_f32_32x32x16_bf16 {vr(S,16)}, {vr(F+4*s,4)}, {vr(Q+4*s,4)}, {c}")
        vb = slot * VSZ
        for t in range(2):
            for j in range(4):
                ad = vVA if j < 2 else vVB
                r = F + (t * 4 + j) * 4
                for u in range(2):
                    a(f"ds_read_b64_tr_b16 {vr(r+2*u,2)}, v{ad} offset:{vb + u*8*VP + t*256 + j*64}")
        for i in range(16):
            a(f"v_fma_f32 v{S+i}, v{S+i}, s{sC}, -v{vMC}")
        lexp = a.newlabel("L_exp"); lslow = a.newlabel("L_slow")
        a.label(lexp)
        a(f"v_exp_f32 v{vT}, v{S}")
        a(f"v_exp_f32 v{vT+1}, v{S+1}")
        for pr in range(8):
            t0, t1 = vT + (pr & 1) * 2, vT + (pr & 1) * 2 + 1
            n0, n1 = vT + ((pr + 1) & 1) * 2, vT + ((pr + 1) & 1) * 2 + 1
            if pr < 7:
                a(f"v_exp_f32 v{n0}, v{S+2*pr+2}")
                a(f"v_exp_f32 v{n1}, v{S+2*pr+3}")
            else:
                a("s_nop 0")
            if pr == 0:
                a(f"v_add_f32 v{vS0}, v{t0}, v{t1}")
            elif pr == 1:
                a(f"v_add_f32 v{vS1}, v{t0}, v{t1}")
            else:
                a(f"v_add_f32 v{vS0}, v{vS0}, v{t0}")
                a(f"v_add_f32 v{vS1}, v{vS1}, v{t1}")
            a(f"v_cvt_pk_bf16_f32 v{P+pr}, v{t0}, v{t1}")
        a(f"v_add_f32 v{vS0}, v{vS0}, v{vS1}")
        a(f"v_cmp_lt_f32 vcc, s{sTHR}, v{vS0}")
        a(f"s_cbranch_vccnz {lslow}")
        a(f"v_add_f32 v{vL}, v{vL}, v{vS0}")
        n = 0
        for t in range(2):
            for j in range(4):
                r = F + (t * 4 + j) * 4
                a(f"s_waitcnt lgkmcnt({14-2*n})")
                a(f"v_mfma_f32_32x32x16_bf16 {vr(O+16*j,16)}, {vr(r,4)}, {vr(P+4*t,4)}, {vr(O+16*j,16)}")
                n += 1
        self.slow.append((lslow, lexp))

    def slow_path(self, lslow, lexp):
        a = self.a
        a.label(lslow)
        m, m2 = vT, vT + 1
        a(f"v_max3_f32 v{m}, v{S}, v{S+1}, v{S+2}")
        for i in range(3, 15, 2):
            a(f"v_max3_f32 v{m}, v{m}, v{S+i}, v{S+i+1}")
        a(f"""
        v_max_f32 v{m}, v{m}, v{S+15}
        v_mov_b32 v{m2}, v{m}
        s_nop 1
        v_permlane32_swap_b32 v{m}, v{m2}
        s_nop 1
        v_max_f32 v{m}, v{m}, v{m2}
        v_max_f32 v{m}, s{sFLOOR}, v{m}
        v_max_f32 v{m2}, 0, v{m}
        v_sub_f32 v{m2}, 0, v{m2}
        v_exp_f32 v{m2}, v{m2}
        v_add_f32 v{vMC}, v{vMC}, v{m}
        """)
        for i in range(16):
            a(f"v_sub_f32 v{S+i}, v{S+i}, v{m}")
        a(f"v_mul_f32 v{vL}, v{vL}, v{m2}")
        for i in range(64):
            a(f"v_mul_f32 v{O+i}, v{O+i}, v{m2}")
        a(f"""
        s_mov_b32 s{sTHR}, {f32(THR)}
        s_mov_b32 s{sFLOOR}, 0
        s_branch {lexp}
        """)

    def kernel1(self):
        a = self.a
        a.begin_kernel("attn_kernel", 256, 768, LDS1, NV1)
        a(f"""
        s_cmp_ge_u32 s2, 256
        s_cbranch_scc1 L1_end
        """)
        self.stamp(0)
        a(f"""
        s_load_dwordx8 s[4:11], s[0:1], 0
        s_load_dwordx2 s[12:13], s[0:1], 56
        v_lshrrev_b32 v1, 6, v0
        v_and_b32 v{vLANE}, 63, v0
        s_and_b32 s{sT0}, s2, 7
        v_readfirstlane_b32 s{sW}, v1
        s_lshr_b32 s{sT1}, s2, 3
        s_and_b32 s{sB}, s{sT0}, 1
        s_lshl_b32 s{sB}, s{sB}, 2
        s_and_b32 s3, s{sT1}, 3
        s_or_b32 s{sB}, s{sB}, s3
        s_lshr_b32 s{sH}, s{sT0}, 1
        s_lshl_b32 s{sH}, s{sH}, 3
        s_lshr_b32 s3, s{sT1}, 2
        s_or_b32 s{sH}, s{sH}, s3
        s_and_b32 s{sCH}, s{sH}, 7
        s_and_b32 s3, s{sB}, 3
        s_lshl_b32 s3, s3, 1
        s_add_u32 s{sCH}, s{sCH}, s3
        s_cmp_ge_u32 s{sCH}, 10
        s_cselect_b32 s3, 10, 0
        s_sub_u32 s{sCH}, s{sCH}, s3
        v_lshrrev_b32 v1, 4, v{vLANE}
        v_and_b32 v2, 15, v{vLANE}
        v_lshlrev_b32 v3, 12, v1
        v_lshl_or_b32 v{vDMA}, v2, 4, v3          ; K/V: (i>>4)*4096 + (i&15)*16
        v_lshlrev_b32 v3, 17, v1
        v_lshl_or_b32 v{vWD}, v2, 4, v3           ; wq: (i>>4)*16*8192 + (i&15)*16
        v_lshrrev_b32 v1, 3, v{vLANE}
        v_and_b32 v2, 7, v{vLANE}
        v_mul_u32_u24 v3, {8*1280}, v1
        v_lshl_add_u32 v{vXD}, v2, 4, v3          ; x: (i>>3)*8*1280 + (i&7)*16
        s_mul_i32 s{sXB}, s{sW}, {XP}
        s_mul_i32 s{sWB}, s{sW}, {2*VP}
        s_mul_i32 s{sXS}, s{sW}, 1280
        s_lshl_b32 s{sWS}, s{sW}, 14
        s_and_b32 s{sT0}, s{sW}, 3
        s_lshl_b32 s{sKVO}, s{sT0}, 10            ; 4 pieces * 256
        s_waitcnt lgkmcnt(0)
        s_bitcmp1_b32 s{sW}, 2
        s_cselect_b32 s{SRD_KV}, s8, s6
        s_cselect_b32 s{SRD_KV+1}, s9, s7
        s_movk_i32 s{sPIT}, {KP}
        s_cselect_b32 s{sPIT}, {VP}, s{sPIT}
        s_cselect_b32 s{sKVL}, {VB0}, 0
        s_lshl_b32 s{sSLOT}, s{sPIT}, 4
        s_lshl_b32 s{sT0}, s{sT0}, 2
        s_mul_i32 s{sT0}, s{sT0}, s{sPIT}
        s_add_u32 s{sKVL}, s{sKVL}, s{sT0}
        s_sub_u32 s{sPIT}, s{sPIT}, 256
        s_lshl_b32 s{sT0}, s{sB}, 5
        s_add_u32 s{sT0}, s{sT0}, s{sH}            ; bh
        s_lshl_b32 s{sT1}, s{sT0}, 19
        s_lshr_b32 s{sT0}, s{sT0}, 13
        s_add_u32 s{SRD_KV}, s{SRD_KV}, s{sT1}
        s_addc_u32 s{SRD_KV+1}, s{SRD_KV+1}, s{sT0}
        s_mov_b32 s{SRD_KV+2}, 524288
        s_mov_b32 s{SRD_KV+3}, 0x20000
        s_mul_i32 s{sT0}, s{sB}, 245760
        s_add_u32 s{SRD_X}, s4, s{sT0}
        s_addc_u32 s{SRD_X+1}, s5, 0
        s_mov_b32 s{SRD_X+2}, 245760
        s_mov_b32 s{SRD_X+3}, 0x20000
        s_lshl_b32 s{sT0}, s{sH}, 8
        s_add_u32 s{SRD_W}, s10, s{sT0}
        s_addc_u32 s{SRD_W+1}, s11, 0
        s_sub_u32 s{SRD_W+2}, {640*8192}, s{sT0}
        s_mov_b32 s{SRD_W+3}, 0x20000
        """)
        def first():
            for c in range(3):
                self.q_issue(c)
            if self.kv0_step < 0:
                self.kv_issue(0)
        self.loaders_only(first)
        a(f"""
        s_lshr_b32 s{sT0}, s{sW}, 1               ; qb
        s_and_b32 s{sT1}, s{sW}, 1                ; kh
        v_and_b32 v1, 31, v{vLANE}                ; q / key
        v_lshrrev_b32 v2, 5, v{vLANE}             ; hi
        v_and_b32 v3, 7, v1
        v_mul_u32_u24 v3, {XP}, v3
        v_lshrrev_b32 v4, 3, v1
        v_lshl_add_u32 v3, v4, 7, v3
        v_lshl_add_u32 v3, v2, 4, v3
        s_lshl_b32 s3, s{sT0}, 9
        v_add_u32 v{vXA}, s3, v3
        v_and_b32 v3, 15, v1
        v_mul_u32_u24 v3, {KP}, v3
        v_lshrrev_b32 v4, 4, v1
        v_lshl_add_u32 v3, v4, 8, v3
        v_lshl_add_u32 v3, v2, 4, v3
        s_mul_i32 s3, s{sT1}, {512+128}
        v_add_u32 v{vKA}, s3, v3
        s_mul_i32 s3, s{sT1}, {512-128}
        v_add_u32 v{vKB}, s3, v3
        v_bfe_u32 v3, v{vLANE}, 2, 2              ; r
        v_and_b32 v4, 3, v{vLANE}                 ; c
        v_bfe_u32 v5, v{vLANE}, 4, 1              ; g
        v_lshl_add_u32 v6, v2, 2, v3
        v_mul_u32_u24 v6, {VP}, v6
        v_lshl_add_u32 v6, v5, 5, v6
        v_lshl_add_u32 v6, v4, 3, v6
        s_mul_i32 s3, s{sT1}, {512+128}
        s_add_u32 s3, s3, {VB0}
        v_add_u32 v{vVA}, s3, v6
        s_mul_i32 s3, s{sT1}, {512-128}
        s_add_u32 s3, s3, {VB0}
        v_add_u32 v{vVB}, s3, v6
        v_lshl_add_u32 v6, v2, 3, v3
        v_mul_u32_u24 v6, {VP}, v6
        v_lshl_add_u32 v6, v5, 5, v6
        v_and_b32 v7, 1, v4
        v_lshrrev_b32 v8, 1, v4
        v_lshl_or_b32 v7, v7, 1, v8
        v_lshl_add_u32 v6, v7, 3, v6
        s_lshl_b32 s3, s{sT1}, 7
        v_add_u32 v{vWA}, s3, v6
        s_mov_b32 s{sC}, {f32(CSC)}
        s_mov_b32 s{sTHR}, {f32(-1.0)}
        s_mov_b32 s{sFLOOR}, {f32(-3.0e38)}
        v_mov_b32 v{vMC}, 0
        v_mov_b32 v{vL}, 0
        """)
        if self.prio:
            a(f"""
            s_cmp_lt_u32 s{sW}, 4
            s_cbranch_scc0 L1_p1
            s_setprio 2
            L1_p1:
            s_cmp_lt_u32 s{sW}, 8
            s_cbranch_scc0 L1_p2
            s_cmp_lt_u32 s{sW}, 4
            s_cbranch_scc1 L1_p2
            s_setprio 1
            L1_p2:
            """)
        order = ["c0"] * 5 + ["c1"] * 5 + ["c2"] * 5
        if self.kv0_step < 0:
            order += ["kv0"] * 4
        for c in range(10):
            last = max(i for i, t in enumerate(order) if t == f"c{c}")
            n = len(order) - 1 - last
            a(f"s_waitcnt vmcnt({n})")
            a("s_barrier")
            if c == 0:
                self.stamp(1)
            a(f"v_add_u32 v{vXA2}, {XST[(c+2)%3]}, v{vXA}")
            a(f"v_add_u32 v{vWA2}, {WST[(c+2)%3]}, v{vWA}")
            for s in range(4):
                a(f"ds_read_b128 {vr(XF+4*s,4)}, v{vXA2} offset:{32*s}")
                for db in range(2):
                    for u in range(2):
                        a(f"ds_read_b64_tr_b16 {vr(WF+8*s+4*db+2*u,2)}, v{vWA2} offset:{4*u*VP + s*256 + db*64}")
            def iss():
                nonlocal order
                if c >= 1 and c + 2 < 10:
                    self.q_issue(c + 2); order += [f"c{c+2}"] * 5
                if c == self.kv0_step:
                    self.kv_issue(0); order += ["kv0"] * 4
                if c == 8:
                    self.kv_issue(1); order += ["kv1"] * 4
                if c == 9:
                    self.kv_issue(2); order += ["kv2"] * 4
            if not (c == 0 and self.kv0_step != 0):
                self.loaders_only(iss)
            for s in range(4):
                a(f"s_waitcnt lgkmcnt({15 - 5*s})" if s < 3 else "s_waitcnt lgkmcnt(0)")
                for db in range(2):
                    cc = "0" if (c == 0 and s == 0) else vr(O + 16 * db, 16)
                    a(f"v_mfma_f32_32x32x16_bf16 {vr(O+16*db,16)}, {vr(WF+8*s+4*db,4)}, {vr(XF+4*s,4)}, {cc}")
        assert order[-8:] == ["kv1"] * 4 + ["kv2"] * 4
        a("s_nop 15")
        for i in range(16):
            a(f"v_cvt_pk_bf16_f32 v{Q+i}, v{O+2*i}, v{O+2*i+1}")
        a(f"""
        s_cmp_lt_u32 s{sW}, 10
        s_mov_b32 s{sT0}, {QEX_B}
        s_cselect_b32 s{sT0}, {QEX_A}, s{sT0}
        s_lshl_b32 s3, s{sW}, 12
        s_add_u32 s3, s3, s{sT0}
        v_lshlrev_b32 v{vT}, 4, v{vLANE}
        v_add_u32 v{vT+1}, s3, v{vT}
        s_barrier
        """)
        for j in range(4):
            a(f"ds_write_b128 v{vT+1}, {vr(Q+4*j,4)} offset:{1024*j}")
        for i in range(64):
            a(f"v_mov_b32 v{O+i}, 0")
        a("s_waitcnt lgkmcnt(0)\ns_barrier")
        a(f"""
        s_xor_b32 s3, s{sW}, 1
        s_lshl_b32 s3, s3, 12
        s_add_u32 s3, s3, s{sT0}
        v_add_u32 v{vT+2}, s3, v{vT}
        """)
        for j in range(4):
            a(f"ds_read_b128 {vr(Q+16+4*j,4)}, v{vT+2} offset:{1024*j}")
        a("s_waitcnt lgkmcnt(0)")
        self.stamp(2)
        if self.dump_q:
            a(f"""
            s_mul_i32 s3, s2, 12
            s_add_u32 s3, s3, s{sW}
            s_lshl_b32 s3, s3, 13
            v_add_u32 v{vT+1}, s3, v{vT}
            s_add_u32 s14, s12, 0x4000000
            s_addc_u32 s15, s13, 0
            """)
            for j in range(8):
                a(f"global_store_dwordx4 v{vT+1}, {vr(Q+4*j,4)}, s[14:15] offset:{(j&3)*1024}")
                if j == 3:
                    a(f"v_add_u32 v{vT+1}, 4096, v{vT+1}")
            a("s_waitcnt vmcnt(0)")
        a(f"s_mov_b32 s{sLOOP}, 0")
        a.label("L1_loop")
        for u in range(4):
            self.tile(u, 8, True)
        a(f"""
        s_add_u32 s{sLOOP}, s{sLOOP}, 1
        s_cmp_lt_u32 s{sLOOP}, 7
        s_cbranch_scc1 L1_loop
        """)
        self.tile(0, 8, True)
        self.tile(1, 8, False)
        self.tile(2, 4, False)
        self.tile(3, 0, False)
        self.stamp(3)
        lw, mo, lo, g0, g1 = vT, vT + 1, vT + 2, vS0, vS1
        a(f"""
        v_mov_b32 v{lw}, v{vL}
        v_lshlrev_b32 v{vKA}, 4, v{vLANE}
        s_cmp_lt_u32 s{sW}, 6
        s_cselect_b32 s{sT0}, 0, {VB0 - 6*8192}
        s_lshl_b32 s3, s{sW}, 13
        s_add_u32 s3, s3, s{sT0}
        v_permlane32_swap_b32 v{lw}, v{vL}
        v_add_u32 v{vKB}, s3, v{vKA}
        s_lshl_b32 s3, s{sW}, 9
        s_add_u32 s3, s3, {SPARE}
        v_add_f32 v{vL}, v{vL}, v{lw}
        v_lshlrev_b32 v{vVA}, 2, v{vLANE}
        v_add_u32 v{vVB}, s3, v{vVA}
        ds_write_b32 v{vVB}, v{vMC}
        ds_write_b32 v{vVB}, v{vL} offset:256
        s_xor_b32 s3, s{sW}, 1
        s_lshl_b32 s3, s3, 13
        s_add_u32 s3, s3, s{sT0}
        s_nop 4
        """)
        for j in range(8):
            a(f"ds_write_b128 v{vKB}, {vr(O+32+4*j,4)} offset:{1024*j}")
        a(f"""
        v_add_u32 v{vKB}, s3, v{vKA}
        v_xor_b32 v{vVB}, 0x200, v{vVB}
        s_waitcnt lgkmcnt(0)
        s_barrier
        ds_read_b32 v{mo}, v{vVB}
        ds_read_b32 v{lo}, v{vVB} offset:256
        """)
        assert SPARE % 1024 == 0
        for j in range(8):
            a(f"ds_read_b128 {vr(O+32+4*j,4)}, v{vKB} offset:{1024*j}")
        a(f"""
        s_waitcnt lgkmcnt(8)
        v_max_f32 v{lw}, v{vMC}, v{mo}
        v_sub_f32 v{g0}, v{vMC}, v{lw}
        v_sub_f32 v{g1}, v{mo}, v{lw}
        v_exp_f32 v{g0}, v{g0}
        v_exp_f32 v{g1}, v{g1}
        s_nop 0
        v_mul_f32 v{lw}, v{vL}, v{g0}
        v_fma_f32 v{lw}, v{lo}, v{g1}, v{lw}
        v_rcp_f32 v{lw}, v{lw}
        s_nop 0
        v_mul_f32 v{g0}, v{g0}, v{lw}
        v_mul_f32 v{g1}, v{g1}, v{lw}
        s_lshr_b32 s{sT0}, s{sW}, 1
        s_mul_i32 s3, s{sB}, 6
        s_add_u32 s3, s3, s{sT0}
        s_lshl_b32 s3, s3, 8
        s_lshl_b32 s{sT0}, s{sH}, 3
        s_add_u32 s3, s3, s{sT0}
        s_and_b32 s{sT0}, s{sW}, 1
        s_lshl_b32 s{sT0}, s{sT0}, 2
        s_add_u32 s3, s3, s{sT0}
        s_lshl_b32 s3, s3, 10
        v_add_u32 v{vKA}, s3, v{vKA}
        """)
        for i in range(32):
            a(f"v_mul_f32 v{O+i}, v{O+i}, v{g0}")
        for f in range(4):
            a(f"s_waitcnt lgkmcnt({6-2*f})")
            for i in range(8):
                r = 8 * f + i
                a(f"v_fma_f32 v{O+r}, v{O+32+r}, v{g1}, v{O+r}")
            for i in range(4):
                a(f"v_cvt_pk_bf16_f32 v{S+4*f+i}, v{O+8*f+2*i}, v{O+8*f+2*i+1}")
            a(f"global_store_dwordx4 v{vKA}, {vr(S+4*f,4)}, s[12:13] offset:{1024*f}")
        if self.stamps:
            a("s_waitcnt vmcnt(0)")
            self.stamp(4)
            a(f"""
            s_cmp_eq_u32 s{sW}, 0
            s_cbranch_scc0 L1_end
            s_getreg_b32 s74, hwreg(HW_REG_XCC_ID)
            s_mov_b32 s75, 0
            s_waitcnt lgkmcnt(0)
            s_add_u32 s14, s12, 0x10000000
            s_addc_u32 s15, s13, 0
            s_lshl_b32 s3, s2, 6
            v_mov_b32 v1, s3
            """)
            for i in range(16):
                a(f"v_mov_b32 v{4+i}, s{60+i}")
            a(f"""
            v_cmp_eq_u32 vcc, 0, v{vLANE}
            s_and_saveexec_b64 s[52:53], vcc
            global_store_dwordx4 v1, v[4:7], s[14:15]
            global_store_dwordx4 v1, v[8:11], s[14:15] offset:16
            global_store_dwordx4 v1, v[12:15], s[14:15] offset:32
            global_store_dwordx4 v1, v[16:19], s[14:15] offset:48
            """)
        a.label("L1_end")
        a("s_endpgm")
        for (ls, le) in self.slow:
            self.slow_path(ls, le)

    def kernel2(self):
        a = self.a
        PD = 8
        WR = PD * 2048
        ACC = 0; BF = 64; AF = 128
        vOA, vWD2, vA0, vA1, vLN, vT2 = 144, 145, 146, 147, 148, 149
        a.begin_kernel("oproj_kernel", 240, 512, 8 * 16384, 152)
        a(f"""
        s_cmp_ge_u32 s2, 240
        s_cbranch_scc1 L2_end
        s_load_dwordx4 s[4:7], s[0:1], 32
        s_load_dwordx2 s[12:13], s[0:1], 56        ; ws
        v_lshrrev_b32 v1, 6, v0
        v_and_b32 v{vLN}, 63, v0
        s_and_b32 s20, s2, 7                       ; xcd
        v_readfirstlane_b32 s{sW}, v1
        s_lshr_b32 s21, s2, 3                      ; j 0..29
        ; row tile rt = (xcd&1)*12 + ((xcd>>1)&1)*6 + j/5 ; col tile ct = (xcd>>2)*5 + j%5
        s_mul_i32 s22, s21, 52
        s_lshr_b32 s22, s22, 8                     ; j/5
        s_mul_i32 s23, s22, 5
        s_sub_u32 s23, s21, s23                    ; j%5
        s_and_b32 s24, s20, 1
        s_mul_i32 s24, s24, 12
        s_add_u32 s22, s22, s24
        s_bfe_u32 s24, s20, 0x10001
        s_mul_i32 s24, s24, 6
        s_add_u32 s22, s22, s24                    ; rt
        s_lshr_b32 s24, s20, 2
        s_mul_i32 s24, s24, 5
        s_add_u32 s23, s23, s24                    ; ct
        s_lshl_b32 s24, s22, 19
        s_lshl_b32 s25, s{sW}, 15
        s_add_u32 s24, s24, s25
        v_lshlrev_b32 v{vT2}, 4, v{vLN}
        v_add_u32 v{vOA}, s24, v{vT2}
        v_add_u32 v{vT2+1}, 0x40000, v{vOA}
        v_lshrrev_b32 v1, 3, v{vLN}
        v_and_b32 v2, 7, v{vLN}
        v_bfe_u32 v3, v{vLN}, 4, 1
        v_lshlrev_b32 v3, 2, v3
        v_xor_b32 v2, v2, v3
        v_mul_u32_u24 v1, 1280, v1
        v_lshl_add_u32 v{vWD2}, v2, 4, v1
        v_lshrrev_b32 v1, 5, v{vLN}
        v_bfe_u32 v2, v{vLN}, 2, 2
        v_lshl_add_u32 v1, v1, 2, v2               ; row
        v_lshlrev_b32 v3, 7, v1
        v_bfe_u32 v4, v1, 1, 1
        v_lshl_or_b32 v3, v4, 6, v3
        v_bfe_u32 v4, v{vLN}, 4, 1
        v_lshl_or_b32 v3, v4, 5, v3
        v_and_b32 v4, 3, v{vLN}
        v_lshl_or_b32 v3, v4, 3, v3
        s_lshl_b32 s26, s{sW}, 14
        v_add_u32 v{vA0}, s26, v3
        v_xor_b32 v{vA1}, 64, v{vA0}
        s_waitcnt lgkmcnt(0)
        s_lshl_b32 s24, s23, 7
        s_add_u32 s16, s4, s24
        s_addc_u32 s17, s5, 0
        s_sub_u32 s18, {4096*1280}, s24
        s_mov_b32 s19, 0x20000
        s_mul_i32 s27, s{sW}, {512*1280}
        """)
        def issue(ks):
            sl = ks % PD
            a(f"s_add_u32 m0, s26, {sl*2048}")
            a(f"s_add_u32 s28, s27, {ks*16*1280}")
            a(f"buffer_load_dwordx4 v{vWD2}, s[16:19], s28 offen lds")
            a(f"s_add_u32 m0, m0, 1024")
            a(f"s_add_u32 s28, s28, {8*1280}")
            a(f"buffer_load_dwordx4 v{vWD2}, s[16:19], s28 offen lds")
            if ks and ks % 4 == 0:
                a(f"v_add_u32 v{vOA}, 4096, v{vOA}")
                a(f"v_add_u32 v{vT2+1}, 4096, v{vT2+1}")
            a(f"global_load_dwordx4 {vr(BF+8*sl,4)}, v{vOA}, s[12:13] offset:{(ks%4)*1024}")
            a(f"global_load_dwordx4 {vr(BF+8*sl+4,4)}, v{vT2+1}, s[12:13] offset:{(ks%4)*1024}")
        for ks in range(PD - 1):
            issue(ks)
        def readA(ks):
            sl = ks % PD
            ab = AF + 8 * (ks & 1)
            for nb in range(2):
                for u in range(2):
                    a(f"ds_read_b64_tr_b16 {vr(ab+4*nb+2*u,2)}, v{vA0 if nb == 0 else vA1} offset:{sl*2048 + u*1024}")
        a(f"s_waitcnt vmcnt({4*(PD-2)})")
        readA(0)
        for ks in range(32):
            sl = ks % PD
            if ks + PD - 1 < 32:
                issue(ks + PD - 1)
            if ks + 1 < 32:
                outstanding_after = min(32, ks + PD) - (ks + 2)
                a(f"s_waitcnt vmcnt({4*outstanding_after}) lgkmcnt(0)")
                readA(ks + 1)
            else:
                a("s_waitcnt lgkmcnt(0)")
            ab = AF + 8 * (ks & 1)
            for nb in range(2):
                for qb in range(2):
                    acc = ACC + 16 * (nb * 2 + qb)
                    cc = "0" if ks == 0 else vr(acc, 16)
                    a(f"v_mfma_f32_32x32x16_bf16 {vr(acc,16)}, {vr(ab+4*nb,4)}, {vr(BF+8*sl+4*qb,4)}, {cc}")
        a(f"""
        s_nop 15
        s_barrier
        v_lshlrev_b32 v{vT2}, 4, v{vLN}
        v_add_u32 v{vA0}, s26, v{vT2}
        """)
        for j in range(16):
            a(f"ds_write_b128 v{vA0}, {vr(ACC+4*j,4)} offset:{1024*j}")
        a(f"""
        s_lshl_b32 s24, s{sW}, 11
        v_add_u32 v{vA1}, s24, v{vT2}
        v_add_u32 v{vA0}, 0x10000, v{vA1}
        s_waitcnt lgkmcnt(0)
        s_barrier
        """)
        for w in range(8):
            for j in range(2):
                ad = vA1 if w < 4 else vA0
                a(f"ds_read_b128 {vr(8*w+4*j,4)}, v{ad} offset:{(w&3)*16384 + 1024*j}")
        a(f"""
        s_lshr_b32 s24, s{sW}, 2                   ; nb
        s_bfe_u32 s25, s{sW}, 0x10001              ; qb
        s_and_b32 s28, s{sW}, 1
        s_lshl_b32 s29, s22, 6
        s_lshl_b32 s25, s25, 5
        s_add_u32 s29, s29, s25
        s_mul_i32 s29, s29, 1280
        s_lshl_b32 s30, s23, 7
        s_add_u32 s29, s29, s30
        s_lshl_b32 s24, s24, 6
        s_add_u32 s29, s29, s24
        s_lshl_b32 s28, s28, 5
        s_add_u32 s29, s29, s28
        v_and_b32 v64, 31, v{vLN}
        v_mul_u32_u24 v64, 1280, v64
        v_lshrrev_b32 v65, 5, v{vLN}
        v_lshl_add_u32 v64, v65, 3, v64
        v_add_u32 v64, s29, v64
        """)
        for w in range(1, 8):
            a(f"s_waitcnt lgkmcnt({14-2*w})")
            for i in range(8):
                a(f"v_add_f32 v{i}, v{i}, v{8*w+i}")
        a(f"""
        v_cvt_pk_bf16_f32 v66, v0, v1
        v_cvt_pk_bf16_f32 v67, v2, v3
        v_cvt_pk_bf16_f32 v68, v4, v5
        v_cvt_pk_bf16_f32 v69, v6, v7
        global_store_dwordx2 v64, v[66:67], s[6:7]
        global_store_dwordx2 v64, v[68:69], s[6:7] offset:16
        L2_end:
        s_endpgm
        """)

def build(name, **kw):
    g = Gen(**kw)
    g.kernel1()
    g.kernel2()
    open(name, "w").write(g.a.text())

if __name__ == "__main__":
    build("v1.s")
    build("v1_st.s", stamps=True)
    build("v1_dq.s", dump_q=True)
```

```python
import sys, struct
from asmlib import Asm

def f32(x):
    return "0x%08x" % struct.unpack("<I", struct.pack("<f", x))[0]
def vr(b, n): return f"v[{b}:{b+n-1}]"
def ar(b, n): return f"a[{b}:{b+n-1}]"

PIT = 1056
TS = 16 * PIT
VB0 = 4 * TS
SPARE = 8 * TS
LDS1 = 163840
XP = 6 * 1024 + 32
XSZ = 4 * XP
XST = [TS, TS + XSZ, SPARE]
WST = [VB0 + TS, VB0 + 2 * TS, VB0 + 3 * TS]
QP = 288
QA1 = VB0 + 3 * TS
THR = 4096.0
CSC = 1.4426950408889634 / (128 ** 0.5)
MF = "v_mfma_f32_16x16x32_bf16"

QV, S, P, KF, VF, NM = 0, 32, 80, 104, 136, 168
vL, vTS, vT = 192, 198, 201
vTSH = [198, 222]
vSUM = [207, 208]
vST, vSTS = 226, 234
vK, vVA, vVB, vDMA, vLANE = 209, 210, 211, 212, 253
vX, vW, vX2, vW2, vXD, vWD, vKW = 214, 215, 216, 217, 218, 219, 220
QACC = 32
QSET = [0, 80]
KVR = 160

def Oa(j, qb): return (j * 6 + qb) * 4
def Qf(s, qb):
    n = s * 6 + qb
    return ar(192 + 4 * n, 4) if n < 16 else vr(QV + 4 * (n - 16), 4)
def Si(kb, qb): return S + ((qb // 3) * 6 + kb * 3 + qb % 3) * 4

sW, sB, sH = 32, 33, 34
sTHR = [36, 36]
sKVO, sKVL = 40, 41
sCH, sXO, sWO, sT0, sT1 = 42, 43, 44, 45, 46
sLOOP = 47
sXB, sWB, sXS, sWS = 48, 49, 50, 51
sQH, sKH = 52, 53
sRET = 54
sD = [30, 31, 35]
SRD_K, SRD_V, SRD_X, SRD_W = 16, 20, 24, 96

class Gen:
    def __init__(self, stamps=False, kvstride=16384, abl=(), early=None, kvw=(8, 9), fused=True, nRL=6,
                 dma_pos=None, qng=16, qrg=12, pad=0, pvorder=0, qkorder=0, dist=(3,)*8, pre=None, porder=(0, 1, 2, 3, 4, 5, 6, 7), linear=False, korder=0, chain=False, head=12, target=2.4, gap_max=4, ds_cost=1, dma_cost=2, lstamps=False, qstamps=False, PDA=10, tilemap=0):
        self.a = Asm()
        self.__dict__.update(locals())
        if early is None: self.early = {3: 4, 4: 4, 5: 4, 6: 4, 7: 4, 8: 4}
        if pre is None: self.pre = self.dist
        self.dsq = []
        self.stubs = []
        self.src = {}

    def stamp(self, i):
        if self.stamps:
            self.a(f"s_memrealtime s[{60+2*i}:{61+2*i}]")
            self.a(f"s_memtime s[{76+2*i}:{77+2*i}]")
    def stamp_store(self, end):
        a = self.a
        a(f"""
        s_cmp_eq_u32 s{sW}, 0
        s_cbranch_scc0 {end}
        s_waitcnt lgkmcnt(0)
        s_add_u32 s14, s12, 0x10000000
        s_addc_u32 s15, s13, 0
        s_lshl_b32 s3, s2, 7
        v_mov_b32 v1, s3
        """)
        for i in range(32): a(f"v_mov_b32 v{4+i}, s{60+i}")
        a(f"v_cmp_eq_u32 vcc, 0, v{vLANE}\ns_and_saveexec_b64 s[54:55], vcc")
        for i in range(8): a(f"global_store_dwordx4 v1, v[{4+4*i}:{7+4*i}], s[14:15] offset:{16*i}")

    def ds(self, text, tag):
        self.a(text); self.dsq.append(tag)
    def need(self, tag):
        idx = [i for i, t in enumerate(self.dsq) if t == tag]
        if not idx: return
        cnt = min(len(self.dsq) - 1 - idx[-1], 15)
        self.a(f"s_waitcnt lgkmcnt({cnt})")
        self.dsq = self.dsq[len(self.dsq) - cnt:]

    def kv_piece(self, t, n, reg=None, k=None):
        isv, j = n & 1, n >> 1
        srd = SRD_V if isv else SRD_K
        off = f" offset:{j*256}" if j else ""
        pre = ""
        if k is None:
            pre = f"s_add_u32 s{sT1}, s{sKVO}, {t*self.kvstride}\n"
            so = sT1
        else:
            so = sD[t - k - 1]
        if reg is None:
            pre += f"s_add_u32 m0, s{sKVL}, {isv*VB0 + (t%4)*TS + j*(PIT-256)}"
            post = f"buffer_load_dwordx4 v{vDMA}, s[{srd}:{srd+3}], s{so} offen{off} nt lds"
        else:
            post = f"buffer_load_dwordx4 {ar(reg+4*n,4)}, v{vDMA}, s[{srd}:{srd+3}], s{so} offen{off} nt"
        return pre.rstrip("\n"), post
    def dist_of(self, n, k):
        return self.dist[n]
    def main_pieces(self, k):
        out = []
        for n in self.porder:
            t = k + self.dist[n]
            if t >= self.pre[n] and (k <= 29 or t <= 31):
                out.append((n, t))
        return out
    def main_wait(self, k):
        order = []
        for kk in range(0, k):
            order += [t for n, t in self.main_pieces(kk)]
        idx = [i for i, t in enumerate(order) if t <= k]
        return len(order) - 1 - idx[-1] if idx else len(order)
    def q_pieces(self, c):
        xb, wb = XST[(c + 2) % 3], WST[(c + 2) % 3]
        head = f"""s_lshl_b32 s{sXO}, s{sCH}, 7
        s_add_u32 s{sXO}, s{sXO}, s{sXS}
        s_lshl_b32 s{sWO}, s{sCH}, 19
        s_add_u32 s{sWO}, s{sWO}, s{sWS}
        s_add_u32 s{sCH}, s{sCH}, 1
        s_cmp_ge_u32 s{sCH}, 10
        s_cselect_b32 s{sCH}, 0, s{sCH}
        """
        W = f"s[{SRD_W}:{SRD_W+3}]"; X = f"s[{SRD_X}:{SRD_X+3}]"
        out = []
        for e in range(4):
            pre = (head if e == 0 else f"s_add_u32 s{sWO}, s{sWO}, 8192\n") + f"s_add_u32 m0, s{sWB}, {wb + e*PIT}"
            out.append((pre, f"buffer_load_dwordx4 v{vWD}, {W}, s{sWO} offen lds"))
        for u in range(6):
            pre = (f"s_add_u32 s{sXO}, s{sXO}, {32*1280}\n" if u else "") + f"s_add_u32 m0, s{sXB}, {xb + u*1024}"
            out.append((pre, f"buffer_load_dwordx4 v{vXD}, {X}, s{sXO} offen lds"))
        return out
    def emit_piece(self, pc):
        self.a((pc[0] + "\ns_nop 0\n" if pc[0] else "") + pc[1])

    def kread(self, slot, f):
        if "nolds" in self.abl: return
        kb, s = f >> 2, f & 3
        self.ds(f"ds_read_b128 {vr(KF+4*f,4)}, v{vK} offset:{slot*TS + kb*256 + s*64}", ("K", f))
    def vread(self, slot, j):
        if "nolds" in self.abl: return
        ad = vVA if j < 4 else vVB
        for u in range(2):
            self.ds(f"ds_read_b64_tr_b16 {vr(VF+4*j+2*u,2)}, v{ad} offset:{slot*TS + u*256 + j*32}", ("V", j))

    def sm_stream(self, h, T=vT, check=True):
        out = []
        if "nosm" in self.abl: return out
        TSV = vTSH[h]
        pairs = [(kb, q3, e) for kb in range(2) for q3 in range(3) for e in range(2)]
        def tmp(i): return T + (i % 3) * 2
        def ex(i):
            kb, q3, e = pairs[i]
            r = Si(kb, 3 * h + q3) + 2 * e
            self.src[f"v_exp_f32 v{tmp(i)}, v{r}"] = (h, kb, q3)
            out.append((2, f"v_exp_f32 v{tmp(i)}, v{r}"))
            out.append((2, f"v_exp_f32 v{tmp(i)+1}, v{r+1}"))
        ex(0)
        late = []
        for i, (kb, q3, e) in enumerate(pairs):
            if i + 1 < len(pairs): ex(i + 1)
            else: out.append((1, f"v_add_f32 v{vSUM[h]}, v{TSV}, v{TSV+1}"))
            t = tmp(i)
            if kb == 0 and e == 0:
                out.append((1, f"v_add_f32 v{TSV+q3}, v{t}, v{t+1}"))
            elif "noadd" not in self.abl:
                out.append((1, f"v_add_f32 v{TSV+q3}, v{TSV+q3}, v{t}"))
                out.append((1, f"v_add_f32 v{TSV+q3}, v{TSV+q3}, v{t+1}"))
            cv = (1, f"v_cvt_pk_bf16_f32 v{P+4*(3*h+q3)+2*kb+e}, v{t}, v{t+1}")
            if i >= len(pairs) - 1: late.append(cv)
            else: out.append(cv)
        if check:
            out.append((1, f"v_add_f32 v{vSUM[h]}, v{vSUM[h]}, v{TSV+2}"))
            out.append((1, f"v_cmp_lt_f32 vcc, s{sTHR[h]}, v{vSUM[h]}"))
        out += late
        return out
    def gated(self, items, G, start=0):
        return [(c, t, self.src.get(t, 0)) for c, t in items]
    def ninstr(self):
        return sum(1 for l in self.a.lines[-40:] if not l.strip().endswith(":") ) + 0
    def gate_ok(self, key):
        if key == 0: return True
        if key not in self.ready: return False
        n = sum(1 for l in self.a.lines[self.ready[key]:] if l.strip() and not l.strip().endswith(":"))
        return n >= 8
    def first_stream(self, h):
        out = []
        m = [vST, vST + 1, vST + 2]; n = [vST + 3, vST + 4, vST + 5]
        def add(t, key=0): out.append((1, t, key))
        for q3 in range(3):
            s0, s1 = Si(0, 3*h+q3), Si(1, 3*h+q3)
            add(f"v_max3_f32 v{m[q3]}, v{s0}, v{s0+1}, v{s0+2}", (h, 0, q3))
        for q3 in range(3):
            s0, s1 = Si(0, 3*h+q3), Si(1, 3*h+q3)
            add(f"v_max3_f32 v{m[q3]}, v{m[q3]}, v{s0+3}, v{s1}", (h, 1, q3))
            add(f"v_max3_f32 v{m[q3]}, v{m[q3]}, v{s1+1}, v{s1+2}")
            add(f"v_max_f32 v{m[q3]}, v{m[q3]}, v{s1+3}")
        for sw in ("v_permlane16_swap_b32", "v_permlane32_swap_b32"):
            for q3 in range(3): add(f"v_mov_b32 v{n[q3]}, v{m[q3]}")
            add("s_nop 1")
            for q3 in range(3): add(f"{sw} v{m[q3]}, v{n[q3]}")
            for q3 in range(3): add(f"v_max_f32 v{m[q3]}, v{m[q3]}, v{n[q3]}")
        for q3 in range(3):
            qb = 3 * h + q3
            for kb in range(2):
                for r in range(4): add(f"v_sub_f32 v{Si(kb,qb)+r}, v{Si(kb,qb)+r}, v{m[q3]}")
            for r in range(4): add(f"v_sub_f32 v{NM+4*qb+r}, 0, v{m[q3]}")
        return out
    def check_branch(self, h):
        a = self.a
        if "nosm" in self.abl: return []
        if not self.abl:
            stub = a.newlabel("L_stub"); ret = a.newlabel("L_ret")
            self.stubs.append((stub, ret, h))
            a(f"s_cbranch_vccnz {stub}\n{ret}:")
        return [(1, f"v_add_f32 v{vL+3*h+q3}, v{vL+3*h+q3}, v{vTSH[h]+q3}") for q3 in range(3)]

    def slow_sub(self, h):
        a = self.a
        a.label(f"L_slow{h}")
        m = [vST, vST + 1, vST + 2]; n = [vST + 3, vST + 4, vST + 5]
        for q3 in range(3):
            s0, s1 = Si(0, 3*h+q3), Si(1, 3*h+q3)
            a(f"v_max3_f32 v{m[q3]}, v{s0}, v{s0+1}, v{s0+2}")
            a(f"v_max3_f32 v{m[q3]}, v{m[q3]}, v{s0+3}, v{s1}")
            a(f"v_max3_f32 v{m[q3]}, v{m[q3]}, v{s1+1}, v{s1+2}")
            a(f"v_max_f32 v{m[q3]}, v{m[q3]}, v{s1+3}")
        for sw in ("v_permlane16_swap_b32", "v_permlane32_swap_b32"):
            for q3 in range(3): a(f"v_mov_b32 v{n[q3]}, v{m[q3]}")
            a("s_nop 1")
            for q3 in range(3): a(f"{sw} v{m[q3]}, v{n[q3]}")
            for q3 in range(3): a(f"v_max_f32 v{m[q3]}, v{m[q3]}, v{n[q3]}")
        for q3 in range(3): a(f"v_max_f32 v{m[q3]}, 0, v{m[q3]}")
        for q3 in range(3): a(f"v_exp_f32 v{n[q3]}, -v{m[q3]}")
        for q3 in range(3):
            qb = 3 * h + q3
            for kb in range(2):
                for r in range(4): a(f"v_sub_f32 v{Si(kb,qb)+r}, v{Si(kb,qb)+r}, v{m[q3]}")
            for r in range(4): a(f"v_sub_f32 v{NM+4*qb+r}, v{NM+4*qb+r}, v{m[q3]}")
            a(f"v_mul_f32 v{vL+qb}, v{vL+qb}, v{n[q3]}")
            for j in range(8):
                t = [vSTS, vSTS + 1, vSTS + 2, vSTS + 3]
                for r in range(4): a(f"v_accvgpr_read_b32 v{t[r]}, a{Oa(j,qb)+r}")
                for r in range(4): a(f"v_mul_f32 v{t[r]}, v{t[r]}, v{n[q3]}")
                for r in range(4): a(f"v_accvgpr_write_b32 a{Oa(j,qb)+r}, v{t[r]}")
        for c, t in self.sm_stream(h, T=vST, check=False): a(t)
        a(f"s_nop 1\ns_setpc_b64 s[{sRET}:{sRET+1}]")

    def mk(self, kind, h, items, **kw):
        return dict(kind=kind, h=h, items=items, **kw)
    def pv_groups(self, h, first=False, after=None):
        if self.pvorder == 0:
            return [self.mk("pv", h, [(j, q3) for q3 in range(3)], first=first, after=[(lambda j=j: after(j))] if after else []) for j in range(8)]
        seq = [(j, q3) for q3 in range(3) for j in range(8)]
        out = []
        for g in range(8):
            it = seq[3 * g:3 * g + 3]
            aft = []
            if after:
                if self.pv_after_k:
                    aft = [(lambda j=g: after(j))]
                else:
                    aft = [(lambda j=j: after(j)) for j, q3 in it if q3 == 2]
            out.append(self.mk("pv", h, it, first=first, after=aft))
        return out
    def qk_groups(self, h):
        if self.qkorder == 0:
            return [self.mk("qk", h, [(f, q3) for q3 in range(3)]) for f in range(8)]
        seq = [(4 * kb + s, q3) for kb in range(2) for q3 in range(3) for s in range(4)]
        return [self.mk("qk", h, seq[3 * g:3 * g + 3]) for g in range(8)]

    def run(self, groups, vq, target):
        a = self.a
        cum = 0.0; m = 0
        self.ready = {}
        for gi, g in enumerate(groups):
            kind, h = g["kind"], g["h"]
            if g.get("check") is not None:
                vq[0:0] = [(c, t, 0) for c, t in self.check_branch(g["check"])]
                cum += 1
            dma = g.get("dma")
            if self.pad: a(f"s_nop {self.pad-1}")
            if dma and dma[0]: a(dma[0]); cum += 1
            for n, (j, q3) in enumerate(g["items"]):
                qb = 3 * h + q3
                n0 = len(a.lines)
                self.need(("V" if kind == "pv" else "K", j))
                cum += len(a.lines) - n0
                if kind == "pv":
                    c = "0" if g.get("first") else ar(Oa(j, qb), 4)
                    a(f"{MF} {ar(Oa(j,qb),4)}, {vr(VF+4*j,4)}, {vr(P+4*qb,4)}, {c}")
                else:
                    kb, s = j >> 2, j & 3
                    c = vr(NM + 4 * qb, 4) if s == 0 else vr(Si(kb, qb), 4)
                    a(f"{MF} {vr(Si(kb,qb),4)}, {vr(KF+4*j,4)}, {Qf(s,qb)}, {c}")
                    if s == 3: self.ready[(h, kb, q3)] = len(a.lines)
                cur = 0
                if n == 0 and dma:
                    a(dma[1]); cur += self.dma_cost
                if n == 2:
                    n0 = len(a.lines)
                    for fn in g.get("after", []): fn()
                    cur += (len(a.lines) - n0) * self.ds_cost
                m += 1
                while vq and self.gate_ok(vq[0][2]) and (cur < 2 or cum + cur + vq[0][0] <= target * m + 0.5):
                    if cur >= 2 and cur + vq[0][0] > self.gap_max: break
                    if cur == 1 and vq[0][0] == 2 and cum + cur + 2 > target * m + 1.5: break
                    c, t, _ = vq.pop(0)
                    a(t); cur += c
                cum += max(cur, 0)

    def interval(self, k):
        a = self.a
        slot = k % 4
        H = self.head
        w = self.main_wait(k) if k <= 30 else 0
        if 2 <= k <= 5:
            w = min(self.main_wait(k + 4 * i) for i in range(7))
        pcs = [self.kv_piece(t, n, k=k) for n, t in self.main_pieces(k)]
        if 2 <= k <= 5: assert len(pcs) == 8
        if "nodma" in self.abl: pcs = []
        pos = self.dma_pos or [1, 5, 9, 13, 17, 21, 25, 29]
        lead = []
        if k >= 1: lead = [(c, t, 0) for c, t in self.check_branch(0)]
        for d in sorted(set(self.dist)):
            if k == 0: a(f"s_add_u32 s{sD[d-1]}, s{sKVO}, {d*self.kvstride}")
            else: a(f"s_add_u32 s{sD[d-1]}, s{sD[d-1]}, {self.kvstride}")
        if "nobar" in self.abl and 0 < k < 31: a(f"s_waitcnt vmcnt({w}) lgkmcnt(0)")
        else: a(f"s_waitcnt vmcnt({w}) lgkmcnt(0)\ns_barrier")
        self.dsq = []
        smA = self.sm_stream(0); smB = self.sm_stream(1)
        if k == 0:
            for f in range(8): self.kread(slot, f)
            for j in range(8): self.vread(slot, j)
            groups = self.qk_groups(0) + self.qk_groups(1)
            for i, pc in enumerate(pcs): groups[i]["dma"] = pc
            vq = self.first_stream(0) + [(c, t, 0) for c, t in smA] + self.first_stream(1) + [(c, t, 0) for c, t in smB[:H]]
            self.run(groups, vq, 3.0)
        else:
            self.pv_after_k = True
            groups = self.pv_groups(0, k == 1, lambda j: self.kread(slot, j)) + self.qk_groups(0)
            self.pv_after_k = False
            groups += self.pv_groups(1, k == 1, lambda j: self.vread(slot, j)) + self.qk_groups(1)
            groups[16]["check"] = 1
            for i, pc in enumerate(pcs): groups[pos[i]]["dma"] = pc
            vq = lead + [(c, t, 0) for c, t in smB[H:]] + self.gated(smA, 24) + self.gated(smB[:H], 72)
            nB = len(lead) + len(smB) - H
            self.run(groups, vq, self.target)
        for c, t, key in vq:
            if not self.gate_ok(key): a("s_nop 7")
            a(t)

    def main_loop(self):
        a = self.a
        self.interval(0)
        self.interval(1)
        a(f"s_mov_b32 s{sLOOP}, 0")
        a.label("L1_loop")
        for k in range(2, 6): self.interval(k)
        if self.lstamps:
            a(f"s_memrealtime s[92:93]\ns_mov_b32 m0, s{sLOOP}\ns_waitcnt lgkmcnt(0)\nv_writelane_b32 v254, s92, m0")
        a(f"s_add_u32 s{sLOOP}, s{sLOOP}, 1\ns_cmp_lt_u32 s{sLOOP}, 7\ns_cbranch_scc1 L1_loop")
        self.interval(30)
        self.interval(31)
        lead = [(c, t, 0) for c, t in self.check_branch(0)]
        vq = lead + [(c, t, 0) for c, t in self.sm_stream(1)[self.head:]]
        self.run(self.pv_groups(0), vq, 4.0)
        for c, t, _ in vq: a(t)
        a("s_nop 1")
        vq = []
        gl = self.pv_groups(1); gl[0]["check"] = 1
        self.run(gl, vq, 2.0)
        for c, t, _ in vq: a(t)

    def prologue(self):
        a = self.a
        a("s_cmp_ge_u32 s2, 256\ns_cbranch_scc1 L1_end")
        self.stamp(0)
        a(f"""
        s_load_dwordx8 s[4:11], s[0:1], 0
        s_load_dwordx2 s[12:13], s[0:1], 56
        s_load_dwordx4 s[56:59], s[0:1], 32
        s_load_dwordx2 s[28:29], s[0:1], 48
        v_lshrrev_b32 v1, 6, v0
        v_and_b32 v{vLANE}, 63, v0
        s_and_b32 s{sT0}, s2, 7
        v_readfirstlane_b32 s{sW}, v1
        s_lshr_b32 s{sT1}, s2, 3
        s_and_b32 s{sB}, s{sT0}, 1
        s_lshl_b32 s{sB}, s{sB}, 2
        s_and_b32 s3, s{sT1}, 3
        s_or_b32 s{sB}, s{sB}, s3
        s_lshr_b32 s{sH}, s{sT0}, 1
        s_lshl_b32 s{sH}, s{sH}, 3
        s_lshr_b32 s3, s{sT1}, 2
        s_or_b32 s{sH}, s{sH}, s3
        s_and_b32 s{sCH}, s{sH}, 7
        s_and_b32 s3, s{sB}, 3
        s_lshl_b32 s3, s3, 1
        s_add_u32 s{sCH}, s{sCH}, s3
        s_cmp_ge_u32 s{sCH}, 10
        s_cselect_b32 s3, 10, 0
        s_sub_u32 s{sCH}, s{sCH}, s3
        v_lshrrev_b32 v1, 4, v{vLANE}             ; g
        v_and_b32 v2, 15, v{vLANE}                ; q
        v_lshlrev_b32 v3, 12, v1
        v_lshl_or_b32 v{vDMA}, v2, 4, v3
        v_lshlrev_b32 v3, 17, v1
        v_lshl_or_b32 v{vWD}, v2, 4, v3
        v_lshrrev_b32 v3, 3, v{vLANE}
        v_and_b32 v4, 7, v{vLANE}
        v_mul_u32_u24 v3, {4*1280}, v3
        v_lshl_add_u32 v{vXD}, v4, 4, v3
        s_lshr_b32 s{sQH}, s{sW}, 1
        s_and_b32 s{sKH}, s{sW}, 1
        s_mul_i32 s{sXB}, s{sW}, {XP}
        s_mul_i32 s{sXS}, s{sW}, 1280
        s_mul_i32 s{sWB}, s{sW}, {4*PIT}
        s_lshl_b32 s{sWS}, s{sKH}, 3
        s_lshl_b32 s3, s{sQH}, 2
        s_or_b32 s{sWS}, s{sWS}, s3
        s_lshl_b32 s{sWS}, s{sWS}, 13
        s_lshl_b32 s{sKVO}, s{sW}, 10
        s_mov_b32 s{sKVL}, s{sWB}
        s_lshl_b32 s{sT0}, s{sB}, 5
        s_add_u32 s{sT0}, s{sT0}, s{sH}
        s_lshl_b32 s{sT1}, s{sT0}, 19
        s_lshr_b32 s{sT0}, s{sT0}, 13
        s_waitcnt lgkmcnt(0)
        s_add_u32 s{SRD_K}, s6, s{sT1}
        s_addc_u32 s{SRD_K+1}, s7, s{sT0}
        s_mov_b32 s{SRD_K+2}, 524288
        s_mov_b32 s{SRD_K+3}, 0x20000
        s_add_u32 s{SRD_V}, s8, s{sT1}
        s_addc_u32 s{SRD_V+1}, s9, s{sT0}
        s_mov_b32 s{SRD_V+2}, 524288
        s_mov_b32 s{SRD_V+3}, 0x20000
        s_mul_i32 s{sT0}, s{sB}, 245760
        s_add_u32 s{SRD_X}, s4, s{sT0}
        s_addc_u32 s{SRD_X+1}, s5, 0
        s_mov_b32 s{SRD_X+2}, 245760
        s_mov_b32 s{SRD_X+3}, 0x20000
        s_lshl_b32 s{sT0}, s{sH}, 8
        s_add_u32 s{SRD_W}, s10, s{sT0}
        s_addc_u32 s{SRD_W+1}, s11, 0
        s_sub_u32 s{SRD_W+2}, {640*8192}, s{sT0}
        s_mov_b32 s{SRD_W+3}, 0x20000
        """)
        for c in range(3):
            for pc in self.q_pieces(c): self.emit_piece(pc)
        a(f"""
        v_bfe_u32 v3, v{vLANE}, 2, 2              ; r
        v_and_b32 v4, 3, v{vLANE}                 ; c
        v_mul_u32_u24 v5, {PIT}, v2
        v_lshl_add_u32 v5, v1, 4, v5
        s_lshl_b32 s3, s{sKH}, 9
        v_add_u32 v{vK}, s3, v5
        v_lshl_add_u32 v5, v1, 2, v3
        v_mul_u32_u24 v5, {PIT}, v5
        v_lshl_add_u32 v5, v4, 3, v5
        s_mul_i32 s3, s{sKH}, {512+128}
        s_add_u32 s3, s3, {VB0}
        v_add_u32 v{vVA}, s3, v5
        s_mul_i32 s3, s{sKH}, {512-128}
        s_add_u32 s3, s3, {VB0}
        v_add_u32 v{vVB}, s3, v5
        v_mul_u32_u24 v5, {XP}, v4
        v_lshl_add_u32 v5, v3, 7, v5
        v_lshl_add_u32 v5, v1, 4, v5
        s_mul_i32 s3, s{sQH}, 3072
        v_add_u32 v{vX}, s3, v5
        v_and_b32 v5, 1, v1
        v_lshl_add_u32 v5, v5, 2, v3
        v_mul_u32_u24 v5, {PIT}, v5
        v_lshrrev_b32 v6, 1, v1
        v_lshl_add_u32 v5, v6, 8, v5
        v_lshl_add_u32 v5, v4, 3, v5
        s_lshl_b32 s3, s{sKH}, 7
        v_add_u32 v{vW}, s3, v5
        v_lshlrev_b32 v{vKW}, 4, v{vLANE}
        v_add_u32 v{vKW}, s{sKVL}, v{vKW}
        v_add_u32 v{vKW+1}, {VB0}, v{vKW}
        s_mov_b32 s{sTHR[0]}, {f32(THR)}
        """)
        for i in range(24): a(f"v_mov_b32 v{NM+i}, 0")
        for i in range(6): a(f"v_mov_b32 v{vL+i}, 0")

    def qphase(self):
        a = self.a
        order = ["c0"] * 10 + ["c1"] * 10 + ["c2"] * 10
        kvl = [(t, n) for t in range(3) for n in range(8) if t < self.pre[n]]
        def next_kv():
            if not kvl: return None
            t, n = kvl.pop(0)
            order.append(f"kv{t}")
            return self.kv_piece(0, n) if t == 0 else self.kv_piece(t, n, reg=KVR + 32 * (t - 1))
        for _ in range(self.early.get(-1, 0)): self.emit_piece(next_kv())
        def xf(st, s, qb): return QSET[st] + (s * 6 + qb) * 4
        def wf(st, s, db): return QSET[st] + 48 + (s * 4 + db) * 4
        def reads(c):
            st = c & 1
            a(f"v_add_u32 v{vX2}, {XST[(c+2)%3]}, v{vX}")
            a(f"v_add_u32 v{vW2}, {WST[(c+2)%3]}, v{vW}")
            out = []
            for s in range(2):
                for qb in range(6):
                    out.append(f"ds_read_b128 {ar(xf(st,s,qb),4)}, v{vX2} offset:{qb*512 + s*64}")
                for db in range(4):
                    for u in range(2):
                        out.append(f"ds_read_b64_tr_b16 {ar(wf(st,s,db)+2*u,2)}, v{vW2} offset:{u*8*PIT + s*512 + db*32}")
            return out
        def after(tag):
            idx = [i for i, t in enumerate(order) if t == tag]
            if not idx: return 63
            return len(order) - 1 - idx[-1]
        a(f"s_waitcnt vmcnt({after('c0')})\ns_barrier")
        self.stamp(1)
        for r in reads(0): a(r)
        for c in range(10):
            if c + 1 < 10: a(f"s_waitcnt vmcnt({min(63, after(f'c{c+1}'))}) lgkmcnt(0)")
            else: a("s_waitcnt lgkmcnt(0)")
            a("s_barrier")
            rd = reads(c + 1) if c + 1 < 10 else []
            if "qnolds" in self.abl: rd = []
            todo = []
            if c + 3 < 10 and "qnodma" not in self.abl: todo += [("q", pc) for pc in self.q_pieces(c + 3)]
            todo += [("kv", None)] * self.early.get(c, 0)
            st = c & 1
            NG = self.qng
            g = 0
            for s in range(2):
                for db in range(4):
                    for hh in range(2):
                        mine = todo[(g * len(todo) + NG - 1) // NG:((g + 1) * len(todo) + NG - 1) // NG]
                        pcs = []
                        for kind, pc in mine:
                            if kind == "q": order.append(f"c{c+3}"); pcs.append(pc)
                            else:
                                pc = next_kv()
                                if pc: pcs.append(pc)
                        if pcs and pcs[0][0]: a(pcs[0][0])
                        for q3 in range(3):
                            qb = 3 * hh + q3
                            acc = QACC + (db * 6 + qb) * 4
                            cc = "0" if (c == 0 and s == 0) else vr(acc, 4)
                            a(f"{MF} {vr(acc,4)}, {ar(wf(st,s,db),4)}, {ar(xf(st,s,qb),4)}, {cc}")
                        if pcs: a(pcs[0][1])
                        for pc in pcs[1:]: self.emit_piece(pc)
                        ng = self.qrg
                        for r in rd[(g * 28) // ng:((g + 1) * 28) // ng]: a(r)
                        g += 1
                        for t, cw in ((1, self.kvw[0]), (2, self.kvw[1])):
                            if c == cw and g == 12 and f"kv{t}" in order:
                                assert not any(tt == t for tt, _ in kvl)
                                a(f"s_waitcnt vmcnt({after(f'kv{t}')})")
                                for n in [n for n in range(8) if t < self.pre[n]]:
                                    a(f"ds_write_b128 v{vKW + (n & 1)}, {ar(KVR+32*(t-1)+4*n,4)} offset:{t*TS + (n>>1)*PIT}")
            if self.qstamps and c in (2, 5, 8, 9): self.stamp({2: 3, 5: 4, 8: 5, 9: 6}[c])
        assert not kvl
        a('s_waitcnt vmcnt(0)') if False else None
        rlo, rhi, wlo, whi = vT, vT + 1, vT + 2, vT + 3
        a(f"""
        s_mov_b32 s3, {f32(CSC)}
        s_mul_i32 s{sT0}, s{sQH}, {96*QP}
        s_add_u32 s{sT0}, s{sT0}, {QA1}
        s_cmp_eq_u32 s{sQH}, 0
        s_mov_b32 s{sT1}, {3*TS}
        s_cselect_b32 s{sT1}, {QA1 + 48*QP}, s{sT1}
        v_and_b32 v{vT+4}, 15, v{vLANE}
        v_mul_u32_u24 v{vT+4}, {QP}, v{vT+4}
        v_lshrrev_b32 v{vT+5}, 4, v{vLANE}
        v_lshl_add_u32 v{vT+6}, v{vT+5}, 4, v{vT+4}
        v_add_u32 v{rlo}, s{sT0}, v{vT+6}
        v_add_u32 v{rhi}, s{sT1}, v{vT+6}
        v_lshl_add_u32 v{vT+6}, v{vT+5}, 3, v{vT+4}
        s_lshl_b32 s{sXO}, s{sKH}, 7
        v_add_u32 v{vT+6}, s{sXO}, v{vT+6}
        v_add_u32 v{wlo}, s{sT0}, v{vT+6}
        v_add_u32 v{whi}, s{sT1}, v{vT+6}
        """)
        for db in range(4):
            for qb in range(6):
                acc = QACC + (db * 6 + qb) * 4
                for r in range(4): a(f"v_mul_f32 v{acc+r}, s3, v{acc+r}")
                a(f"v_cvt_pk_bf16_f32 v{acc}, v{acc}, v{acc+1}")
                a(f"v_cvt_pk_bf16_f32 v{acc+1}, v{acc+2}, v{acc+3}")
                a(f"ds_write_b64 v{wlo if qb < 3 else whi}, {vr(acc,2)} offset:{(qb%3)*16*QP + db*32}")
        a("s_waitcnt lgkmcnt(0)\ns_barrier")
        for s in range(4):
            for qb in range(6):
                a(f"ds_read_b128 {Qf(s,qb)}, v{rlo if qb < 3 else rhi} offset:{(qb%3)*16*QP + s*64}")
        self.stamp(2)

    def epilogue(self):
        a = self.a
        if self.lstamps:
            a("s_waitcnt lgkmcnt(0)")
            for i in range(7): a(f"v_readlane_b32 s{62+2*i}, v254, {i}\ns_mov_b32 s{63+2*i}, s61")
        else:
            self.stamp(7 if self.qstamps else 3)
        t = [vT + i for i in range(6)]
        vA, vB, vC = vK, vVA, vVB
        RB = 32
        a(f"""
        v_lshlrev_b32 v{vA}, 4, v{vLANE}
        s_mul_i32 s{sT0}, s{sQH}, {VB0}
        s_mul_i32 s3, s{sKH}, 24576
        s_add_u32 s3, s3, s{sT0}
        v_add_u32 v{vB}, s3, v{vA}
        s_mul_i32 s3, s{sW}, 3072
        s_add_u32 s3, s3, {SPARE}
        v_lshlrev_b32 v{vC}, 2, v{vLANE}
        v_add_u32 v{vX}, s3, v{vC}
        """)
        for sw in ("v_permlane16_swap_b32", "v_permlane32_swap_b32"):
            for qb in range(6): a(f"v_mov_b32 v{t[qb]}, v{vL+qb}")
            for qb in range(6): a(f"{sw} v{t[qb]}, v{vL+qb}")
            for qb in range(6): a(f"v_add_f32 v{vL+qb}, v{vL+qb}, v{t[qb]}")
        for qb in range(6):
            a(f"ds_write_b32 v{vX}, v{NM+4*qb} offset:{qb*256}")
            a(f"ds_write_b32 v{vX}, v{vL+qb} offset:{1536+qb*256}")
        for j in range(24):
            a(f"ds_write_b128 v{vB}, {ar(96+4*j,4)} offset:{1024*j}")
        a(f"""
        s_xor_b32 s{sT1}, s{sKH}, 1
        s_mul_i32 s3, s{sT1}, 24576
        s_add_u32 s{sKVL}, s3, s{sT0}
        v_add_u32 v{vB}, s{sKVL}, v{vA}
        s_xor_b32 s{sT1}, s{sW}, 1
        s_mul_i32 s3, s{sT1}, 3072
        s_add_u32 s3, s3, {SPARE}
        v_add_u32 v{vX}, s3, v{vC}
        """)
        a("s_waitcnt lgkmcnt(0)\ns_barrier")
        mo, lo, g0, g1 = 224, 230, 236, 242
        for qb in range(6):
            a(f"ds_read_b32 v{mo+qb}, v{vX} offset:{qb*256}")
            a(f"ds_read_b32 v{lo+qb}, v{vX} offset:{1536+qb*256}")
        a("s_waitcnt lgkmcnt(0)")
        for j in range(24):
            a(f"ds_read_b128 {vr(RB+4*j,4)}, v{vB} offset:{1024*j}")
        a(f"""
        s_mul_i32 s3, s{sB}, 12
        s_mul_i32 s{sT0}, s{sQH}, 6
        s_add_u32 s3, s3, s{sT0}
        s_lshl_b32 s3, s3, 7
        s_lshl_b32 s{sT0}, s{sH}, 2
        s_add_u32 s3, s3, s{sT0}
        s_lshl_b32 s{sT0}, s{sKH}, 1
        s_add_u32 s3, s3, s{sT0}
        s_lshl_b32 s3, s3, 10
        v_add_u32 v{vA}, s3, v{vA}
        s_mov_b32 s24, s12
        s_mov_b32 s25, s13
        s_mov_b32 s26, {96*128*1024}
        s_mov_b32 s27, 0x20000
        """)
        for qb in range(6): a(f"v_min_f32 v{t[qb]}, v{NM+4*qb}, v{mo+qb}")
        for qb in range(6): a(f"v_sub_f32 v{g0+qb}, v{t[qb]}, v{NM+4*qb}")
        for qb in range(6): a(f"v_sub_f32 v{g1+qb}, v{t[qb]}, v{mo+qb}")
        for qb in range(6): a(f"v_exp_f32 v{g0+qb}, v{g0+qb}")
        for qb in range(6): a(f"v_exp_f32 v{g1+qb}, v{g1+qb}")
        for qb in range(6): a(f"v_mul_f32 v{t[qb]}, v{vL+qb}, v{g0+qb}")
        for qb in range(6): a(f"v_fma_f32 v{t[qb]}, v{lo+qb}, v{g1+qb}, v{t[qb]}")
        for qb in range(6): a(f"v_rcp_f32 v{t[qb]}, v{t[qb]}")
        for qb in range(6): a(f"v_mul_f32 v{g0+qb}, v{g0+qb}, v{t[qb]}")
        for qb in range(6): a(f"v_mul_f32 v{g1+qb}, v{g1+qb}, v{t[qb]}")
        OW = 128
        PK = 144
        st = "sc1" if self.fused else ""
        for i in range(2):
            for qb in range(6):
                pk = PK + (i * 6 + qb) * 4
                ow = OW + ((i * 6 + qb) & 1) * 8
                for e in range(2):
                    for r in range(4): a(f"v_accvgpr_read_b32 v{ow+4*e+r}, a{Oa(2*i+e,qb)+r}")
                for r in range(8): a(f"v_mul_f32 v{ow+r}, v{ow+r}, v{g0+qb}")
                last = (2 * i + 1) * 6 + qb
                a(f"s_waitcnt lgkmcnt({min(15, 23 - last)})")
                for e in range(2):
                    rb = RB + ((2 * i + e) * 6 + qb) * 4
                    for r in range(4): a(f"v_fma_f32 v{ow+4*e+r}, v{rb+r}, v{g1+qb}, v{ow+4*e+r}")
                for r in range(4): a(f"v_cvt_pk_bf16_f32 v{pk+r}, v{ow+2*r}, v{ow+2*r+1}")
                a(f"s_mov_b32 s3, {qb*0x20000}")
                a(f"buffer_store_dwordx4 {vr(pk,4)}, v{vA}, s[24:27], s3 offen offset:{1024*i} {st}")

    def signal(self):
        a = self.a
        lab = a.newlabel("L_nosig")
        a(f"""
        s_cmp_lg_u32 s{sW}, 0
        s_cbranch_scc1 {lab}
        s_lshl_b32 s3, s{sB}, 5
        v_mov_b32 v254, s3
        v_mov_b32 v255, 1
        s_mov_b64 exec, 1
        global_atomic_add v254, v255, s[28:29] sc1
        s_mov_b64 exec, -1
        {lab}:
        """)
    def poll(self, sBATCH):
        a = self.a
        lab = a.newlabel("L_nopoll"); lp = a.newlabel("L_poll")
        a(f"""
        s_cmp_lg_u32 s{sW}, 0
        s_cbranch_scc1 {lab}
        s_lshl_b32 s3, s{sBATCH}, 5
        s_mov_b32 s{sLOOP}, 0
        v_mov_b32 v254, s3
        {lp}:
        global_load_dword v255, v254, s[28:29] sc1
        s_add_u32 s{sLOOP}, s{sLOOP}, 1
        s_waitcnt vmcnt(0)
        v_cmp_ne_u32 vcc, 32, v255
        s_cmp_gt_u32 s{sLOOP}, 0x40000
        s_cbranch_scc1 {lab}
        s_cbranch_vccz {lab}
        s_sleep 1
        s_branch {lp}
        {lab}:
        """)

    def tail(self):
        a = self.a
        NS, nR, PDA = self.nRL, 16, self.PDA
        NST = 32
        ACC, AR = 0, 64
        assert AR + 16 * PDA <= 224
        vO = [224, 225, 226, 227]; vA = [228, 229, 230, 231]
        vWD2, vT2, vZ = 232, 233, 234
        sRT, sCT, sKW, sKO, sWOFF, sBATCH = 42, 43, 44, 48, 49, 50
        sRB = sKVL
        a(f"""
        s_and_b32 s{sT0}, s2, 7
        s_lshr_b32 s{sT1}, s2, 3
        """)
        if self.tilemap == 0:
            a(f"""
            s_mul_i32 s{sRT}, s{sT1}, 52
            s_lshr_b32 s{sRT}, s{sRT}, 8
            s_mul_i32 s{sCT}, s{sRT}, 5
            s_sub_u32 s{sCT}, s{sT1}, s{sCT}
            s_add_u32 s{sKW}, s{sRT}, s{sCT}
            s_lshl_b32 s{sKW}, s{sKW}, 1
            s_and_b32 s3, s{sT0}, 1
            s_mul_i32 s3, s3, 12
            s_add_u32 s{sRT}, s{sRT}, s3
            s_bfe_u32 s3, s{sT0}, 0x10001
            s_mul_i32 s3, s3, 6
            s_add_u32 s{sRT}, s{sRT}, s3
            s_lshr_b32 s3, s{sT0}, 2
            s_mul_i32 s3, s3, 5
            s_add_u32 s{sCT}, s{sCT}, s3
            """)
        else:
            a(f"""
            s_mul_i32 s{sRT}, s{sT1}, 26
            s_lshr_b32 s{sRT}, s{sRT}, 8
            s_mul_i32 s{sCT}, s{sRT}, 10
            s_sub_u32 s{sCT}, s{sT1}, s{sCT}
            s_mul_i32 s{sKW}, s{sRT}, 3
            s_add_u32 s{sKW}, s{sKW}, s{sCT}
            s_lshl_b32 s{sKW}, s{sKW}, 1
            s_and_b32 s{sKW}, s{sKW}, 31
            s_and_b32 s3, s{sT0}, 1
            s_mul_i32 s3, s3, 12
            s_add_u32 s{sRT}, s{sRT}, s3
            s_lshr_b32 s3, s{sT0}, 1
            s_mul_i32 s3, s3, 3
            s_add_u32 s{sRT}, s{sRT}, s3
            """)
        a(f"""
        s_mov_b32 s{sKO}, s{sKW}
        s_mul_i32 s{sBATCH}, s{sRT}, 86
        s_lshr_b32 s{sBATCH}, s{sBATCH}, 8
        s_lshl_b32 s3, s{sCT}, 7
        s_add_u32 s16, s56, s3
        s_addc_u32 s17, s57, 0
        s_sub_u32 s18, {4096*1280}, s3
        s_mov_b32 s19, 0x20000
        s_mov_b32 s96, s58
        s_mov_b32 s97, s59
        s_mov_b32 s98, {1536*1280}
        s_mov_b32 s99, 0x20000
        s_mul_i32 s{sWOFF}, s{sW}, {32*1280}
        v_lshrrev_b32 v{vA[0]}, 3, v{vLANE}
        v_and_b32 v{vA[1]}, 7, v{vLANE}
        v_bfe_u32 v{vA[2]}, v{vLANE}, 4, 2
        v_lshlrev_b32 v{vA[2]}, 1, v{vA[2]}
        v_xor_b32 v{vA[1]}, v{vA[1]}, v{vA[2]}
        v_mul_u32_u24 v{vA[0]}, 1280, v{vA[0]}
        v_lshl_add_u32 v{vWD2}, v{vA[1]}, 4, v{vA[0]}
        s_cmp_ge_u32 s{sT1}, 30
        s_cbranch_scc1 L1_notile
        """)
        vq = []
        def wo_issue(i):
            sl = i % NS
            a(f"s_mul_i32 s3, s{sKW}, {128*1280}")
            a(f"s_add_u32 m0, s{sRB}, {sl*4096}")
            a(f"s_add_u32 s3, s3, s{sWOFF}")
            for pc in range(4):
                if pc: a(f"s_add_u32 m0, m0, 1024\ns_add_u32 s3, s3, {8*1280}")
                a(f"buffer_load_dwordx4 v{vWD2}, s[16:19], s3 offen lds")
                vq.append(("W", i))
            a(f"s_add_u32 s{sKW}, s{sKW}, 1\ns_and_b32 s{sKW}, s{sKW}, 31")
        def vwait(tag):
            idx = [n for n, t in enumerate(vq) if t == tag]
            if not idx: return
            cnt = len(vq) - 1 - idx[-1]
            assert cnt <= 63
            a(f"s_waitcnt vmcnt({cnt})")
            del vq[:idx[-1] + 1]
        def wo_read(i):
            sl = i % NS
            blk = 16 * (i % nR)
            for nb in range(4):
                for u in range(2):
                    a(f"ds_read_b64_tr_b16 {ar(blk+4*nb+2*u,2)}, v{vA[nb]} offset:{sl*4096 + u*2048}")
        for i in range(NS): wo_issue(i)
        a(f"""
        v_lshrrev_b32 v{vT2}, 2, v{vLANE}
        v_lshlrev_b32 v{vZ}, 7, v{vT2}
        v_bfe_u32 v{vT2}, v{vT2}, 1, 2
        v_lshl_or_b32 v{vZ}, v{vT2}, 5, v{vZ}
        v_and_b32 v{vT2}, 3, v{vLANE}
        v_lshl_or_b32 v{vZ}, v{vT2}, 3, v{vZ}
        v_xor_b32 v{vA[1]}, 32, v{vZ}
        v_xor_b32 v{vA[2]}, 64, v{vZ}
        v_xor_b32 v{vA[3]}, 96, v{vZ}
        v_add_u32 v{vA[0]}, s{sRB}, v{vZ}
        v_add_u32 v{vA[1]}, s{sRB}, v{vA[1]}
        v_add_u32 v{vA[2]}, s{sRB}, v{vA[2]}
        v_add_u32 v{vA[3]}, s{sRB}, v{vA[3]}
        s_lshl_b32 s3, s{sRT}, 19
        s_lshl_b32 s{sT0}, s{sW}, 10
        s_add_u32 s3, s3, s{sT0}
        v_lshlrev_b32 v{vT2}, 4, v{vLANE}
        v_add_u32 v{vO[0]}, s3, v{vT2}
        v_add_u32 v{vO[1]}, 0x20000, v{vO[0]}
        v_add_u32 v{vO[2]}, 0x40000, v{vO[0]}
        v_add_u32 v{vO[3]}, 0x60000, v{vO[0]}
        s_waitcnt vmcnt({4*NS})
        s_barrier
        """)
        self.stamp(4)
        self.signal()
        for i in range(nR):
            vwait(("W", i))
            wo_read(i)
            if i >= 1:
                a("s_waitcnt lgkmcnt(8)")
                wo_issue(i - 1 + NS)
        a("s_waitcnt lgkmcnt(0)")
        wo_issue(nR - 1 + NS)
        self.stamp(5)
        self.poll(sBATCH)
        a("s_barrier")
        self.stamp(6)
        def o_issue(i):
            blk = AR + 16 * (i % PDA)
            a(f"s_lshl_b32 s3, s{sKO}, 12\ns_add_u32 s{sKO}, s{sKO}, 1\ns_and_b32 s{sKO}, s{sKO}, 31")
            for qb in range(4):
                a(f"buffer_load_dwordx4 {vr(blk+4*qb,4)}, v{vO[qb]}, s[24:27], s3 offen sc1")
                vq.append(("O", i))
        for i in range(PDA): o_issue(i)
        nextW = nR + NS
        pend = None
        def capture(fn, *args):
            n0 = len(a.lines)
            fn(*args)
            out = a.lines[n0:]
            del a.lines[n0:]
            return out
        for i in range(NST):
            blkB = 16 * (i % nR)
            blkA = AR + 16 * (i % PDA)
            vwait(("O", i))
            if i == nR + 1: a("s_waitcnt lgkmcnt(0)")
            fill = []
            if i >= 1:
                if i - 1 + nR < NST:
                    fill += capture(vwait, ("W", i - 1 + nR)) + capture(wo_read, i - 1 + nR)
                if pend is not None:
                    fill += ["    s_waitcnt lgkmcnt(8)"] + capture(wo_issue, pend); pend = None
                if i - 1 + nR < NST and nextW < NST:
                    pend = nextW; nextW += 1
                if i - 1 + PDA < NST: fill += capture(o_issue, i - 1 + PDA)
            fi = 0
            for mi in range(16):
                nb, qb = mi // 4, mi % 4
                acc = ACC + 4 * mi
                cc = "0" if i == 0 else vr(acc, 4)
                a(f"{MF} {vr(acc,4)}, {ar(blkB+4*nb,4)}, {vr(blkA+4*qb,4)}, {cc}")
                tgt = (len(fill) * (mi + 1) + 15) // 16
                while fi < tgt:
                    a.lines.append(fill[fi]); fi += 1
        assert nextW >= NST and pend is None, (nextW, pend)
        a(f"""
        s_lshl_b32 s3, s{sW}, 14
        v_add_u32 v{vA[0]}, s3, v{vT2}
        s_lshl_b32 s3, s{sW}, 12
        v_add_u32 v{vA[1]}, s3, v{vT2}
        s_nop 3
        s_barrier
        """)
        for j in range(16): a(f"ds_write_b128 v{vA[0]}, {vr(ACC+4*j,4)} offset:{1024*j}")
        a("s_waitcnt lgkmcnt(0)\ns_barrier")
        for w in range(4):
            for j in range(4):
                a(f"ds_read_b128 {vr(16*w+4*j,4)}, v{vA[1]} offset:{w*16384 + 1024*j}")
        a(f"""
        s_lshl_b32 s3, s{sRT}, 6
        s_mul_i32 s3, s3, 1280
        s_lshl_b32 s{sT1}, s{sCT}, 7
        s_add_u32 s3, s3, s{sT1}
        s_lshl_b32 s{sT0}, s{sW}, 5
        s_add_u32 s3, s3, s{sT0}
        v_and_b32 v64, 15, v{vLANE}
        v_mul_u32_u24 v64, 1280, v64
        v_lshrrev_b32 v65, 4, v{vLANE}
        v_lshl_add_u32 v64, v65, 3, v64
        v_add_u32 v64, s3, v64
        v_add_u32 v65, {16*1280}, v64
        v_add_u32 v66, {32*1280}, v64
        v_add_u32 v67, {48*1280}, v64
        """)
        for w in range(1, 4):
            a(f"s_waitcnt lgkmcnt({12-4*w})")
            for i in range(16): a(f"v_add_f32 v{i}, v{i}, v{16*w+i}")
        for qb in range(4):
            a(f"v_cvt_pk_bf16_f32 v{68+2*qb}, v{4*qb}, v{4*qb+1}")
            a(f"v_cvt_pk_bf16_f32 v{69+2*qb}, v{4*qb+2}, v{4*qb+3}")
            a(f"buffer_store_dwordx2 {vr(68+2*qb,2)}, v{64+qb}, s[96:99], 0 offen")
        if self.stamps:
            a("s_waitcnt vmcnt(0)")
            if not (self.lstamps or self.qstamps): self.stamp(7)
            self.stamp_store("L1_end")
        a("s_branch L1_end")
        a.label("L1_notile")
        a("s_waitcnt vmcnt(0)\ns_barrier")
        self.signal()

    def kernel(self):
        a = self.a
        a.begin_kernel("attn_kernel", 256, 256, LDS1, 512, accum=256)
        self.prologue()
        self.qphase()
        self.main_loop()
        self.epilogue()
        if self.stamps and (self.lstamps or self.qstamps):
            st = self.stamps; self.stamps = False
            self.stamp = lambda i: None
            self.stamps = st
        self.tail()
        a.label("L1_end")
        a("s_endpgm")
        for stub, ret, h in self.stubs:
            a.label(stub)
            a(f"s_call_b64 s[{sRET}:{sRET+1}], L_slow{h}\ns_branch {ret}")
        for h in range(2): self.slow_sub(h)

def build(name, **kw):
    g = Gen(**kw)
    g.kernel()
    open(name, "w").write(g.a.text())

def rate(name, ahead, late, **kw):
    dist = tuple(2 if n < ahead else 1 for n in range(8))
    porder = tuple(range(ahead, 8)) + tuple(range(ahead))
    pos = list(range(8 - ahead)) + [late + 2 * i for i in range(ahead)]
    build(name, dist=dist, porder=porder, dma_pos=pos, **kw)

if __name__ == "__main__":
    kw = dict(qkorder=1, early={6: 4, 7: 4, 8: 8}, PDA=6)
    rate("x_a0.s", 0, 24, **kw)
    rate("x_a1.s", 1, 24, **kw)
    rate("x_a2.s", 2, 24, **kw)
    build("x_full.s", qkorder=1, PDA=6)
```

```python
import sys, struct
from asmlib import Asm

def f32(x):
    return "0x%08x" % struct.unpack("<I", struct.pack("<f", x))[0]
def vr(b, n): return f"v[{b}:{b+n-1}]"
def ar(b, n): return f"a[{b}:{b+n-1}]"

PIT = 1056
TS = 16 * PIT
VB0 = 4 * TS
SPARE = 8 * TS
LDS1 = 163840
XP = 6 * 1024 + 32
XSZ = 4 * XP
XST = [TS, TS + XSZ, SPARE]
WST = [VB0 + TS, VB0 + 2 * TS, VB0 + 3 * TS]
QP = 288
QA1 = VB0 + 3 * TS
THR = 4096.0
CSC = 1.4426950408889634 / (128 ** 0.5)
MF = "v_mfma_f32_16x16x32_bf16"

OW, S, P, NM = 0, 96, 144, 168
QA_, KF, VF = 96, 192, 224
vL, vTS, vT = 192, 198, 201
vTSH = [198, 222]
vSUM = [207, 208]
vST, vSTS = 226, 234
vK, vVA, vVB, vDMA, vLANE = 209, 210, 211, 212, 253
vX, vW, vX2, vW2, vXD, vWD, vKW = 214, 215, 216, 217, 218, 219, 220
QACC = 0
QSET = [0, 80]
KVR = 160

def Or(j, qb):
    return vr(OW + (j * 6 + qb) * 4, 4) if j < 4 else ar(((j - 4) * 6 + qb) * 4, 4)
def Qf(s, qb): return ar(QA_ + 4 * (s * 6 + qb), 4)
def Si(kb, qb): return S + ((qb // 3) * 6 + kb * 3 + qb % 3) * 4

sW, sB, sH = 32, 33, 34
sTHR = [36, 36]
sKVO, sKVL = 40, 41
sCH, sXO, sWO, sT0, sT1 = 42, 43, 44, 45, 46
sLOOP = 47
sXB, sWB, sXS, sWS = 48, 49, 50, 51
sQH, sKH = 52, 53
sRET = 54
sTW = 37
vTW = 252
sD = [30, 31, 35]
SRD_K, SRD_V, SRD_X, SRD_W = 16, 20, 24, 96

class Gen:
    def __init__(self, stamps=False, kvstride=16384, abl=(), early=None, kvw=(8, 9), fused=True, nR=20, xB=12,
                 dma_pos=None, touch=2, qrot=1, warm=0, qng=16, qrg=12, pad=0, pvorder=0, qkorder=0, dist=(3,)*8, pre=None, porder=(0, 1, 2, 3, 4, 5, 6, 7), linear=False, korder=0, chain=False, head=12, target=2.4, gap_max=4, ds_cost=1, dma_cost=2, lstamps=False, qstamps=False, PDA=10, tilemap=0):
        self.a = Asm()
        self.__dict__.update(locals())
        if early is None: self.early = {3: 4, 4: 4, 5: 4, 6: 4, 7: 4, 8: 4}
        if pre is None: self.pre = self.dist
        self.dsq = []
        self.stubs = []
        self.src = {}

    def stamp(self, i):
        if self.stamps:
            self.a(f"s_memrealtime s[{60+2*i}:{61+2*i}]")
            self.a(f"s_memtime s[{76+2*i}:{77+2*i}]")
    def stamp_store(self, end):
        a = self.a
        a(f"""
        s_cmp_eq_u32 s{sW}, 0
        s_cbranch_scc0 {end}
        s_waitcnt lgkmcnt(0)
        s_add_u32 s14, s12, 0x10000000
        s_addc_u32 s15, s13, 0
        s_lshl_b32 s3, s2, 7
        v_mov_b32 v1, s3
        """)
        for i in range(32): a(f"v_mov_b32 v{4+i}, s{60+i}")
        a(f"v_cmp_eq_u32 vcc, 0, v{vLANE}\ns_and_saveexec_b64 s[54:55], vcc")
        for i in range(8): a(f"global_store_dwordx4 v1, v[{4+4*i}:{7+4*i}], s[14:15] offset:{16*i}")

    def ds(self, text, tag):
        self.a(text); self.dsq.append(tag)
    def need(self, tag):
        idx = [i for i, t in enumerate(self.dsq) if t == tag]
        if not idx: return
        cnt = min(len(self.dsq) - 1 - idx[-1], 15)
        self.a(f"s_waitcnt lgkmcnt({cnt})")
        self.dsq = self.dsq[len(self.dsq) - cnt:]

    def kv_piece(self, t, n, reg=None, k=None):
        isv, j = n & 1, n >> 1
        srd = SRD_V if isv else SRD_K
        off = f" offset:{j*256}" if j else ""
        pre = ""
        if k is None:
            pre = f"s_add_u32 s{sT1}, s{sKVO}, {t*self.kvstride}\n"
            so = sT1
        else:
            so = sD[t - k - 1]
        if reg is None:
            pre += f"s_add_u32 m0, s{sKVL}, {isv*VB0 + (t%4)*TS + j*(PIT-256)}"
            post = f"buffer_load_dwordx4 v{vDMA}, s[{srd}:{srd+3}], s{so} offen{off} nt lds"
        else:
            post = f"buffer_load_dwordx4 {ar(reg+4*n,4)}, v{vDMA}, s[{srd}:{srd+3}], s{so} offen{off} nt"
        return pre.rstrip("\n"), post
    def dist_of(self, n, k):
        return self.dist[n]
    def main_pieces(self, k):
        out = []
        for n in self.porder:
            t = k + self.dist[n]
            if t >= self.pre[n] and (k <= 29 or t <= 31):
                out.append((n, t))
        return out
    def warm_on(self, k): return self.warm and 1 <= k <= 29
    def warm_piece(self):
        pre = f"s_mov_b32 m0, {LDS1-1024}"
        post = f"""buffer_load_dwordx4 v{vTW}, s[92:95], s{sTW} offen lds
        s_add_u32 s39, s39, 1
        s_cmp_eq_u32 s39, 5
        s_cselect_b32 s3, {32*1280-4*128}, s{sT1}
        s_cselect_b32 s39, 0, s39
        s_add_u32 s{sTW}, s{sTW}, s3"""
        return pre, post
    def main_wait(self, k):
        order = []
        for kk in range(0, k):
            order += [t for n, t in self.main_pieces(kk)]
            if self.warm_on(kk): order.append(999)
        idx = [i for i, t in enumerate(order) if t <= k]
        return len(order) - 1 - idx[-1] if idx else len(order)
    def q_pieces(self, c):
        xb, wb = XST[(c + 2) % 3], WST[(c + 2) % 3]
        head = f"""s_lshl_b32 s{sXO}, s{sCH}, 7
        s_add_u32 s{sXO}, s{sXO}, s{sXS}
        s_lshl_b32 s{sWO}, s{sCH}, 19
        s_add_u32 s{sWO}, s{sWO}, s{sWS}
        s_add_u32 s{sCH}, s{sCH}, 1
        s_cmp_ge_u32 s{sCH}, 10
        s_cselect_b32 s{sCH}, 0, s{sCH}
        """
        W = f"s[{SRD_W}:{SRD_W+3}]"; X = f"s[{SRD_X}:{SRD_X+3}]"
        out = []
        for e in range(4):
            pre = (head if e == 0 else f"s_add_u32 s{sWO}, s{sWO}, 8192\n") + f"s_add_u32 m0, s{sWB}, {wb + e*PIT}"
            out.append((pre, f"buffer_load_dwordx4 v{vWD}, {W}, s{sWO} offen lds"))
        for u in range(6):
            pre = (f"s_add_u32 s{sXO}, s{sXO}, {32*1280}\n" if u else "") + f"s_add_u32 m0, s{sXB}, {xb + u*1024}"
            out.append((pre, f"buffer_load_dwordx4 v{vXD}, {X}, s{sXO} offen lds"))
        return out
    def touch_pieces(self):
        return [(f"s_mov_b32 m0, {LDS1-1024}", f"buffer_load_dwordx4 v{vTW}, s[92:95], s{sTW} offen lds\ns_add_u32 s{sTW}, s{sTW}, 1024") for n in range(5)]
    def emit_piece(self, pc):
        self.a((pc[0] + "\ns_nop 0\n" if pc[0] else "") + pc[1])

    def kread(self, slot, f):
        if "nolds" in self.abl: return
        kb, s = f >> 2, f & 3
        self.ds(f"ds_read_b128 {ar(KF+4*f,4)}, v{vK} offset:{slot*TS + kb*256 + s*64}", ("K", f))
    def vread(self, slot, j):
        if "nolds" in self.abl: return
        ad = vVA if j < 4 else vVB
        for u in range(2):
            self.ds(f"ds_read_b64_tr_b16 {ar(VF+4*j+2*u,2)}, v{ad} offset:{slot*TS + u*256 + j*32}", ("V", j))

    def sm_stream(self, h, T=vT, check=True):
        out = []
        if "nosm" in self.abl: return out
        TSV = vTSH[h]
        pairs = [(kb, q3, e) for kb in range(2) for q3 in range(3) for e in range(2)]
        def tmp(i): return T + (i % 3) * 2
        def ex(i):
            kb, q3, e = pairs[i]
            r = Si(kb, 3 * h + q3) + 2 * e
            self.src[f"v_exp_f32 v{tmp(i)}, v{r}"] = (h, kb, q3)
            out.append((2, f"v_exp_f32 v{tmp(i)}, v{r}"))
            out.append((2, f"v_exp_f32 v{tmp(i)+1}, v{r+1}"))
        ex(0)
        late = []
        for i, (kb, q3, e) in enumerate(pairs):
            if i + 1 < len(pairs): ex(i + 1)
            else: out.append((1, f"v_add_f32 v{vSUM[h]}, v{TSV}, v{TSV+1}"))
            t = tmp(i)
            if kb == 0 and e == 0:
                out.append((1, f"v_add_f32 v{TSV+q3}, v{t}, v{t+1}"))
            elif "noadd" not in self.abl:
                out.append((1, f"v_add_f32 v{TSV+q3}, v{TSV+q3}, v{t}"))
                out.append((1, f"v_add_f32 v{TSV+q3}, v{TSV+q3}, v{t+1}"))
            cv = (1, f"v_cvt_pk_bf16_f32 v{P+4*(3*h+q3)+2*kb+e}, v{t}, v{t+1}")
            if i >= len(pairs) - 1: late.append(cv)
            else: out.append(cv)
        if check:
            out.append((1, f"v_add_f32 v{vSUM[h]}, v{vSUM[h]}, v{TSV+2}"))
            out.append((1, f"v_cmp_lt_f32 vcc, s{sTHR[h]}, v{vSUM[h]}"))
        out += late
        return out
    def gated(self, items, G, start=0):
        return [(c, t, self.src.get(t, 0)) for c, t in items]
    def ninstr(self):
        return sum(1 for l in self.a.lines[-40:] if not l.strip().endswith(":") ) + 0
    def gate_ok(self, key):
        if key == 0: return True
        if key not in self.ready: return False
        n = sum(1 for l in self.a.lines[self.ready[key]:] if l.strip() and not l.strip().endswith(":"))
        return n >= 8
    def first_stream(self, h):
        out = []
        m = [vST, vST + 1, vST + 2]; n = [vST + 3, vST + 4, vST + 5]
        def add(t, key=0): out.append((1, t, key))
        for q3 in range(3):
            s0, s1 = Si(0, 3*h+q3), Si(1, 3*h+q3)
            add(f"v_max3_f32 v{m[q3]}, v{s0}, v{s0+1}, v{s0+2}", (h, 0, q3))
        for q3 in range(3):
            s0, s1 = Si(0, 3*h+q3), Si(1, 3*h+q3)
            add(f"v_max3_f32 v{m[q3]}, v{m[q3]}, v{s0+3}, v{s1}", (h, 1, q3))
            add(f"v_max3_f32 v{m[q3]}, v{m[q3]}, v{s1+1}, v{s1+2}")
            add(f"v_max_f32 v{m[q3]}, v{m[q3]}, v{s1+3}")
        for sw in ("v_permlane16_swap_b32", "v_permlane32_swap_b32"):
            for q3 in range(3): add(f"v_mov_b32 v{n[q3]}, v{m[q3]}")
            add("s_nop 1")
            for q3 in range(3): add(f"{sw} v{m[q3]}, v{n[q3]}")
            for q3 in range(3): add(f"v_max_f32 v{m[q3]}, v{m[q3]}, v{n[q3]}")
        for q3 in range(3):
            qb = 3 * h + q3
            for kb in range(2):
                for r in range(4): add(f"v_sub_f32 v{Si(kb,qb)+r}, v{Si(kb,qb)+r}, v{m[q3]}")
            for r in range(4): add(f"v_sub_f32 v{NM+4*qb+r}, 0, v{m[q3]}")
        return out
    def check_branch(self, h):
        a = self.a
        if "nosm" in self.abl: return []
        if not self.abl:
            stub = a.newlabel("L_stub"); ret = a.newlabel("L_ret")
            self.stubs.append((stub, ret, h))
            a(f"s_cbranch_vccnz {stub}\n{ret}:")
        return [(1, f"v_add_f32 v{vL+3*h+q3}, v{vL+3*h+q3}, v{vTSH[h]+q3}") for q3 in range(3)]

    def slow_sub(self, h):
        a = self.a
        a.label(f"L_slow{h}")
        m = [vST, vST + 1, vST + 2]; n = [vST + 3, vST + 4, vST + 5]
        for q3 in range(3):
            s0, s1 = Si(0, 3*h+q3), Si(1, 3*h+q3)
            a(f"v_max3_f32 v{m[q3]}, v{s0}, v{s0+1}, v{s0+2}")
            a(f"v_max3_f32 v{m[q3]}, v{m[q3]}, v{s0+3}, v{s1}")
            a(f"v_max3_f32 v{m[q3]}, v{m[q3]}, v{s1+1}, v{s1+2}")
            a(f"v_max_f32 v{m[q3]}, v{m[q3]}, v{s1+3}")
        for sw in ("v_permlane16_swap_b32", "v_permlane32_swap_b32"):
            for q3 in range(3): a(f"v_mov_b32 v{n[q3]}, v{m[q3]}")
            a("s_nop 1")
            for q3 in range(3): a(f"{sw} v{m[q3]}, v{n[q3]}")
            for q3 in range(3): a(f"v_max_f32 v{m[q3]}, v{m[q3]}, v{n[q3]}")
        for q3 in range(3): a(f"v_max_f32 v{m[q3]}, 0, v{m[q3]}")
        for q3 in range(3): a(f"v_exp_f32 v{n[q3]}, -v{m[q3]}")
        for q3 in range(3):
            qb = 3 * h + q3
            for kb in range(2):
                for r in range(4): a(f"v_sub_f32 v{Si(kb,qb)+r}, v{Si(kb,qb)+r}, v{m[q3]}")
            for r in range(4): a(f"v_sub_f32 v{NM+4*qb+r}, v{NM+4*qb+r}, v{m[q3]}")
            a(f"v_mul_f32 v{vL+qb}, v{vL+qb}, v{n[q3]}")
            for j in range(4):
                for r in range(4): a(f"v_mul_f32 v{OW+(j*6+qb)*4+r}, v{OW+(j*6+qb)*4+r}, v{n[q3]}")
            for j in range(4):
                t = [vSTS, vSTS + 1, vSTS + 2, vSTS + 3]
                for r in range(4): a(f"v_accvgpr_read_b32 v{t[r]}, a{(j*6+qb)*4+r}")
                for r in range(4): a(f"v_mul_f32 v{t[r]}, v{t[r]}, v{n[q3]}")
                for r in range(4): a(f"v_accvgpr_write_b32 a{(j*6+qb)*4+r}, v{t[r]}")
        for c, t in self.sm_stream(h, T=vST, check=False): a(t)
        a(f"s_nop 1\ns_setpc_b64 s[{sRET}:{sRET+1}]")

    def mk(self, kind, h, items, **kw):
        return dict(kind=kind, h=h, items=items, **kw)
    def pv_groups(self, h, first=False, after=None, js=range(8)):
        if self.pvorder == 0:
            return [self.mk("pv", h, [(j, q3) for q3 in range(3)], first=first, after=[(lambda j=j: after(j))] if after else []) for j in js]
        seq = [(j, q3) for q3 in range(3) for j in range(8)]
        out = []
        for g in range(8):
            it = seq[3 * g:3 * g + 3]
            aft = []
            if after:
                if self.pv_after_k:
                    aft = [(lambda j=g: after(j))]
                else:
                    aft = [(lambda j=j: after(j)) for j, q3 in it if q3 == 2]
            out.append(self.mk("pv", h, it, first=first, after=aft))
        return out
    def qk_groups(self, h):
        if self.qkorder == 0:
            return [self.mk("qk", h, [(f, q3) for q3 in range(3)]) for f in range(8)]
        seq = [(4 * kb + s, q3) for kb in range(2) for q3 in range(3) for s in range(4)]
        return [self.mk("qk", h, seq[3 * g:3 * g + 3]) for g in range(8)]

    def run(self, groups, vq, target, keep=False):
        a = self.a
        cum = 0.0; m = 0
        if not keep: self.ready = {}
        for gi, g in enumerate(groups):
            kind, h = g["kind"], g["h"]
            if g.get("check") is not None:
                vq[0:0] = [(c, t, 0) for c, t in self.check_branch(g["check"])]
                cum += 1
            dma = g.get("dma")
            if self.pad: a(f"s_nop {self.pad-1}")
            if dma and dma[0]: a(dma[0]); cum += 1
            for n, (j, q3) in enumerate(g["items"]):
                qb = 3 * h + q3
                n0 = len(a.lines)
                self.need(("V" if kind == "pv" else "K", j))
                cum += len(a.lines) - n0
                if kind == "pv":
                    c = "0" if g.get("first") else Or(j, qb)
                    a(f"{MF} {Or(j,qb)}, {ar(VF+4*j,4)}, {vr(P+4*qb,4)}, {c}")
                    self.ready[("pv", j, qb)] = len(a.lines)
                else:
                    kb, s = j >> 2, j & 3
                    c = vr(NM + 4 * qb, 4) if s == 0 else vr(Si(kb, qb), 4)
                    a(f"{MF} {vr(Si(kb,qb),4)}, {ar(KF+4*j,4)}, {Qf(s,qb)}, {c}")
                    if s == 3: self.ready[(h, kb, q3)] = len(a.lines)
                cur = 0
                if n == 0 and dma:
                    a(dma[1]); cur += self.dma_cost
                if n == 2:
                    n0 = len(a.lines)
                    for fn in g.get("after", []): fn()
                    cur += (len(a.lines) - n0) * self.ds_cost
                m += 1
                while vq and self.gate_ok(vq[0][2]) and (cur < 2 or cum + cur + vq[0][0] <= target * m + 0.5):
                    if cur >= 2 and cur + vq[0][0] > self.gap_max: break
                    if cur == 1 and vq[0][0] == 2 and cum + cur + 2 > target * m + 1.5: break
                    c, t, _ = vq.pop(0)
                    a(t); cur += c
                cum += max(cur, 0)

    def interval(self, k):
        a = self.a
        slot = k % 4
        H = self.head
        w = self.main_wait(k) if k <= 30 else 0
        if 2 <= k <= 5:
            w = min(self.main_wait(k + 4 * i) for i in range(7))
        pcs = [self.kv_piece(t, n, k=k) for n, t in self.main_pieces(k)]
        if 2 <= k <= 5: assert len(pcs) == 8
        if "nodma" in self.abl: pcs = []
        pos = self.dma_pos or [1, 5, 9, 13, 17, 21, 25, 29]
        lead = []
        if k >= 1: lead = [(c, t, 0) for c, t in self.check_branch(0)]
        for d in sorted(set(self.dist)):
            if k == 0: a(f"s_add_u32 s{sD[d-1]}, s{sKVO}, {d*self.kvstride}")
            else: a(f"s_add_u32 s{sD[d-1]}, s{sD[d-1]}, {self.kvstride}")
        if "nobar" in self.abl and 0 < k < 31: a(f"s_waitcnt vmcnt({w}) lgkmcnt(0)")
        else: a(f"s_waitcnt vmcnt({w}) lgkmcnt(0)\ns_barrier")
        self.dsq = []
        smA = self.sm_stream(0); smB = self.sm_stream(1)
        if k == 0:
            for f in range(8): self.kread(slot, f)
            for j in range(8): self.vread(slot, j)
            groups = self.qk_groups(0) + self.qk_groups(1)
            for i, pc in enumerate(pcs): groups[i]["dma"] = pc
            vq = self.first_stream(0) + [(c, t, 0) for c, t in smA] + self.first_stream(1) + [(c, t, 0) for c, t in smB[:H]]
            self.run(groups, vq, 3.0)
        else:
            self.pv_after_k = True
            groups = self.pv_groups(0, k == 1, lambda j: self.kread(slot, j)) + self.qk_groups(0)
            self.pv_after_k = False
            groups += self.pv_groups(1, k == 1, lambda j: self.vread(slot, j)) + self.qk_groups(1)
            groups[16]["check"] = 1
            for i, pc in enumerate(pcs): groups[pos[i]]["dma"] = pc
            if self.warm_on(k): groups[self.warm]["dma"] = self.warm_piece()
            vq = lead + [(c, t, 0) for c, t in smB[H:]] + self.gated(smA, 24) + self.gated(smB[:H], 72)
            nB = len(lead) + len(smB) - H
            self.run(groups, vq, self.target)
        for c, t, key in vq:
            if not self.gate_ok(key): a("s_nop 7")
            a(t)

    def main_loop(self):
        a = self.a
        if self.warm:
            a(f"""
            s_lshr_b32 s3, s2, 3
            s_mul_i32 s{sTW}, s3, {128*1280}
            s_mul_i32 s3, s{sW}, {8*1280}
            s_add_u32 s{sTW}, s{sTW}, s3
            s_bfe_u32 s3, s2, 0x10002
            s_mul_i32 s3, s3, 640
            s_add_u32 s{sTW}, s{sTW}, s3
            s_mov_b32 s39, 0
            s_movk_i32 s{sT1}, 128
            v_lshrrev_b32 v{vTW}, 3, v{vLANE}
            v_mul_u32_u24 v{vTW}, 1280, v{vTW}
            v_and_b32 v{vT}, 7, v{vLANE}
            v_lshl_add_u32 v{vTW}, v{vT}, 4, v{vTW}
            """)
        self.interval(0)
        self.interval(1)
        a(f"s_mov_b32 s{sLOOP}, 0")
        a.label("L1_loop")
        for k in range(2, 6): self.interval(k)
        if self.lstamps:
            a(f"s_memrealtime s[100:101]\ns_mov_b32 m0, s{sLOOP}\ns_waitcnt lgkmcnt(0)\nv_writelane_b32 v254, s100, m0")
        a(f"s_add_u32 s{sLOOP}, s{sLOOP}, 1\ns_cmp_lt_u32 s{sLOOP}, 7\ns_cbranch_scc1 L1_loop")
        self.interval(30)
        self.interval(31)
        if self.lstamps:
            a("s_waitcnt lgkmcnt(0)")
            for i in range(7): a(f"v_readlane_b32 s{62+2*i}, v254, {i}\ns_mov_b32 s{63+2*i}, s61")
        self.endgame()

    def flush(self, vq):
        for c, t, key in vq:
            if not self.gate_ok(key): self.a("s_nop 7")
            self.a(t)
        del vq[:]

    def endgame(self):
        a = self.a
        js = [4, 5, 6, 7, 0, 1, 2, 3]
        ML = LDS1 - 4096
        vA, vB, vC = vX, vW, vX2
        mo, lo, g0, g1 = 224, 230, 236, 244
        t = [vST + 0, vST + 1, vST + 2, vST + 3, vST + 4, vST + 5]
        t = [201, 202, 203, 204, 205, 206]
        lead = [(c, tx, 0) for c, tx in self.check_branch(0)]
        setup = f"""v_lshlrev_b32 v{vA}, 4, v{vLANE}
        s_mul_i32 s{sT0}, s{sQH}, {VB0}
        s_mul_i32 s3, s{sKH}, 24576
        s_add_u32 s3, s3, s{sT0}
        v_add_u32 v{vB}, s3, v{vA}
        s_lshl_b32 s3, s{sW}, 10
        s_add_u32 s3, s3, {ML}
        v_and_b32 v{vC}, 15, v{vLANE}
        v_lshlrev_b32 v{vC}, 2, v{vC}
        v_add_u32 v{vC}, s3, v{vC}
        v_xor_b32 v{vW2}, 0x400, v{vC}
        s_xor_b32 s{sT1}, s{sKH}, 1
        s_mul_i32 s3, s{sT1}, 24576
        s_add_u32 s{sKVL}, s3, s{sT0}
        v_add_u32 v{vXD}, s{sKVL}, v{vA}
        s_mul_i32 s3, s{sB}, 12
        s_mul_i32 s{sT0}, s{sQH}, 6
        s_add_u32 s3, s3, s{sT0}
        s_lshl_b32 s3, s3, 7
        s_lshl_b32 s{sT0}, s{sH}, 2
        s_add_u32 s3, s3, s{sT0}
        s_lshl_b32 s{sT0}, s{sKH}, 1
        s_add_u32 s3, s3, s{sT0}
        s_lshl_b32 s3, s3, 10
        v_add_u32 v{vA}, s3, v{vA}
        s_mov_b32 s24, s12
        s_mov_b32 s25, s13
        s_mov_b32 s26, {96*128*1024}
        s_mov_b32 s27, 0x20000""".split("\n")
        vq = lead + [(c, tx, 0) for c, tx in self.sm_stream(1)[self.head:]] + [(1, l.strip(), 0) for l in setup + self.tail_setup()]
        self.run(self.pv_groups(0, js=js), vq, 4.5)
        self.flush(vq)
        for c, tx in self.check_branch(1): a(tx)
        def W(qb, jj): return (1, f"ds_write_b128 v{vB}, {ar((jj*6+qb)*4,4)} offset:{1024*(jj*6+qb)}", ("pv", jj + 4, qb))
        vq = []
        for sw in ("v_permlane16_swap_b32", "v_permlane32_swap_b32"):
            vq += [(1, f"v_mov_b32 v{t[qb]}, v{vL+qb}", 0) for qb in range(6)]
            vq += [(1, f"{sw} v{t[qb]}, v{vL+qb}", 0) for qb in range(6)]
            vq += [(1, f"v_add_f32 v{vL+qb}, v{vL+qb}, v{t[qb]}", 0) for qb in range(6)]
        for qb in range(6):
            vq += [(1, f"ds_write_b32 v{vC}, v{NM+4*qb} offset:{qb*64}", 0), (1, f"ds_write_b32 v{vC}, v{vL+qb} offset:{384+qb*64}", 0)]
        vq += [(1, "s_waitcnt lgkmcnt(0)", 0), (1, "s_barrier", 0)]
        for qb in range(6):
            vq += [(1, f"ds_read_b32 v{mo+qb}, v{vW2} offset:{qb*64}", 0), (1, f"ds_read_b32 v{lo+qb}, v{vW2} offset:{384+qb*64}", 0)]
        vq += [W(qb, jj) for jj in range(4) for qb in range(3)]
        vq += [(1, "s_waitcnt lgkmcnt(12)", 0)]
        for fn in (lambda qb: f"v_min_f32 v{t[qb]}, v{NM+4*qb}, v{mo+qb}",
                   lambda qb: f"v_sub_f32 v{g0+qb}, v{t[qb]}, v{NM+4*qb}",
                   lambda qb: f"v_sub_f32 v{g1+qb}, v{t[qb]}, v{mo+qb}",
                   lambda qb: f"v_exp_f32 v{g0+qb}, v{g0+qb}",
                   lambda qb: f"v_exp_f32 v{g1+qb}, v{g1+qb}",
                   lambda qb: f"v_mul_f32 v{t[qb]}, v{vL+qb}, v{g0+qb}",
                   lambda qb: f"v_fma_f32 v{t[qb]}, v{lo+qb}, v{g1+qb}, v{t[qb]}",
                   lambda qb: f"v_rcp_f32 v{t[qb]}, v{t[qb]}",
                   lambda qb: f"v_mul_f32 v{g0+qb}, v{g0+qb}, v{t[qb]}",
                   lambda qb: f"v_mul_f32 v{g1+qb}, v{g1+qb}, v{t[qb]}"):
            vq += [(1, fn(qb), 0) for qb in range(6)]
        vq += [W(qb, jj) for jj in range(4) for qb in range(3, 6)]
        self.dsq = []
        a("s_waitcnt lgkmcnt(0)")
        self.gap_max_save, self.gap_max = self.gap_max, 8
        self.run(self.pv_groups(1, js=js), vq, 6.0, keep=True)
        self.gap_max = self.gap_max_save
        self.flush(vq)
        self.stamp(7 if self.qstamps else 3) if not self.lstamps else None
        def pair(g, qb):
            r = g + qb
            return (vr(r & ~1, 2), 1 if r & 1 else 0)
        order = [(jj, qb) for qb in range(3) for jj in range(4)] + [(jj, qb) for qb in range(3, 6) for jj in range(4)]
        for jj, qb in order:
            if not self.gate_ok(("pv", jj, qb)): a("s_nop 7")
            pr, sel = pair(g0, qb)
            for e in range(2):
                r = OW + (jj * 6 + qb) * 4 + 2 * e
                a(f"v_pk_mul_f32 {vr(r,2)}, {vr(r,2)}, {pr} op_sel:[0,{sel}] op_sel_hi:[1,{sel}]")
        a("s_waitcnt lgkmcnt(0)\ns_barrier")
        RB = 96
        rd = [(jj, qb) for i in range(2) for qb in range(6) for jj in (2 * i, 2 * i + 1)]
        for jj, qb in rd:
            a(f"ds_read_b128 {vr(RB+(jj*6+qb)*4,4)}, v{vXD} offset:{1024*(jj*6+qb)}")
        self.tail_early()
        st = "sc1"
        n = 0
        for i in range(2):
            for qb in range(6):
                n += 2
                a(f"s_waitcnt lgkmcnt({min(15, 24 - n)})")
                pr, sel = pair(g1, qb)
                for jj in (2 * i, 2 * i + 1):
                    for e in range(2):
                        r = OW + (jj * 6 + qb) * 4 + 2 * e
                        rb = RB + (jj * 6 + qb) * 4 + 2 * e
                        a(f"v_pk_fma_f32 {vr(r,2)}, {vr(rb,2)}, {pr}, {vr(r,2)} op_sel:[0,{sel},0] op_sel_hi:[1,{sel},1]")
                pk = RB + (2 * i * 6 + qb) * 4
                o0, o1 = OW + (2 * i * 6 + qb) * 4, OW + ((2 * i + 1) * 6 + qb) * 4
                a(f"v_cvt_pk_bf16_f32 v{pk}, v{o0}, v{o0+1}")
                a(f"v_cvt_pk_bf16_f32 v{pk+1}, v{o0+2}, v{o0+3}")
                a(f"v_cvt_pk_bf16_f32 v{pk+2}, v{o1}, v{o1+1}")
                a(f"v_cvt_pk_bf16_f32 v{pk+3}, v{o1+2}, v{o1+3}")
                a(f"s_mov_b32 s3, {qb*0x20000}")
                a(f"buffer_store_dwordx4 {vr(pk,4)}, v{vA}, s[24:27], s3 offen offset:{1024*i} {st}")

    def rot_code(self):
        if self.qrot == 0: return f"s_mov_b32 s{sCH}, 0"
        if self.qrot == 1:
            return f"""s_and_b32 s{sCH}, s{sH}, 7
            s_and_b32 s3, s{sB}, 3
            s_lshl_b32 s3, s3, 1
            s_add_u32 s{sCH}, s{sCH}, s3
            s_cmp_ge_u32 s{sCH}, 10
            s_cselect_b32 s3, 10, 0
            s_sub_u32 s{sCH}, s{sCH}, s3"""
        if self.qrot == 2:
            return f"""s_xor_b32 s{sCH}, s{sH}, s{sB}
            s_and_b32 s{sCH}, s{sCH}, 1
            s_mul_i32 s{sCH}, s{sCH}, 5"""
        if self.qrot == 3:
            return f"""s_add_u32 s{sCH}, s{sH}, s{sB}
            s_and_b32 s{sCH}, s{sCH}, 3
            s_mul_i32 s{sCH}, s{sCH}, 3"""
        if self.qrot == 4:
            return f"""s_add_u32 s{sCH}, s{sH}, s{sB}
            s_and_b32 s{sCH}, s{sCH}, 3"""
    def prologue(self):
        a = self.a
        a("s_cmp_ge_u32 s2, 256\ns_cbranch_scc1 L1_end")
        self.stamp(0)
        a(f"""
        s_load_dwordx8 s[4:11], s[0:1], 0
        s_load_dwordx2 s[12:13], s[0:1], 56
        s_load_dwordx4 s[56:59], s[0:1], 32
        s_load_dwordx2 s[28:29], s[0:1], 48
        v_lshrrev_b32 v1, 6, v0
        v_and_b32 v{vLANE}, 63, v0
        s_and_b32 s{sT0}, s2, 7
        v_readfirstlane_b32 s{sW}, v1
        s_lshr_b32 s{sT1}, s2, 3
        s_and_b32 s{sB}, s{sT0}, 1
        s_lshl_b32 s{sB}, s{sB}, 2
        s_and_b32 s3, s{sT1}, 3
        s_or_b32 s{sB}, s{sB}, s3
        s_lshr_b32 s{sH}, s{sT0}, 1
        s_lshl_b32 s{sH}, s{sH}, 3
        s_lshr_b32 s3, s{sT1}, 2
        s_or_b32 s{sH}, s{sH}, s3
        {self.rot_code()}
        v_lshrrev_b32 v1, 4, v{vLANE}             ; g
        v_and_b32 v2, 15, v{vLANE}                ; q
        v_lshlrev_b32 v3, 12, v1
        v_lshl_or_b32 v{vDMA}, v2, 4, v3
        v_lshlrev_b32 v3, 17, v1
        v_lshl_or_b32 v{vWD}, v2, 4, v3
        v_lshrrev_b32 v3, 3, v{vLANE}
        v_and_b32 v4, 7, v{vLANE}
        v_mul_u32_u24 v3, {4*1280}, v3
        v_lshl_add_u32 v{vXD}, v4, 4, v3
        s_lshr_b32 s{sQH}, s{sW}, 1
        s_and_b32 s{sKH}, s{sW}, 1
        s_mul_i32 s{sXB}, s{sW}, {XP}
        s_mul_i32 s{sXS}, s{sW}, 1280
        s_mul_i32 s{sWB}, s{sW}, {4*PIT}
        s_lshl_b32 s{sWS}, s{sKH}, 3
        s_lshl_b32 s3, s{sQH}, 2
        s_or_b32 s{sWS}, s{sWS}, s3
        s_lshl_b32 s{sWS}, s{sWS}, 13
        s_lshl_b32 s{sKVO}, s{sW}, 10
        s_mov_b32 s{sKVL}, s{sWB}
        s_lshl_b32 s{sT0}, s{sB}, 5
        s_add_u32 s{sT0}, s{sT0}, s{sH}
        s_lshl_b32 s{sT1}, s{sT0}, 19
        s_lshr_b32 s{sT0}, s{sT0}, 13
        s_waitcnt lgkmcnt(0)
        s_add_u32 s{SRD_K}, s6, s{sT1}
        s_addc_u32 s{SRD_K+1}, s7, s{sT0}
        s_mov_b32 s{SRD_K+2}, 524288
        s_mov_b32 s{SRD_K+3}, 0x20000
        s_add_u32 s{SRD_V}, s8, s{sT1}
        s_addc_u32 s{SRD_V+1}, s9, s{sT0}
        s_mov_b32 s{SRD_V+2}, 524288
        s_mov_b32 s{SRD_V+3}, 0x20000
        s_mul_i32 s{sT0}, s{sB}, 245760
        s_add_u32 s{SRD_X}, s4, s{sT0}
        s_addc_u32 s{SRD_X+1}, s5, 0
        s_mov_b32 s{SRD_X+2}, 245760
        s_mov_b32 s{SRD_X+3}, 0x20000
        s_lshl_b32 s{sT0}, s{sH}, 8
        s_add_u32 s{SRD_W}, s10, s{sT0}
        s_addc_u32 s{SRD_W+1}, s11, 0
        s_sub_u32 s{SRD_W+2}, {640*8192}, s{sT0}
        s_mov_b32 s{SRD_W+3}, 0x20000
        """)
        a(f"""
        s_mov_b32 s92, s56
        s_mov_b32 s93, s57
        s_mov_b32 s94, {4096*1280}
        s_mov_b32 s95, 0x20000
        s_mul_i32 s{sTW}, s2, 20480
        s_mul_i32 s{sT1}, s{sW}, 5120
        s_add_u32 s{sTW}, s{sTW}, s{sT1}
        v_lshlrev_b32 v{vTW}, 4, v{vLANE}
        """)
        def touch():
            for pc in self.touch_pieces(): self.emit_piece(pc)
        if self.touch == 1: touch()
        for c in range(3):
            for pc in self.q_pieces(c): self.emit_piece(pc)
        if self.touch == 2: touch()
        a(f"""
        v_bfe_u32 v3, v{vLANE}, 2, 2              ; r
        v_and_b32 v4, 3, v{vLANE}                 ; c
        v_mul_u32_u24 v5, {PIT}, v2
        v_lshl_add_u32 v5, v1, 4, v5
        s_lshl_b32 s3, s{sKH}, 9
        v_add_u32 v{vK}, s3, v5
        v_lshl_add_u32 v5, v1, 2, v3
        v_mul_u32_u24 v5, {PIT}, v5
        v_lshl_add_u32 v5, v4, 3, v5
        s_mul_i32 s3, s{sKH}, {512+128}
        s_add_u32 s3, s3, {VB0}
        v_add_u32 v{vVA}, s3, v5
        s_mul_i32 s3, s{sKH}, {512-128}
        s_add_u32 s3, s3, {VB0}
        v_add_u32 v{vVB}, s3, v5
        v_mul_u32_u24 v5, {XP}, v4
        v_lshl_add_u32 v5, v3, 7, v5
        v_lshl_add_u32 v5, v1, 4, v5
        s_mul_i32 s3, s{sQH}, 3072
        v_add_u32 v{vX}, s3, v5
        v_and_b32 v5, 1, v1
        v_lshl_add_u32 v5, v5, 2, v3
        v_mul_u32_u24 v5, {PIT}, v5
        v_lshrrev_b32 v6, 1, v1
        v_lshl_add_u32 v5, v6, 8, v5
        v_lshl_add_u32 v5, v4, 3, v5
        s_lshl_b32 s3, s{sKH}, 7
        v_add_u32 v{vW}, s3, v5
        v_lshlrev_b32 v{vKW}, 4, v{vLANE}
        v_add_u32 v{vKW}, s{sKVL}, v{vKW}
        v_add_u32 v{vKW+1}, {VB0}, v{vKW}
        s_mov_b32 s{sTHR[0]}, {f32(THR)}
        """)
        for i in range(24): a(f"v_mov_b32 v{NM+i}, 0")
        for i in range(6): a(f"v_mov_b32 v{vL+i}, 0")

    def q_pack_setup(self):
        rlo, rhi, wlo, whi = vT, vT + 1, vT + 2, vT + 3
        self.a(f"""
        s_mul_i32 s{sT0}, s{sQH}, {96*QP}
        s_add_u32 s{sT0}, s{sT0}, {QA1}
        s_cmp_eq_u32 s{sQH}, 0
        s_mov_b32 s{sT1}, {3*TS}
        s_cselect_b32 s{sT1}, {QA1 + 48*QP}, s{sT1}
        v_and_b32 v{vT+4}, 15, v{vLANE}
        v_mul_u32_u24 v{vT+4}, {QP}, v{vT+4}
        v_lshrrev_b32 v{vT+5}, 4, v{vLANE}
        v_lshl_add_u32 v{vT+6}, v{vT+5}, 4, v{vT+4}
        v_add_u32 v{rlo}, s{sT0}, v{vT+6}
        v_add_u32 v{rhi}, s{sT1}, v{vT+6}
        v_lshl_add_u32 v{vT+6}, v{vT+5}, 3, v{vT+4}
        s_lshl_b32 s{sXO}, s{sKH}, 7
        v_add_u32 v{vT+6}, s{sXO}, v{vT+6}
        v_add_u32 v{wlo}, s{sT0}, v{vT+6}
        v_add_u32 v{whi}, s{sT1}, v{vT+6}
        v_mov_b32 v{vT+5}, {f32(CSC)}
        """)
    def q_pack(self, db, qb):
        wlo, whi = vT + 2, vT + 3
        acc = QACC + (db * 6 + qb) * 4
        cs = vr(vT + 5, 2)
        assert (vT + 5) % 2 == 0
        return [f"v_pk_mul_f32 {vr(acc,2)}, {vr(acc,2)}, {cs} op_sel_hi:[1,0]",
                f"v_pk_mul_f32 {vr(acc+2,2)}, {vr(acc+2,2)}, {cs} op_sel_hi:[1,0]",
                f"v_cvt_pk_bf16_f32 v{acc}, v{acc}, v{acc+1}",
                f"v_cvt_pk_bf16_f32 v{acc+1}, v{acc+2}, v{acc+3}",
                f"ds_write_b64 v{wlo if qb < 3 else whi}, {vr(acc,2)} offset:{(qb%3)*16*QP + db*32}"]
    def qphase(self):
        a = self.a
        order = ["c0"] * 10 + ["c1"] * 10 + ["c2"] * 10
        if self.touch == 2: order += ["t"] * 5
        kvl = [(t, n) for t in range(3) for n in range(8) if t < self.pre[n]]
        def next_kv():
            if not kvl: return None
            t, n = kvl.pop(0)
            order.append(f"kv{t}")
            return self.kv_piece(0, n) if t == 0 else self.kv_piece(t, n, reg=KVR + 32 * (t - 1))
        for _ in range(self.early.get(-1, 0)): self.emit_piece(next_kv())
        def xf(st, s, qb): return QSET[st] + (s * 6 + qb) * 4
        def wf(st, s, db): return QSET[st] + 48 + (s * 4 + db) * 4
        def reads(c):
            st = c & 1
            a(f"v_add_u32 v{vX2}, {XST[(c+2)%3]}, v{vX}")
            a(f"v_add_u32 v{vW2}, {WST[(c+2)%3]}, v{vW}")
            out = []
            for s in range(2):
                for qb in range(6):
                    out.append(f"ds_read_b128 {ar(xf(st,s,qb),4)}, v{vX2} offset:{qb*512 + s*64}")
                for db in range(4):
                    for u in range(2):
                        out.append(f"ds_read_b64_tr_b16 {ar(wf(st,s,db)+2*u,2)}, v{vW2} offset:{u*8*PIT + s*512 + db*32}")
            return out
        def after(tag):
            idx = [i for i, t in enumerate(order) if t == tag]
            if not idx: return 63
            return len(order) - 1 - idx[-1]
        a(f"s_waitcnt vmcnt({after('c0')})\ns_barrier")
        self.stamp(1)
        for r in reads(0): a(r)
        for c in range(10):
            if c + 1 < 10: a(f"s_waitcnt vmcnt({min(63, after(f'c{c+1}'))}) lgkmcnt(0)")
            else: a("s_waitcnt lgkmcnt(0)")
            a("s_barrier")
            rd = reads(c + 1) if c + 1 < 10 else []
            if "qnolds" in self.abl: rd = []
            todo = []
            if c + 3 < 10 and "qnodma" not in self.abl: todo += [("q", pc) for pc in self.q_pieces(c + 3)]
            todo += [("kv", None)] * self.early.get(c, 0)
            if self.touch == 10 + c: todo += [("t", pc) for pc in self.touch_pieces()]
            st = c & 1
            NG = self.qng
            g = 0
            seq = [(s, db, hh) for s in range(2) for db in range(4) for hh in range(2)]
            packq = []
            if c == 9:
                seq = [(s, db, hh) for db in range(4) for hh in range(2) for s in range(2)]
                self.q_pack_setup()
            for (s, db, hh) in seq:
                if True:
                    if True:
                        mine = todo[(g * len(todo) + NG - 1) // NG:((g + 1) * len(todo) + NG - 1) // NG]
                        pcs = []
                        for kind, pc in mine:
                            if kind == "q": order.append(f"c{c+3}"); pcs.append(pc)
                            elif kind == "t": order.append("t"); pcs.append(pc)
                            else:
                                pc = next_kv()
                                if pc: pcs.append(pc)
                        if pcs and pcs[0][0]: a(pcs[0][0])
                        for q3 in range(3):
                            qb = 3 * hh + q3
                            acc = QACC + (db * 6 + qb) * 4
                            cc = "0" if (c == 0 and s == 0) else vr(acc, 4)
                            a(f"{MF} {vr(acc,4)}, {ar(wf(st,s,db),4)}, {ar(xf(st,s,qb),4)}, {cc}")
                            if c == 9:
                                for _ in range(3):
                                    if packq and packq[0][0] <= g - 3: a(packq.pop(0)[1])
                        if c == 9 and s == 1:
                            for q3 in range(3):
                                packq += [(g, l) for l in self.q_pack(db, 3 * hh + q3)]
                        if pcs: a(pcs[0][1])
                        for pc in pcs[1:]: self.emit_piece(pc)
                        ng = self.qrg
                        for r in rd[(g * 28) // ng:((g + 1) * 28) // ng]: a(r)
                        g += 1
                        for t, cw in ((1, self.kvw[0]), (2, self.kvw[1])):
                            if c == cw and g == 12 and f"kv{t}" in order:
                                assert not any(tt == t for tt, _ in kvl)
                                a(f"s_waitcnt vmcnt({after(f'kv{t}')})")
                                for n in [n for n in range(8) if t < self.pre[n]]:
                                    a(f"ds_write_b128 v{vKW + (n & 1)}, {ar(KVR+32*(t-1)+4*n,4)} offset:{t*TS + (n>>1)*PIT}")
            if self.qstamps and c in (2, 5, 8, 9): self.stamp({2: 3, 5: 4, 8: 5, 9: 6}[c])
        assert not kvl
        a('s_waitcnt vmcnt(0)') if False else None
        rlo, rhi = vT, vT + 1
        a("s_nop 4")
        for _, l in packq: a(l)
        a("s_waitcnt lgkmcnt(0)\ns_barrier")
        for s in range(4):
            for qb in range(6):
                a(f"ds_read_b128 {Qf(s,qb)}, v{rlo if qb < 3 else rhi} offset:{(qb%3)*16*QP + s*64}")
        self.stamp(2)

    def signal(self):
        a = self.a
        lab = a.newlabel("L_nosig")
        a(f"""
        s_cmp_lg_u32 s{sW}, 0
        s_cbranch_scc1 {lab}
        s_lshl_b32 s3, s{sB}, 5
        v_mov_b32 v254, s3
        v_mov_b32 v255, 1
        s_mov_b64 exec, 1
        global_atomic_add v254, v255, s[28:29] sc1
        s_mov_b64 exec, -1
        {lab}:
        """)
    def poll(self, sBATCH):
        a = self.a
        lab = a.newlabel("L_nopoll"); lp = a.newlabel("L_poll")
        a(f"""
        s_cmp_lg_u32 s{sW}, 0
        s_cbranch_scc1 {lab}
        s_lshl_b32 s3, s{sBATCH}, 5
        s_mov_b32 s{sLOOP}, 0
        v_mov_b32 v254, s3
        {lp}:
        global_load_dword v255, v254, s[28:29] sc1
        s_add_u32 s{sLOOP}, s{sLOOP}, 1
        s_waitcnt vmcnt(0)
        v_cmp_ne_u32 vcc, 32, v255
        s_cmp_gt_u32 s{sLOOP}, 0x40000
        s_cbranch_scc1 {lab}
        s_cbranch_vccz {lab}
        s_sleep 1
        s_branch {lp}
        {lab}:
        """)

    T_vO = [224, 225, 226, 227]; T_vA = [228, 229, 230, 231]; T_vE = [232, 233, 234, 235]
    T_vWD, T_vT2 = 250, 251
    sRT, sCT, sKW, sKO, sWOFF, sBATCH, sRX, sJ = 42, 43, 44, 48, 49, 50, 51, 38
    def tail_setup(self):
        sRT, sCT, sKW, sKO, sWOFF, sBATCH, sRX, sJ = self.sRT, self.sCT, self.sKW, self.sKO, self.sWOFF, self.sBATCH, self.sRX, self.sJ
        vWD2, t = self.T_vWD, self.T_vT2
        txt = f"""
        s_and_b32 s{sT0}, s2, 7
        s_lshr_b32 s{sJ}, s2, 3
        s_mul_i32 s{sRT}, s{sJ}, 52
        s_lshr_b32 s{sRT}, s{sRT}, 8
        s_mul_i32 s{sCT}, s{sRT}, 5
        s_sub_u32 s{sCT}, s{sJ}, s{sCT}
        s_mov_b32 s{sKW}, 0
        s_mov_b32 s{sKO}, 0
        s_and_b32 s3, s{sT0}, 1
        s_mul_i32 s3, s3, 12
        s_add_u32 s{sRT}, s{sRT}, s3
        s_bfe_u32 s3, s{sT0}, 0x10001
        s_mul_i32 s3, s3, 6
        s_add_u32 s{sRT}, s{sRT}, s3
        s_lshr_b32 s3, s{sT0}, 2
        s_mul_i32 s3, s3, 5
        s_add_u32 s{sCT}, s{sCT}, s3
        s_mul_i32 s{sBATCH}, s{sRT}, 86
        s_lshr_b32 s{sBATCH}, s{sBATCH}, 8
        s_mov_b32 s96, s58
        s_mov_b32 s97, s59
        s_mov_b32 s98, {1536*1280}
        s_mov_b32 s99, 0x20000
        s_mul_i32 s{sWOFF}, s{sW}, {32*1280}
        s_lshl_b32 s3, s{sCT}, 7
        s_add_u32 s{sWOFF}, s{sWOFF}, s3
        s_mul_i32 s{sRX}, s{sW}, 12288
        s_add_u32 s{sRX}, s{sRX}, {116736 - 12288}
        s_cmp_eq_u32 s{sW}, 0
        s_cselect_b32 s{sRX}, 49152, s{sRX}
        v_lshrrev_b32 v{vWD2}, 3, v{vLANE}
        v_mul_u32_u24 v{vWD2}, 1280, v{vWD2}
        v_bfe_u32 v{t}, v{vLANE}, 4, 2
        v_lshlrev_b32 v{t}, 1, v{t}
        v_xor_b32 v{t}, v{t}, v{vLANE}
        v_and_b32 v{t}, 7, v{t}
        v_lshl_add_u32 v{vWD2}, v{t}, 4, v{vWD2}
        """
        return [l.strip() for l in txt.strip().split("\n")]
    def wo_issue(self, i):
        a = self.a
        sl = i % 9
        base = f"s{self.sRX}, {sl*4096}" if sl < 3 else f"s{sKVL}, {(sl-3)*4096}"
        a(f"s_add_u32 s3, s{self.sWOFF}, {i*128*1280}")
        a(f"s_add_u32 m0, {base}")
        for pc in range(4):
            if pc: a(f"s_add_u32 m0, m0, 1024\ns_add_u32 s3, s3, {8*1280}")
            else: a("s_nop 0")
            a(f"buffer_load_dwordx4 v{self.T_vWD}, s[92:95], s3 offen lds")
            self.vq.append(("W", i))
    def tail_early(self):
        a = self.a
        self.vq = []
        a(f"s_cmp_ge_u32 s{self.sJ}, 30\ns_cbranch_scc1 L1_noearly")
        for i in range(3): self.wo_issue(i)
        a("L1_noearly:")
        self.vq += [("S", 0)] * 12

    def tail(self):
        a = self.a
        NS, nR, PDA, NST = 9, self.nR, self.PDA, 32
        ACC, AR, BV = 0, 64, 160
        assert AR + 16 * PDA <= BV and nR <= 20
        vO, vA, vE, vT2 = self.T_vO, self.T_vA, self.T_vE, self.T_vT2
        sRT, sCT, sBATCH = self.sRT, self.sCT, self.sBATCH
        vq = self.vq
        def blk(i, off, n):
            b = i % nR
            return ar(16 * b + off, n) if b < 16 else vr(BV + 16 * (b - 16) + off, n)
        a(f"s_cmp_ge_u32 s{self.sJ}, 30\ns_cbranch_scc1 L1_notile")
        def vwait(tag):
            idx = [n for n, t in enumerate(vq) if t == tag]
            if not idx: return
            cnt = len(vq) - 1 - idx[-1]
            assert cnt <= 63
            a(f"s_waitcnt vmcnt({cnt})")
            del vq[:idx[-1] + 1]
        def wo_read(i):
            sl = i % NS
            ad, off = (vE, sl * 4096) if sl < 3 else (vA, (sl - 3) * 4096)
            for nb in range(4):
                for u in range(2):
                    a(f"ds_read_b64_tr_b16 {blk(i,4*nb+2*u,2)}, v{ad[nb]} offset:{off + u*2048}")
        for i in range(3, NS): self.wo_issue(i)
        z = vO[3]
        a(f"""
        v_lshrrev_b32 v{vT2}, 2, v{vLANE}
        v_lshlrev_b32 v{z}, 7, v{vT2}
        v_bfe_u32 v{vT2}, v{vT2}, 1, 2
        v_lshl_or_b32 v{z}, v{vT2}, 5, v{z}
        v_and_b32 v{vT2}, 3, v{vLANE}
        v_lshl_or_b32 v{z}, v{vT2}, 3, v{z}
        v_xor_b32 v{vO[0]}, 32, v{z}
        v_xor_b32 v{vO[1]}, 64, v{z}
        v_xor_b32 v{vO[2]}, 96, v{z}
        v_add_u32 v{vA[0]}, s{sKVL}, v{z}
        v_add_u32 v{vA[1]}, s{sKVL}, v{vO[0]}
        v_add_u32 v{vA[2]}, s{sKVL}, v{vO[1]}
        v_add_u32 v{vA[3]}, s{sKVL}, v{vO[2]}
        v_add_u32 v{vE[0]}, s{self.sRX}, v{z}
        v_add_u32 v{vE[1]}, s{self.sRX}, v{vO[0]}
        v_add_u32 v{vE[2]}, s{self.sRX}, v{vO[1]}
        v_add_u32 v{vE[3]}, s{self.sRX}, v{vO[2]}
        s_lshl_b32 s3, s{sRT}, 19
        s_lshl_b32 s{sT0}, s{sW}, 10
        s_add_u32 s3, s3, s{sT0}
        v_lshlrev_b32 v{vT2}, 4, v{vLANE}
        v_add_u32 v{vO[0]}, s3, v{vT2}
        v_add_u32 v{vO[1]}, 0x20000, v{vO[0]}
        v_add_u32 v{vO[2]}, 0x40000, v{vO[0]}
        v_add_u32 v{vO[3]}, 0x60000, v{vO[0]}
        """)
        nextW = NS
        for i in range(3):
            vwait(("W", i))
            wo_read(i)
        a("s_waitcnt lgkmcnt(0)")
        for i in range(3): self.wo_issue(nextW); nextW += 1
        vwait(("S", 0))
        a("s_barrier")
        self.stamp(4)
        self.signal()
        def o_issue(i):
            b = AR + 16 * (i % PDA)
            a(f"s_mov_b32 s{sT1}, {i*4096}")
            for qb in range(4):
                a(f"buffer_load_dwordx4 {vr(b+4*qb,4)}, v{vO[qb]}, s[24:27], s{sT1} offen sc1")
                vq.append(("O", i))
        for i in range(3, nR):
            if i == self.xB:
                self.stamp(5)
                self.poll(sBATCH)
                a("s_barrier")
                self.stamp(6)
                for n in range(PDA): o_issue(n)
            vwait(("W", i))
            wo_read(i)
            if i >= 4 and nextW < NST:
                a("s_waitcnt lgkmcnt(8)")
                self.wo_issue(nextW); nextW += 1
        a("s_waitcnt lgkmcnt(0)")
        self.wo_issue(nextW); nextW += 1
        assert nextW == nR + NS
        if self.xB >= nR:
            self.stamp(5)
            self.poll(sBATCH)
            a("s_barrier")
            self.stamp(6)
            for n in range(PDA): o_issue(n)
        pend = None
        def capture(fn, *args):
            n0 = len(a.lines)
            fn(*args)
            out = a.lines[n0:]
            del a.lines[n0:]
            return out
        for i in range(NST):
            blkA = AR + 16 * (i % PDA)
            vwait(("O", i))
            if i == NST - nR + 2: a("s_waitcnt lgkmcnt(0)")
            fill = []
            if i >= 1:
                if i - 1 + PDA < NST: fill += capture(o_issue, i - 1 + PDA)
                if i - 1 + nR < NST:
                    fill += capture(vwait, ("W", i - 1 + nR)) + capture(wo_read, i - 1 + nR)
                if pend is not None:
                    fill += ["    s_waitcnt lgkmcnt(8)"] + capture(self.wo_issue, pend); pend = None
                if i - 1 + nR < NST and nextW < NST:
                    pend = nextW; nextW += 1
            fi = 0
            for mi in range(16):
                nb, qb = mi // 4, mi % 4
                acc = ACC + 4 * mi
                cc = "0" if i == 0 else vr(acc, 4)
                a(f"{MF} {vr(acc,4)}, {blk(i,4*nb,4)}, {vr(blkA+4*qb,4)}, {cc}")
                tgt = (len(fill) * (mi + 1) + 15) // 16
                while fi < tgt:
                    a.lines.append(fill[fi]); fi += 1
        assert nextW >= NST and pend is None, (nextW, pend)
        a(f"""
        s_lshl_b32 s3, s{sW}, 14
        v_add_u32 v{vA[0]}, s3, v{vT2}
        s_lshl_b32 s3, s{sW}, 12
        v_add_u32 v{vA[1]}, s3, v{vT2}
        s_nop 3
        s_barrier
        """)
        for j in range(16): a(f"ds_write_b128 v{vA[0]}, {vr(ACC+4*j,4)} offset:{1024*j}")
        a(f"""
        s_lshl_b32 s3, s{sRT}, 6
        s_mul_i32 s3, s3, 1280
        s_lshl_b32 s{sT1}, s{sCT}, 7
        s_add_u32 s3, s3, s{sT1}
        s_lshl_b32 s{sT0}, s{sW}, 5
        s_add_u32 s3, s3, s{sT0}
        v_and_b32 v64, 15, v{vLANE}
        v_mul_u32_u24 v64, 1280, v64
        v_lshrrev_b32 v65, 4, v{vLANE}
        v_lshl_add_u32 v64, v65, 3, v64
        v_add_u32 v64, s3, v64
        v_add_u32 v65, {16*1280}, v64
        v_add_u32 v66, {32*1280}, v64
        v_add_u32 v67, {48*1280}, v64
        s_waitcnt lgkmcnt(0)
        s_barrier
        """)
        for j in range(4):
            for w in range(4):
                a(f"ds_read_b128 {vr(16*w+4*j,4)}, v{vA[1]} offset:{w*16384 + 1024*j}")
        for qb in range(4):
            a(f"s_waitcnt lgkmcnt({12-4*qb})")
            for e in range(2):
                r = 4 * qb + 2 * e
                a(f"v_pk_add_f32 {vr(r,2)}, {vr(r,2)}, {vr(16+r,2)}")
                a(f"v_pk_add_f32 {vr(32+r,2)}, {vr(32+r,2)}, {vr(48+r,2)}")
            for e in range(2):
                r = 4 * qb + 2 * e
                a(f"v_pk_add_f32 {vr(r,2)}, {vr(r,2)}, {vr(32+r,2)}")
            a(f"v_cvt_pk_bf16_f32 v{68+2*qb}, v{4*qb}, v{4*qb+1}")
            a(f"v_cvt_pk_bf16_f32 v{69+2*qb}, v{4*qb+2}, v{4*qb+3}")
            a(f"buffer_store_dwordx2 {vr(68+2*qb,2)}, v{64+qb}, s[96:99], 0 offen")
        if self.stamps:
            a("s_waitcnt vmcnt(0)")
            if not (self.lstamps or self.qstamps): self.stamp(7)
            self.stamp_store("L1_end")
        a("s_branch L1_end")
        a.label("L1_notile")
        a("s_waitcnt vmcnt(0)\ns_barrier")
        self.signal()

    def kernel(self):
        a = self.a
        a.begin_kernel("attn_kernel", 256, 256, LDS1, 512, accum=256)
        self.prologue()
        self.qphase()
        self.main_loop()
        if self.stamps and (self.lstamps or self.qstamps):
            st = self.stamps; self.stamps = False
            self.stamp = lambda i: None
            self.stamps = st
        self.tail()
        a.label("L1_end")
        a("s_endpgm")
        for stub, ret, h in self.stubs:
            a.label(stub)
            a(f"s_call_b64 s[{sRET}:{sRET+1}], L_slow{h}\ns_branch {ret}")
        for h in range(2): self.slow_sub(h)

def build(name, **kw):
    g = Gen(**kw)
    g.kernel()
    open(name, "w").write(g.a.text())

def rate(name, ahead, late, **kw):
    dist = tuple(2 if n < ahead else 1 for n in range(8))
    porder = tuple(range(ahead, 8)) + tuple(range(ahead))
    pos = list(range(8 - ahead)) + [late + 2 * i for i in range(ahead)]
    build(name, dist=dist, porder=porder, dma_pos=pos, **kw)

if __name__ == "__main__":
    kw = dict(qkorder=1, early={4: 4, 5: 4, 6: 8}, PDA=6, xB=14, warm=28)
    rate("f1_a1.s", 1, 24, **kw)
    rate("f1_a1l.s", 1, 30, **{**kw, "warm": 31})
    rate("f1_a1e.s", 1, 12, **kw)
    rate("f1_a2l.s", 2, 28, **{**kw, "warm": 31})
```

```python
import sys, struct
from asmlib import Asm

def f32(x):
    return "0x%08x" % struct.unpack("<I", struct.pack("<f", x))[0]
def vr(b, n): return f"v[{b}:{b+n-1}]"
def ar(b, n): return f"a[{b}:{b+n-1}]"

PIT = 1056
TS = 16 * PIT
VB0 = 4 * TS
SPARE = 8 * TS
LDS1 = 163840
XP = 6 * 1024 + 32
XSZ = 4 * XP
XST = [TS, TS + XSZ, SPARE]
WST = [VB0 + TS, VB0 + 2 * TS, VB0 + 3 * TS]
QP = 288
QA1 = VB0 + 3 * TS
THR = 4096.0
CSC = 1.4426950408889634 / (128 ** 0.5)
MF = "v_mfma_f32_16x16x32_bf16"
MF32 = "v_mfma_f32_32x32x16_bf16"
XP32, WP32 = 3088, 1088

OW, S, P, NM = 0, 96, 144, 168
QA_, KF, VF = 96, 192, 224
vL, vTS, vT = 192, 198, 202
vTSH = [198, 222]
vSUM = [201, 208]
vST, vSTS = 226, 234
vK, vVA, vVB, vDMA, vLANE = 209, 210, 211, 212, 253
vX, vW, vX2, vW2, vXD, vWD, vKW = 214, 215, 216, 217, 218, 219, 220
QACC = 0
QSET = [0, 80]
KVR = 160

def Or(j, qb):
    return vr(OW + (j * 6 + qb) * 4, 4) if j < 4 else ar(((j - 4) * 6 + qb) * 4, 4)
def Qf(s, qb): return ar(QA_ + 4 * (s * 6 + qb), 4)
def Si(kb, qb): return S + ((qb // 3) * 6 + kb * 3 + qb % 3) * 4

sW, sB, sH = 32, 33, 34
sTHR = [36, 36]
sKVO, sKVL = 40, 41
sCH, sXO, sWO, sT0, sT1 = 42, 43, 44, 45, 46
sLOOP = 47
sXB, sWB, sXS, sWS = 48, 49, 50, 51
sQH, sKH = 52, 53
sRET = 54
sTW = 37
vTW = 252
sD = [30, 31, 35]
SRD_K, SRD_V, SRD_X, SRD_W = 16, 20, 24, 96

class Gen:
    def __init__(self, stamps=False, kvstride=16384, abl=(), early=None, kvw=(8, 9), fused=True, nR=20, xB=12,
                 dma_pos=None, touch=2, qm32=False, x4=False, ks=0, summode=0, wcap=63, tlbk=-1, dbgst=False, qrot=1, warm=0, qng=16, qrg=12, qng32=22, qrg32=20, pad=0, pvorder=0, qkorder=0, dist=(3,)*8, pre=None, porder=(0, 1, 2, 3, 4, 5, 6, 7), linear=False, korder=0, chain=False, head=12, target=2.4, gap_max=4, ds_cost=1, dma_cost=2, lstamps=False, qstamps=False, PDA=10, tilemap=0):
        self.a = Asm()
        self.__dict__.update(locals())
        if early is None: self.early = {3: 4, 4: 4, 5: 4, 6: 4, 7: 4, 8: 4}
        if pre is None: self.pre = self.dist
        self.dsq = []
        self.stubs = []
        self.src = {}

    def stamp(self, i):
        if self.stamps:
            self.a(f"s_memrealtime s[{60+2*i}:{61+2*i}]")
            self.a(f"s_memtime s[{76+2*i}:{77+2*i}]")
    def stamp_store(self, end):
        a = self.a
        if self.dbgst:
            a(f"""
            s_cmp_eq_u32 s{sW}, 0
            s_cbranch_scc0 {end}
            s_and_b32 s3, s2, 0xef
            s_cmp_eq_u32 s3, 0x60
            s_cbranch_scc0 {end}
            s_waitcnt lgkmcnt(0)
            s_lshr_b32 s3, s2, 4
            s_and_b32 s3, s3, 1
            s_lshl_b32 s3, s3, 5
            v_mov_b32 v1, s3
            """)
            for i in range(1, 8):
                a(f"s_sub_u32 s3, s{60+2*i}, s60\nv_mov_b32 v{3+i}, s3")
            a(f"""
            v_cmp_eq_u32 vcc, 0, v{vLANE}
            s_and_saveexec_b64 s[54:55], vcc
            global_store_dwordx4 v1, v[4:7], s[28:29] offset:4
            global_store_dwordx3 v1, v[8:10], s[28:29] offset:20
            """)
            return
        a(f"""
        s_cmp_eq_u32 s{sW}, 0
        s_cbranch_scc0 {end}
        s_waitcnt lgkmcnt(0)
        s_add_u32 s14, s12, 0x10000000
        s_addc_u32 s15, s13, 0
        s_lshl_b32 s3, s2, 7
        v_mov_b32 v1, s3
        """)
        for i in range(32): a(f"v_mov_b32 v{4+i}, s{60+i}")
        a(f"v_cmp_eq_u32 vcc, 0, v{vLANE}\ns_and_saveexec_b64 s[54:55], vcc")
        for i in range(8): a(f"global_store_dwordx4 v1, v[{4+4*i}:{7+4*i}], s[14:15] offset:{16*i}")

    def ds(self, text, tag):
        self.a(text); self.dsq.append(tag)
    def need(self, tag):
        idx = [i for i, t in enumerate(self.dsq) if t == tag]
        if not idx: return
        cnt = min(len(self.dsq) - 1 - idx[-1], 15)
        self.a(f"s_waitcnt lgkmcnt({cnt})")
        self.dsq = self.dsq[len(self.dsq) - cnt:]

    def toff(self, t):
        if self.kvstride == 0: return 0
        m = 1 << self.ks
        return ((t & (m - 1)) << 12) | ((t >> self.ks) << (14 + self.ks))
    def kv_piece(self, t, n, reg=None, k=None):
        isv, j = n & 1, n >> 1
        srd = SRD_V if isv else SRD_K
        off = f" offset:{j*256}" if j else ""
        pre = ""
        if k is None:
            pre = f"s_add_u32 s{sT1}, s{sKVO}, {self.toff(t)}\n"
            so = sT1
        else:
            so = sD[t - k - 1]
        if reg is None:
            pre += f"s_add_u32 m0, s{sKVL}, {isv*VB0 + (t%4)*TS + j*(PIT-256)}"
            post = f"buffer_load_dwordx4 v{vDMA}, s[{srd}:{srd+3}], s{so} offen{off} nt lds"
        else:
            post = f"buffer_load_dwordx4 {ar(reg+4*n,4)}, v{vDMA}, s[{srd}:{srd+3}], s{so} offen{off} nt"
        return pre.rstrip("\n"), post
    def dist_of(self, n, k):
        return self.dist[n]
    def main_pieces(self, k):
        out = []
        for n in self.porder:
            t = k + self.dist[n]
            if t >= self.pre[n] and (k <= 29 or t <= 31):
                out.append((n, t))
        return out
    def warm_on(self, k): return self.warm and 1 <= k <= 29
    def warm_piece(self):
        pre = f"s_mov_b32 m0, {LDS1-1024}"
        post = f"""buffer_load_dwordx4 v{vTW}, s[92:95], s{sTW} offen lds
        s_add_u32 s39, s39, 1
        s_cmp_eq_u32 s39, 5
        s_cselect_b32 s3, {32*1280-4*128}, s{sT1}
        s_cselect_b32 s39, 0, s39
        s_add_u32 s{sTW}, s{sTW}, s3"""
        return pre, post
    def main_wait(self, k):
        order = []
        for kk in range(0, k):
            order += [t for n, t in self.main_pieces(kk)]
            if self.warm_on(kk): order.append(999)
        idx = [i for i, t in enumerate(order) if t <= k]
        return len(order) - 1 - idx[-1] if idx else len(order)
    def w_pieces(self, c):
        wb = self.wslot(c)
        head = f"""s_lshl_b32 s{sWO}, s{sCH}, 19
        s_add_u32 s{sWO}, s{sWO}, s{sWS}
        s_add_u32 s{sCH}, s{sCH}, 1
        s_cmp_ge_u32 s{sCH}, 10
        s_cselect_b32 s{sCH}, 0, s{sCH}
        """
        W = f"s[{SRD_W}:{SRD_W+3}]"
        return [((head if e == 0 else f"s_add_u32 s{sWO}, s{sWO}, 8192\n") + f"s_add_u32 m0, s{sWB}, {wb + e*(WP32 if self.qm32 else PIT)}",
                 f"buffer_load_dwordx4 v{vWD}, {W}, s{sWO} offen lds") for e in range(4)]
    def x_pieces(self, c):
        xb = self.xslot(c)
        head = f"""s_lshl_b32 s{sXO}, s39, 7
        s_add_u32 s{sXO}, s{sXO}, s{sXS}
        s_add_u32 s39, s39, 1
        s_cmp_ge_u32 s39, 10
        s_cselect_b32 s39, 0, s39
        """
        X = f"s[{SRD_X}:{SRD_X+3}]"
        if self.qm32:
            inc = [0, 64*1280, 64*1280, 1280 - 128*1280, 64*1280, 64*1280]
            return [((head if u == 0 else (f"s_add_u32 s{sXO}, s{sXO}, {inc[u]}\n" if inc[u] > 0 else f"s_sub_u32 s{sXO}, s{sXO}, {-inc[u]}\n"))
                     + f"s_add_u32 m0, s{sXB}, {xb + (u//3)*XP32 + (u%3)*1024}",
                     f"buffer_load_dwordx4 v{vXD}, {X}, s{sXO} offen lds") for u in range(6)]
        return [((head if u == 0 else f"s_add_u32 s{sXO}, s{sXO}, {32*1280}\n") + f"s_add_u32 m0, s{sXB}, {xb + u*1024}",
                 f"buffer_load_dwordx4 v{vXD}, {X}, s{sXO} offen lds") for u in range(6)]
    def xslot(self, c):
        if self.x4: return [0, XSZ, SPARE, 2 * XSZ][{6: 0, 8: 1, 9: 2, 7: 3}[6 + (c - 6) % 4]]
        return XST[(c + 2) % 3]
    def wslot(self, c):
        if self.x4: return 3 * XSZ + ((c - 7) % 3) * (16 * WP32 if self.qm32 else TS)
        return WST[(c + 2) % 3]
    def touch_pieces(self):
        return [(f"s_mov_b32 m0, {LDS1-1024}", f"buffer_load_dwordx4 v{vTW}, s[92:95], s{sTW} offen lds\ns_add_u32 s{sTW}, s{sTW}, 1024") for n in range(5)]
    def emit_piece(self, pc):
        self.a((pc[0] + "\ns_nop 0\n" if pc[0] else "") + pc[1])

    def kread(self, slot, f):
        if "nolds" in self.abl: return
        kb, s = f >> 2, f & 3
        self.ds(f"ds_read_b128 {ar(KF+4*f,4)}, v{vK} offset:{slot*TS + kb*256 + s*64}", ("K", f))
    def vread(self, slot, j):
        if "nolds" in self.abl: return
        ad = vVA if j < 4 else vVB
        for u in range(2):
            self.ds(f"ds_read_b64_tr_b16 {ar(VF+4*j+2*u,2)}, v{ad} offset:{slot*TS + u*256 + j*32}", ("V", j))

    def sm_stream(self, h, T=vT, check=True):
        out = []
        if "nosm" in self.abl: return out
        TSV = vTSH[h]
        pairs = [(kb, q3, e) for kb in range(2) for q3 in range(3) for e in range(2)]
        def tmp(i): return T + (i % 3) * 2
        def ex(i):
            kb, q3, e = pairs[i]
            r = Si(kb, 3 * h + q3) + 2 * e
            self.src[f"v_exp_f32 v{tmp(i)}, v{r}"] = (h, kb, q3)
            out.append((2, f"v_exp_f32 v{tmp(i)}, v{r}"))
            out.append((2, f"v_exp_f32 v{tmp(i)+1}, v{r+1}"))
        ex(0)
        late = []
        for i, (kb, q3, e) in enumerate(pairs):
            if i + 1 < len(pairs): ex(i + 1)
            else: out.append((1, f"v_add_f32 v{vSUM[h]}, v{TSV}, v{TSV+1}"))
            t = tmp(i)
            pr = P + 4 * (3 * h + q3) + 2 * kb + e
            cv = (1, f"v_cvt_pk_bf16_f32 v{pr}, v{t}, v{t+1}")
            if self.summode == 1:
                acc2 = 238 + 6 * h + 2 * q3
                if kb == 0 and e == 0: out.append((1, f"v_pk_add_f32 {vr(acc2,2)}, {vr(t,2)}, 0"))
                else: out.append((1, f"v_pk_add_f32 {vr(acc2,2)}, {vr(acc2,2)}, {vr(t,2)}"))
                if kb == 1 and e == 1: out.append((1, f"v_add_f32 v{TSV+q3}, v{acc2}, v{acc2+1}"))
            elif self.summode == 2:
                out.append(cv)
                if kb == 0 and e == 0: cv = (1, f"v_dot2_f32_bf16 v{TSV+q3}, v{pr}, v250, 0")
                else: cv = (1, f"v_dot2c_f32_bf16 v{TSV+q3}, v{pr}, v250")
                out.append(cv); cv = None
            elif kb == 0 and e == 0:
                out.append((1, f"v_add_f32 v{TSV+q3}, v{t}, v{t+1}"))
            elif "noadd" not in self.abl:
                out.append((1, f"v_add_f32 v{TSV+q3}, v{TSV+q3}, v{t}"))
                out.append((1, f"v_add_f32 v{TSV+q3}, v{TSV+q3}, v{t+1}"))
            if cv is None: continue
            if i >= len(pairs) - 1: late.append(cv)
            else: out.append(cv)
        if check:
            out.append((1, f"v_add_f32 v{vSUM[h]}, v{vSUM[h]}, v{TSV+2}"))
            out.append((1, f"v_cmp_lt_f32 vcc, s{sTHR[h]}, v{vSUM[h]}"))
        out += late
        return out
    def gated(self, items, G, start=0):
        return [(c, t, self.src.get(t, 0)) for c, t in items]
    def ninstr(self):
        return sum(1 for l in self.a.lines[-40:] if not l.strip().endswith(":") ) + 0
    def gate_ok(self, key):
        if key == 0: return True
        if key not in self.ready: return False
        n = sum(1 for l in self.a.lines[self.ready[key]:] if l.strip() and not l.strip().endswith(":"))
        return n >= 8
    def first_stream(self, h):
        out = []
        m = [vST, vST + 1, vST + 2]; n = [vST + 3, vST + 4, vST + 5]
        def add(t, key=0): out.append((1, t, key))
        for q3 in range(3):
            s0, s1 = Si(0, 3*h+q3), Si(1, 3*h+q3)
            add(f"v_max3_f32 v{m[q3]}, v{s0}, v{s0+1}, v{s0+2}", (h, 0, q3))
        for q3 in range(3):
            s0, s1 = Si(0, 3*h+q3), Si(1, 3*h+q3)
            add(f"v_max3_f32 v{m[q3]}, v{m[q3]}, v{s0+3}, v{s1}", (h, 1, q3))
            add(f"v_max3_f32 v{m[q3]}, v{m[q3]}, v{s1+1}, v{s1+2}")
            add(f"v_max_f32 v{m[q3]}, v{m[q3]}, v{s1+3}")
        for sw in ("v_permlane16_swap_b32", "v_permlane32_swap_b32"):
            for q3 in range(3): add(f"v_mov_b32 v{n[q3]}, v{m[q3]}")
            add("s_nop 1")
            for q3 in range(3): add(f"{sw} v{m[q3]}, v{n[q3]}")
            for q3 in range(3): add(f"v_max_f32 v{m[q3]}, v{m[q3]}, v{n[q3]}")
        for q3 in range(3):
            qb = 3 * h + q3
            for kb in range(2):
                for r in range(4): add(f"v_sub_f32 v{Si(kb,qb)+r}, v{Si(kb,qb)+r}, v{m[q3]}")
            for r in range(4): add(f"v_sub_f32 v{NM+4*qb+r}, 0, v{m[q3]}")
        return out
    def check_branch(self, h):
        a = self.a
        if "nosm" in self.abl: return []
        if not self.abl:
            stub = a.newlabel("L_stub"); ret = a.newlabel("L_ret")
            self.stubs.append((stub, ret, h))
            a(f"s_cbranch_vccnz {stub}\n{ret}:")
        return [(1, f"v_add_f32 v{vL+3*h+q3}, v{vL+3*h+q3}, v{vTSH[h]+q3}") for q3 in range(3)]

    def slow_sub(self, h):
        a = self.a
        a.label(f"L_slow{h}")
        m = [vST, vST + 1, vST + 2]; n = [vST + 3, vST + 4, vST + 5]
        for q3 in range(3):
            s0, s1 = Si(0, 3*h+q3), Si(1, 3*h+q3)
            a(f"v_max3_f32 v{m[q3]}, v{s0}, v{s0+1}, v{s0+2}")
            a(f"v_max3_f32 v{m[q3]}, v{m[q3]}, v{s0+3}, v{s1}")
            a(f"v_max3_f32 v{m[q3]}, v{m[q3]}, v{s1+1}, v{s1+2}")
            a(f"v_max_f32 v{m[q3]}, v{m[q3]}, v{s1+3}")
        for sw in ("v_permlane16_swap_b32", "v_permlane32_swap_b32"):
            for q3 in range(3): a(f"v_mov_b32 v{n[q3]}, v{m[q3]}")
            a("s_nop 1")
            for q3 in range(3): a(f"{sw} v{m[q3]}, v{n[q3]}")
            for q3 in range(3): a(f"v_max_f32 v{m[q3]}, v{m[q3]}, v{n[q3]}")
        for q3 in range(3): a(f"v_max_f32 v{m[q3]}, 0, v{m[q3]}")
        for q3 in range(3): a(f"v_exp_f32 v{n[q3]}, -v{m[q3]}")
        for q3 in range(3):
            qb = 3 * h + q3
            for kb in range(2):
                for r in range(4): a(f"v_sub_f32 v{Si(kb,qb)+r}, v{Si(kb,qb)+r}, v{m[q3]}")
            for r in range(4): a(f"v_sub_f32 v{NM+4*qb+r}, v{NM+4*qb+r}, v{m[q3]}")
            a(f"v_mul_f32 v{vL+qb}, v{vL+qb}, v{n[q3]}")
            for j in range(4):
                for r in range(4): a(f"v_mul_f32 v{OW+(j*6+qb)*4+r}, v{OW+(j*6+qb)*4+r}, v{n[q3]}")
            for j in range(4):
                t = [vSTS, vSTS + 1, vSTS + 2, vSTS + 3]
                for r in range(4): a(f"v_accvgpr_read_b32 v{t[r]}, a{(j*6+qb)*4+r}")
                for r in range(4): a(f"v_mul_f32 v{t[r]}, v{t[r]}, v{n[q3]}")
                for r in range(4): a(f"v_accvgpr_write_b32 a{(j*6+qb)*4+r}, v{t[r]}")
        for c, t in self.sm_stream(h, T=vST, check=False): a(t)
        a(f"s_nop 1\ns_setpc_b64 s[{sRET}:{sRET+1}]")

    def mk(self, kind, h, items, **kw):
        return dict(kind=kind, h=h, items=items, **kw)
    def pv_groups(self, h, first=False, after=None, js=range(8)):
        if self.pvorder == 0:
            return [self.mk("pv", h, [(j, q3) for q3 in range(3)], first=first, after=[(lambda j=j: after(j))] if after else []) for j in js]
        seq = [(j, q3) for q3 in range(3) for j in range(8)]
        out = []
        for g in range(8):
            it = seq[3 * g:3 * g + 3]
            aft = []
            if after:
                if self.pv_after_k:
                    aft = [(lambda j=g: after(j))]
                else:
                    aft = [(lambda j=j: after(j)) for j, q3 in it if q3 == 2]
            out.append(self.mk("pv", h, it, first=first, after=aft))
        return out
    def qk_groups(self, h):
        if self.qkorder == 0:
            return [self.mk("qk", h, [(f, q3) for q3 in range(3)]) for f in range(8)]
        seq = [(4 * kb + s, q3) for kb in range(2) for q3 in range(3) for s in range(4)]
        return [self.mk("qk", h, seq[3 * g:3 * g + 3]) for g in range(8)]

    def run(self, groups, vq, target, keep=False):
        a = self.a
        cum = 0.0; m = 0
        if not keep: self.ready = {}
        for gi, g in enumerate(groups):
            kind, h = g["kind"], g["h"]
            if g.get("check") is not None:
                vq[0:0] = [(c, t, 0) for c, t in self.check_branch(g["check"])]
                cum += 1
            dma = g.get("dma")
            if self.pad: a(f"s_nop {self.pad-1}")
            if dma and dma[0]: a(dma[0]); cum += 1
            for n, (j, q3) in enumerate(g["items"]):
                qb = 3 * h + q3
                n0 = len(a.lines)
                self.need(("V" if kind == "pv" else "K", j))
                cum += len(a.lines) - n0
                if kind == "pv":
                    c = "0" if g.get("first") else Or(j, qb)
                    a(f"{MF} {Or(j,qb)}, {ar(VF+4*j,4)}, {vr(P+4*qb,4)}, {c}")
                    self.ready[("pv", j, qb)] = len(a.lines)
                else:
                    kb, s = j >> 2, j & 3
                    c = vr(NM + 4 * qb, 4) if s == 0 else vr(Si(kb, qb), 4)
                    a(f"{MF} {vr(Si(kb,qb),4)}, {ar(KF+4*j,4)}, {Qf(s,qb)}, {c}")
                    if s == 3: self.ready[(h, kb, q3)] = len(a.lines)
                cur = 0
                if n == 0 and dma:
                    a(dma[1]); cur += self.dma_cost
                if n == 2:
                    n0 = len(a.lines)
                    for fn in g.get("after", []): fn()
                    cur += (len(a.lines) - n0) * self.ds_cost
                m += 1
                while vq and self.gate_ok(vq[0][2]) and (cur < 2 or cum + cur + vq[0][0] <= target * m + 0.5):
                    if cur >= 2 and cur + vq[0][0] > self.gap_max: break
                    if cur == 1 and vq[0][0] == 2 and cum + cur + 2 > target * m + 1.5: break
                    c, t, _ = vq.pop(0)
                    a(t); cur += c
                cum += max(cur, 0)

    def tlb_warm(self):
        a = self.a
        for l in self.tail_setup(): a(l)
        a(f"""
        s_mov_b32 s24, s12
        s_mov_b32 s25, s13
        s_mov_b32 s26, {96*128*1024}
        s_mov_b32 s27, 0x20000
        s_mul_i32 s3, s{sB}, 12
        s_lshl_b32 s3, s3, 17
        s_lshl_b32 s{sT0}, s{sH}, 12
        s_add_u32 s3, s3, s{sT0}
        v_and_b32 v238, 15, v{vLANE}
        v_lshlrev_b32 v238, 17, v238
        buffer_load_dword v239, v238, s[24:27], s3 offen sc1
        s_lshl_b32 s3, s{self.sRT}, 19
        v_lshlrev_b32 v238, 13, v{vLANE}
        buffer_load_dword v240, v238, s[24:27], s3 offen sc1
        s_mul_i32 s3, s{self.sRT}, {64*1280}
        v_mul_u32_u24 v238, 1280, v{vLANE}
        buffer_load_dword v241, v238, s[96:99], s3 offen sc1
        v_mov_b32 v238, 4
        global_load_dword v242, v238, s[28:29] sc1
        s_movk_i32 s{sT1}, 128
        """)
    def interval(self, k):
        a = self.a
        slot = k % 4
        H = self.head
        w = self.main_wait(k) if k <= 30 else 0
        if 2 <= k <= 5:
            w = min(self.main_wait(k + 4 * i) for i in range(7))
        w = min(w, self.wcap)
        pcs = [self.kv_piece(t, n, k=k) for n, t in self.main_pieces(k)]
        if 2 <= k <= 5: assert len(pcs) == 8
        if "nodma" in self.abl: pcs = []
        pos = self.dma_pos or [1, 5, 9, 13, 17, 21, 25, 29]
        lead = []
        if k >= 1: lead = [(c, t, 0) for c, t in self.check_branch(0)]
        for d in sorted(set(self.dist)):
            if self.ks == 0 or self.kvstride == 0:
                if k == 0: a(f"s_add_u32 s{sD[d-1]}, s{sKVO}, {d*self.kvstride}")
                else: a(f"s_add_u32 s{sD[d-1]}, s{sD[d-1]}, {self.kvstride}")
            else:
                if k == 0: a(f"s_mov_b32 s{100+(d&1)}, {d}")
                else: a(f"s_add_u32 s{100+(d&1)}, s{100+(d&1)}, 1")
                a(f"""s_and_b32 s3, s{100+(d&1)}, {(1<<self.ks)-1}
                s_lshl_b32 s3, s3, 12
                s_lshr_b32 s{sD[d-1]}, s{100+(d&1)}, {self.ks}
                s_lshl_b32 s{sD[d-1]}, s{sD[d-1]}, {14+self.ks}
                s_add_u32 s{sD[d-1]}, s{sD[d-1]}, s3
                s_add_u32 s{sD[d-1]}, s{sD[d-1]}, s{sKVO}""")
        if "nobar" in self.abl and 0 < k < 31: a(f"s_waitcnt vmcnt({w}) lgkmcnt(0)")
        else: a(f"s_waitcnt vmcnt({w}) lgkmcnt(0)\ns_barrier")
        self.dsq = []
        if k == self.tlbk: self.tlb_warm()
        smA = self.sm_stream(0); smB = self.sm_stream(1)
        if k == 0:
            for f in range(8): self.kread(slot, f)
            for j in range(8): self.vread(slot, j)
            groups = self.qk_groups(0) + self.qk_groups(1)
            for i, pc in enumerate(pcs): groups[i]["dma"] = pc
            vq = self.first_stream(0) + [(c, t, 0) for c, t in smA] + self.first_stream(1) + [(c, t, 0) for c, t in smB[:H]]
            self.run(groups, vq, 3.0)
        else:
            self.pv_after_k = True
            groups = self.pv_groups(0, k == 1, lambda j: self.kread(slot, j)) + self.qk_groups(0)
            self.pv_after_k = False
            groups += self.pv_groups(1, k == 1, lambda j: self.vread(slot, j)) + self.qk_groups(1)
            groups[16]["check"] = 1
            for i, pc in enumerate(pcs): groups[pos[i]]["dma"] = pc
            if self.warm_on(k): groups[self.warm]["dma"] = self.warm_piece()
            vq = lead + [(c, t, 0) for c, t in smB[H:]] + self.gated(smA, 24) + self.gated(smB[:H], 72)
            nB = len(lead) + len(smB) - H
            self.run(groups, vq, self.target)
        for c, t, key in vq:
            if not self.gate_ok(key): a("s_nop 7")
            a(t)

    def main_loop(self):
        a = self.a
        if self.warm:
            a(f"""
            s_lshr_b32 s3, s2, 3
            s_mul_i32 s{sTW}, s3, {128*1280}
            s_mul_i32 s3, s{sW}, {8*1280}
            s_add_u32 s{sTW}, s{sTW}, s3
            s_bfe_u32 s3, s2, 0x10002
            s_mul_i32 s3, s3, 640
            s_add_u32 s{sTW}, s{sTW}, s3
            s_mov_b32 s39, 0
            s_movk_i32 s{sT1}, 128
            v_lshrrev_b32 v{vTW}, 3, v{vLANE}
            v_mul_u32_u24 v{vTW}, 1280, v{vTW}
            v_and_b32 v{vT}, 7, v{vLANE}
            v_lshl_add_u32 v{vTW}, v{vT}, 4, v{vTW}
            """)
        if self.summode == 2: a("v_mov_b32 v250, 0x3f803f80")
        self.interval(0)
        self.interval(1)
        a(f"s_mov_b32 s{sLOOP}, 0")
        a.label("L1_loop")
        for k in range(2, 6): self.interval(k)
        if self.lstamps:
            a(f"s_memrealtime s[100:101]\ns_mov_b32 m0, s{sLOOP}\ns_waitcnt lgkmcnt(0)\nv_writelane_b32 v254, s100, m0")
        a(f"s_add_u32 s{sLOOP}, s{sLOOP}, 1\ns_cmp_lt_u32 s{sLOOP}, 7\ns_cbranch_scc1 L1_loop")
        self.interval(30)
        self.interval(31)
        if self.lstamps:
            a("s_waitcnt lgkmcnt(0)")
            for i in range(7): a(f"v_readlane_b32 s{62+2*i}, v254, {i}\ns_mov_b32 s{63+2*i}, s61")
        self.endgame()

    def flush(self, vq):
        for c, t, key in vq:
            if not self.gate_ok(key): self.a("s_nop 7")
            self.a(t)
        del vq[:]

    def endgame(self):
        a = self.a
        js = [4, 5, 6, 7, 0, 1, 2, 3]
        ML = LDS1 - 4096
        vA, vB, vC = vX, vW, vX2
        mo, lo, g0, g1 = 224, 230, 236, 244
        t = [vST + 0, vST + 1, vST + 2, vST + 3, vST + 4, vST + 5]
        t = [202, 203, 204, 205, 206, 207]
        lead = [(c, tx, 0) for c, tx in self.check_branch(0)]
        setup = f"""v_lshlrev_b32 v{vA}, 4, v{vLANE}
        s_mul_i32 s{sT0}, s{sQH}, {VB0}
        s_mul_i32 s3, s{sKH}, 24576
        s_add_u32 s3, s3, s{sT0}
        v_add_u32 v{vB}, s3, v{vA}
        s_lshl_b32 s3, s{sW}, 10
        s_add_u32 s3, s3, {ML}
        v_and_b32 v{vC}, 15, v{vLANE}
        v_lshlrev_b32 v{vC}, 2, v{vC}
        v_add_u32 v{vC}, s3, v{vC}
        v_xor_b32 v{vW2}, 0x400, v{vC}
        s_xor_b32 s{sT1}, s{sKH}, 1
        s_mul_i32 s3, s{sT1}, 24576
        s_add_u32 s{sKVL}, s3, s{sT0}
        v_add_u32 v{vXD}, s{sKVL}, v{vA}
        s_mul_i32 s3, s{sB}, 12
        s_mul_i32 s{sT0}, s{sQH}, 6
        s_add_u32 s3, s3, s{sT0}
        s_lshl_b32 s3, s3, 7
        s_lshl_b32 s{sT0}, s{sH}, 2
        s_add_u32 s3, s3, s{sT0}
        s_lshl_b32 s{sT0}, s{sKH}, 1
        s_add_u32 s3, s3, s{sT0}
        s_lshl_b32 s3, s3, 10
        v_add_u32 v{vA}, s3, v{vA}
        s_mov_b32 s24, s12
        s_mov_b32 s25, s13
        s_mov_b32 s26, {96*128*1024}
        s_mov_b32 s27, 0x20000""".split("\n")
        vq = lead + [(c, tx, 0) for c, tx in self.sm_stream(1)[self.head:]] + [(1, l.strip(), 0) for l in setup + self.tail_setup()]
        self.run(self.pv_groups(0, js=js), vq, 4.5)
        self.flush(vq)
        for c, tx in self.check_branch(1): a(tx)
        def W(qb, jj): return (1, f"ds_write_b128 v{vB}, {ar((jj*6+qb)*4,4)} offset:{1024*(jj*6+qb)}", ("pv", jj + 4, qb))
        vq = []
        for sw in ("v_permlane16_swap_b32", "v_permlane32_swap_b32"):
            vq += [(1, f"v_mov_b32 v{t[qb]}, v{vL+qb}", 0) for qb in range(6)]
            vq += [(1, f"{sw} v{t[qb]}, v{vL+qb}", 0) for qb in range(6)]
            vq += [(1, f"v_add_f32 v{vL+qb}, v{vL+qb}, v{t[qb]}", 0) for qb in range(6)]
        for qb in range(6):
            vq += [(1, f"ds_write_b32 v{vC}, v{NM+4*qb} offset:{qb*64}", 0), (1, f"ds_write_b32 v{vC}, v{vL+qb} offset:{384+qb*64}", 0)]
        vq += [(1, "s_waitcnt lgkmcnt(0)", 0), (1, "s_barrier", 0)]
        for qb in range(6):
            vq += [(1, f"ds_read_b32 v{mo+qb}, v{vW2} offset:{qb*64}", 0), (1, f"ds_read_b32 v{lo+qb}, v{vW2} offset:{384+qb*64}", 0)]
        vq += [W(qb, jj) for jj in range(4) for qb in range(3)]
        vq += [(1, "s_waitcnt lgkmcnt(12)", 0)]
        for fn in (lambda qb: f"v_min_f32 v{t[qb]}, v{NM+4*qb}, v{mo+qb}",
                   lambda qb: f"v_sub_f32 v{g0+qb}, v{t[qb]}, v{NM+4*qb}",
                   lambda qb: f"v_sub_f32 v{g1+qb}, v{t[qb]}, v{mo+qb}",
                   lambda qb: f"v_exp_f32 v{g0+qb}, v{g0+qb}",
                   lambda qb: f"v_exp_f32 v{g1+qb}, v{g1+qb}",
                   lambda qb: f"v_mul_f32 v{t[qb]}, v{vL+qb}, v{g0+qb}",
                   lambda qb: f"v_fma_f32 v{t[qb]}, v{lo+qb}, v{g1+qb}, v{t[qb]}",
                   lambda qb: f"v_rcp_f32 v{t[qb]}, v{t[qb]}",
                   lambda qb: f"v_mul_f32 v{g0+qb}, v{g0+qb}, v{t[qb]}",
                   lambda qb: f"v_mul_f32 v{g1+qb}, v{g1+qb}, v{t[qb]}"):
            vq += [(1, fn(qb), 0) for qb in range(6)]
        vq += [W(qb, jj) for jj in range(4) for qb in range(3, 6)]
        self.dsq = []
        a("s_waitcnt lgkmcnt(0)")
        self.gap_max_save, self.gap_max = self.gap_max, 8
        self.run(self.pv_groups(1, js=js), vq, 6.0, keep=True)
        self.gap_max = self.gap_max_save
        self.flush(vq)
        self.stamp(7 if self.qstamps else 3) if not self.lstamps else None
        def pair(g, qb):
            r = g + qb
            return (vr(r & ~1, 2), 1 if r & 1 else 0)
        order = [(jj, qb) for qb in range(3) for jj in range(4)] + [(jj, qb) for qb in range(3, 6) for jj in range(4)]
        for jj, qb in order:
            if not self.gate_ok(("pv", jj, qb)): a("s_nop 7")
            pr, sel = pair(g0, qb)
            for e in range(2):
                r = OW + (jj * 6 + qb) * 4 + 2 * e
                a(f"v_pk_mul_f32 {vr(r,2)}, {vr(r,2)}, {pr} op_sel:[0,{sel}] op_sel_hi:[1,{sel}]")
        a("s_waitcnt lgkmcnt(0)\ns_barrier")
        RB = 96
        rd = [(jj, qb) for i in range(2) for qb in range(6) for jj in (2 * i, 2 * i + 1)]
        for jj, qb in rd:
            a(f"ds_read_b128 {vr(RB+(jj*6+qb)*4,4)}, v{vXD} offset:{1024*(jj*6+qb)}")
        self.tail_early()
        st = "sc1"
        n = 0
        for i in range(2):
            for qb in range(6):
                n += 2
                a(f"s_waitcnt lgkmcnt({min(15, 24 - n)})")
                pr, sel = pair(g1, qb)
                for jj in (2 * i, 2 * i + 1):
                    for e in range(2):
                        r = OW + (jj * 6 + qb) * 4 + 2 * e
                        rb = RB + (jj * 6 + qb) * 4 + 2 * e
                        a(f"v_pk_fma_f32 {vr(r,2)}, {vr(rb,2)}, {pr}, {vr(r,2)} op_sel:[0,{sel},0] op_sel_hi:[1,{sel},1]")
                pk = RB + (2 * i * 6 + qb) * 4
                o0, o1 = OW + (2 * i * 6 + qb) * 4, OW + ((2 * i + 1) * 6 + qb) * 4
                a(f"v_cvt_pk_bf16_f32 v{pk}, v{o0}, v{o0+1}")
                a(f"v_cvt_pk_bf16_f32 v{pk+1}, v{o0+2}, v{o0+3}")
                a(f"v_cvt_pk_bf16_f32 v{pk+2}, v{o1}, v{o1+1}")
                a(f"v_cvt_pk_bf16_f32 v{pk+3}, v{o1+2}, v{o1+3}")
                a(f"s_mov_b32 s3, {qb*0x20000}")
                a(f"buffer_store_dwordx4 {vr(pk,4)}, v{vA}, s[24:27], s3 offen offset:{1024*i} {st}")

    def rot_code(self):
        if self.qrot == 0: return f"s_mov_b32 s{sCH}, 0"
        if self.qrot == 1:
            return f"""s_and_b32 s{sCH}, s{sH}, 7
            s_and_b32 s3, s{sB}, 3
            s_lshl_b32 s3, s3, 1
            s_add_u32 s{sCH}, s{sCH}, s3
            s_cmp_ge_u32 s{sCH}, 10
            s_cselect_b32 s3, 10, 0
            s_sub_u32 s{sCH}, s{sCH}, s3"""
        if self.qrot == 2:
            return f"""s_xor_b32 s{sCH}, s{sH}, s{sB}
            s_and_b32 s{sCH}, s{sCH}, 1
            s_mul_i32 s{sCH}, s{sCH}, 5"""
        if self.qrot == 3:
            return f"""s_add_u32 s{sCH}, s{sH}, s{sB}
            s_and_b32 s{sCH}, s{sCH}, 3
            s_mul_i32 s{sCH}, s{sCH}, 3"""
        if self.qrot == 4:
            return f"""s_add_u32 s{sCH}, s{sH}, s{sB}
            s_and_b32 s{sCH}, s{sCH}, 3"""
    def prologue(self):
        a = self.a
        a("s_cmp_ge_u32 s2, 256\ns_cbranch_scc1 L1_end")
        self.stamp(0)
        a(f"""
        s_load_dwordx8 s[4:11], s[0:1], 0
        s_load_dwordx2 s[12:13], s[0:1], 56
        s_load_dwordx4 s[56:59], s[0:1], 32
        s_load_dwordx2 s[28:29], s[0:1], 48
        v_lshrrev_b32 v1, 6, v0
        v_and_b32 v{vLANE}, 63, v0
        s_and_b32 s{sT0}, s2, 7
        v_readfirstlane_b32 s{sW}, v1
        s_lshr_b32 s{sT1}, s2, 3
        s_and_b32 s{sB}, s{sT0}, 1
        s_lshl_b32 s{sB}, s{sB}, 2
        s_and_b32 s3, s{sT1}, 3
        s_or_b32 s{sB}, s{sB}, s3
        s_lshr_b32 s{sH}, s{sT0}, 1
        s_lshl_b32 s{sH}, s{sH}, 3
        s_lshr_b32 s3, s{sT1}, 2
        s_or_b32 s{sH}, s{sH}, s3
        {self.rot_code()}
        v_lshrrev_b32 v1, 4, v{vLANE}             ; g
        v_and_b32 v2, 15, v{vLANE}                ; q
        v_lshlrev_b32 v3, {12+self.ks}, v1
        v_lshl_or_b32 v{vDMA}, v2, 4, v3
        v_lshlrev_b32 v3, 17, v1
        v_lshl_or_b32 v{vWD}, v2, 4, v3
        v_lshrrev_b32 v3, 3, v{vLANE}
        v_and_b32 v4, 7, v{vLANE}
        v_mul_u32_u24 v3, {4*1280}, v3
        v_lshl_add_u32 v{vXD}, v4, 4, v3
        s_lshr_b32 s{sQH}, s{sW}, 1
        s_and_b32 s{sKH}, s{sW}, 1
        s_mul_i32 s{sXB}, s{sW}, {XP}
        s_mul_i32 s{sXS}, s{sW}, 1280
        s_mul_i32 s{sWB}, s{sW}, {4*PIT}
        s_lshl_b32 s{sWS}, s{sKH}, 3
        s_lshl_b32 s3, s{sQH}, 2
        s_or_b32 s{sWS}, s{sWS}, s3
        s_lshl_b32 s{sWS}, s{sWS}, 13
        s_lshl_b32 s{sKVO}, s{sW}, 10
        s_mov_b32 s{sKVL}, s{sWB}
        s_lshl_b32 s{sT0}, s{sB}, 5
        s_add_u32 s{sT0}, s{sT0}, s{sH}
        s_lshl_b32 s{sT1}, s{sT0}, 19
        s_lshr_b32 s{sT0}, s{sT0}, 13
        s_waitcnt lgkmcnt(0)
        s_add_u32 s{SRD_K}, s6, s{sT1}
        s_addc_u32 s{SRD_K+1}, s7, s{sT0}
        s_mov_b32 s{SRD_K+2}, 524288
        s_mov_b32 s{SRD_K+3}, 0x20000
        s_add_u32 s{SRD_V}, s8, s{sT1}
        s_addc_u32 s{SRD_V+1}, s9, s{sT0}
        s_mov_b32 s{SRD_V+2}, 524288
        s_mov_b32 s{SRD_V+3}, 0x20000
        s_mul_i32 s{sT0}, s{sB}, 245760
        s_add_u32 s{SRD_X}, s4, s{sT0}
        s_addc_u32 s{SRD_X+1}, s5, 0
        s_mov_b32 s{SRD_X+2}, 245760
        s_mov_b32 s{SRD_X+3}, 0x20000
        s_lshl_b32 s{sT0}, s{sH}, 8
        s_add_u32 s{SRD_W}, s10, s{sT0}
        s_addc_u32 s{SRD_W+1}, s11, 0
        s_sub_u32 s{SRD_W+2}, {640*8192}, s{sT0}
        s_mov_b32 s{SRD_W+3}, 0x20000
        """)
        a(f"""
        s_mov_b32 s92, s56
        s_mov_b32 s93, s57
        s_mov_b32 s94, {4096*1280}
        s_mov_b32 s95, 0x20000
        s_mul_i32 s{sTW}, s2, 20480
        s_mul_i32 s{sT1}, s{sW}, 5120
        s_add_u32 s{sTW}, s{sTW}, s{sT1}
        v_lshlrev_b32 v{vTW}, 4, v{vLANE}
        """)
        def touch():
            for pc in self.touch_pieces(): self.emit_piece(pc)
        if self.touch == 1: touch()
        if self.qm32:
            assert self.x4
            a(f"""
            v_lshrrev_b32 v3, 3, v{vLANE}
            v_and_b32 v4, 7, v{vLANE}
            v_mul_u32_u24 v3, {8*1280}, v3
            v_lshl_add_u32 v{vXD}, v4, 4, v3
            s_mul_i32 s{sXB}, s{sW}, {2*XP32}
            s_mul_i32 s{sXS}, s{sW}, {2*1280}
            s_mul_i32 s{sWB}, s{sW}, {4*WP32}
            s_lshl_b32 s{sWS}, s{sW}, 15
            """)
        a(f"s_mov_b32 s39, s{sCH}")
        for c in range(3):
            for pc in self.w_pieces(c) + self.x_pieces(c): self.emit_piece(pc)
        if self.x4:
            for pc in self.x_pieces(3): self.emit_piece(pc)
        if self.touch == 2: touch()
        a(f"""
        v_bfe_u32 v3, v{vLANE}, 2, 2              ; r
        v_and_b32 v4, 3, v{vLANE}                 ; c
        v_mul_u32_u24 v5, {PIT}, v2
        v_lshl_add_u32 v5, v1, 4, v5
        s_lshl_b32 s3, s{sKH}, 9
        v_add_u32 v{vK}, s3, v5
        v_lshl_add_u32 v5, v1, 2, v3
        v_mul_u32_u24 v5, {PIT}, v5
        v_lshl_add_u32 v5, v4, 3, v5
        s_mul_i32 s3, s{sKH}, {512+128}
        s_add_u32 s3, s3, {VB0}
        v_add_u32 v{vVA}, s3, v5
        s_mul_i32 s3, s{sKH}, {512-128}
        s_add_u32 s3, s3, {VB0}
        v_add_u32 v{vVB}, s3, v5
        v_mul_u32_u24 v5, {XP}, v4
        v_lshl_add_u32 v5, v3, 7, v5
        v_lshl_add_u32 v5, v1, 4, v5
        s_mul_i32 s3, s{sQH}, 3072
        v_add_u32 v{vX}, s3, v5
        v_and_b32 v5, 1, v1
        v_lshl_add_u32 v5, v5, 2, v3
        v_mul_u32_u24 v5, {PIT}, v5
        v_lshrrev_b32 v6, 1, v1
        v_lshl_add_u32 v5, v6, 8, v5
        v_lshl_add_u32 v5, v4, 3, v5
        s_lshl_b32 s3, s{sKH}, 7
        v_add_u32 v{vW}, s3, v5
        v_lshlrev_b32 v{vKW}, 4, v{vLANE}
        v_add_u32 v{vKW}, s{sKVL}, v{vKW}
        v_add_u32 v{vKW+1}, {VB0}, v{vKW}
        s_mov_b32 s{sTHR[0]}, {f32(THR)}
        """)
        if self.qm32:
            a(f"""
            v_and_b32 v5, 7, v{vLANE}
            v_mul_u32_u24 v5, {XP32}, v5
            v_bfe_u32 v6, v{vLANE}, 3, 2
            v_lshl_add_u32 v5, v6, 7, v5
            v_lshrrev_b32 v6, 5, v{vLANE}
            v_lshl_add_u32 v5, v6, 4, v5
            s_mul_i32 s3, s{sQH}, {12*128}
            v_add_u32 v{vX}, s3, v5
            v_lshl_add_u32 v5, v6, 3, v3
            v_mul_u32_u24 v5, {WP32}, v5
            v_bfe_u32 v6, v{vLANE}, 4, 1
            v_lshl_add_u32 v5, v6, 5, v5
            v_lshl_add_u32 v5, v4, 3, v5
            s_lshl_b32 s3, s{sKH}, 7
            v_add_u32 v{vW}, s3, v5
            """)
        for i in range(24): a(f"v_mov_b32 v{NM+i}, 0")
        for i in range(6): a(f"v_mov_b32 v{vL+i}, 0")

    def q_pack_setup(self):
        rlo, rhi, wlo, whi = vT, vT + 1, vT + 2, vT + 3
        self.a(f"""
        s_mul_i32 s{sT0}, s{sQH}, {96*QP}
        s_add_u32 s{sT0}, s{sT0}, {QA1}
        s_cmp_eq_u32 s{sQH}, 0
        s_mov_b32 s{sT1}, {3*TS}
        s_cselect_b32 s{sT1}, {QA1 + 48*QP}, s{sT1}
        v_and_b32 v{vT+4}, 15, v{vLANE}
        v_mul_u32_u24 v{vT+4}, {QP}, v{vT+4}
        v_lshrrev_b32 v{vT+5}, 4, v{vLANE}
        v_lshl_add_u32 v{vT+6}, v{vT+5}, 4, v{vT+4}
        v_add_u32 v{rlo}, s{sT0}, v{vT+6}
        v_add_u32 v{rhi}, s{sT1}, v{vT+6}
        v_lshl_add_u32 v{vT+6}, v{vT+5}, 3, v{vT+4}
        s_lshl_b32 s{sXO}, s{sKH}, 7
        v_add_u32 v{vT+6}, s{sXO}, v{vT+6}
        v_add_u32 v{wlo}, s{sT0}, v{vT+6}
        v_add_u32 v{whi}, s{sT1}, v{vT+6}
        v_mov_b32 v{vT+4}, {f32(CSC)}
        """)
    def q_pack(self, db, qb):
        wlo, whi = vT + 2, vT + 3
        acc = QACC + (db * 6 + qb) * 4
        cs = vr(vT + 4, 2)
        assert (vT + 4) % 2 == 0
        return [f"v_pk_mul_f32 {vr(acc,2)}, {vr(acc,2)}, {cs} op_sel_hi:[1,0]",
                f"v_pk_mul_f32 {vr(acc+2,2)}, {vr(acc+2,2)}, {cs} op_sel_hi:[1,0]",
                f"v_cvt_pk_bf16_f32 v{acc}, v{acc}, v{acc+1}",
                f"v_cvt_pk_bf16_f32 v{acc+1}, v{acc+2}, v{acc+3}",
                f"ds_write_b64 v{wlo if qb < 3 else whi}, {vr(acc,2)} offset:{(qb%3)*16*QP + db*32}"]
    def qphase(self):
        a = self.a
        order = ["c0"] * 10 + ["c1"] * 10 + ["c2"] * 10
        if self.x4: order += ["c3"] * 6
        if self.touch == 2: order += ["t"] * 5
        kvl = [(t, n) for t in range(3) for n in range(8) if t < self.pre[n]]
        def next_kv():
            if not kvl: return None
            t, n = kvl.pop(0)
            order.append(f"kv{t}")
            if self.x4: return self.kv_piece(t, n, reg=KVR + 32 * t)
            return self.kv_piece(0, n) if t == 0 else self.kv_piece(t, n, reg=KVR + 32 * (t - 1))
        for _ in range(self.early.get(-1, 0)): self.emit_piece(next_kv())
        def xf(st, s, qb): return QSET[st] + (s * 6 + qb) * 4
        def wf(st, s, db): return QSET[st] + 48 + (s * 4 + db) * 4
        def reads(c):
            st = c & 1
            a(f"v_add_u32 v{vX2}, {self.xslot(c)}, v{vX}")
            a(f"v_add_u32 v{vW2}, {self.wslot(c)}, v{vW}")
            out = []
            for s in range(2):
                for qb in range(6):
                    out.append(f"ds_read_b128 {ar(xf(st,s,qb),4)}, v{vX2} offset:{qb*512 + s*64}")
                for db in range(4):
                    for u in range(2):
                        out.append(f"ds_read_b64_tr_b16 {ar(wf(st,s,db)+2*u,2)}, v{vW2} offset:{u*8*PIT + s*512 + db*32}")
            return out
        def after(tag):
            idx = [i for i, t in enumerate(order) if t == tag]
            if not idx: return 63
            return len(order) - 1 - idx[-1]
        a(f"s_waitcnt vmcnt({after('c0')})\ns_barrier")
        self.stamp(1)
        for r in reads(0): a(r)
        for c in range(10):
            if c + 1 < 10: a(f"s_waitcnt vmcnt({min(63, after(f'c{c+1}'))}) lgkmcnt(0)")
            else: a("s_waitcnt lgkmcnt(0)")
            a("s_barrier")
            rd = reads(c + 1) if c + 1 < 10 else []
            if "qnolds" in self.abl: rd = []
            todo = []
            xa = 4 if self.x4 else 3
            if c + 3 < 10: todo += [(f"c{c+3}", pc) for pc in self.w_pieces(c + 3)]
            if c + xa < 10: todo += [(f"c{c+xa}", pc) for pc in self.x_pieces(c + xa)]
            todo += [("kv", None)] * self.early.get(c, 0)
            if self.touch == 10 + c: todo += [("t", pc) for pc in self.touch_pieces()]
            st = c & 1
            NG = self.qng
            g = 0
            seq = [(s, db, hh) for s in range(2) for db in range(4) for hh in range(2)]
            packq = []
            if c == 9:
                seq = [(s, db, hh) for db in range(4) for hh in range(2) for s in range(2)]
                self.q_pack_setup()
            for (s, db, hh) in seq:
                if True:
                    if True:
                        mine = todo[(g * len(todo) + NG - 1) // NG:((g + 1) * len(todo) + NG - 1) // NG]
                        pcs = []
                        for kind, pc in mine:
                            if kind[0] == "c": order.append(kind); pcs.append(pc)
                            elif kind == "t": order.append("t"); pcs.append(pc)
                            else:
                                pc = next_kv()
                                if pc: pcs.append(pc)
                        if pcs and pcs[0][0]: a(pcs[0][0])
                        for q3 in range(3):
                            qb = 3 * hh + q3
                            acc = QACC + (db * 6 + qb) * 4
                            cc = "0" if (c == 0 and s == 0) else vr(acc, 4)
                            a(f"{MF} {vr(acc,4)}, {ar(wf(st,s,db),4)}, {ar(xf(st,s,qb),4)}, {cc}")
                            if c == 9:
                                for _ in range(3):
                                    if packq and packq[0][0] <= g - 3: a(packq.pop(0)[1])
                        if c == 9 and s == 1:
                            for q3 in range(3):
                                packq += [(g, l) for l in self.q_pack(db, 3 * hh + q3)]
                        if pcs: a(pcs[0][1])
                        for pc in pcs[1:]: self.emit_piece(pc)
                        ng = self.qrg
                        for r in rd[(g * 28) // ng:((g + 1) * 28) // ng]: a(r)
                        g += 1
                        for t, cw in (((0, self.kvw[0]), (1, self.kvw[1])) if self.x4 else ((1, self.kvw[0]), (2, self.kvw[1]))):
                            if c == cw and g == 12 and f"kv{t}" in order:
                                assert not any(tt == t for tt, _ in kvl)
                                a(f"s_waitcnt vmcnt({after(f'kv{t}')})")
                                for n in [n for n in range(8) if t < self.pre[n]]:
                                    a(f"ds_write_b128 v{vKW + (n & 1)}, {ar(KVR+32*(t-(0 if self.x4 else 1))+4*n,4)} offset:{t*TS + (n>>1)*PIT}")
            if self.qstamps and c in (2, 5, 8, 9): self.stamp({2: 3, 5: 4, 8: 5, 9: 6}[c])
        assert not kvl
        a('s_waitcnt vmcnt(0)') if False else None
        rlo, rhi = vT, vT + 1
        a("s_nop 4")
        for _, l in packq: a(l)
        a("s_waitcnt lgkmcnt(0)\ns_barrier")
        for s in range(4):
            for qb in range(6):
                a(f"ds_read_b128 {Qf(s,qb)}, v{rlo if qb < 3 else rhi} offset:{(qb%3)*16*QP + s*64}")
        self.stamp(2)

    def q_pack_setup32(self):
        rlo, rhi = vT, vT + 1
        w3 = [vT + 2, vT + 3, vT + 6]
        self.a(f"""
        s_mul_i32 s{sT0}, s{sQH}, {96*QP}
        s_add_u32 s{sT0}, s{sT0}, {QA1}
        s_cmp_eq_u32 s{sQH}, 0
        s_mov_b32 s{sT1}, {3*TS}
        s_cselect_b32 s{sT1}, {QA1 + 48*QP}, s{sT1}
        v_and_b32 v{vT+4}, 15, v{vLANE}
        v_mul_u32_u24 v{vT+4}, {QP}, v{vT+4}
        v_lshrrev_b32 v{vT+5}, 4, v{vLANE}
        v_lshl_add_u32 v{vT+6}, v{vT+5}, 4, v{vT+4}
        v_add_u32 v{rlo}, s{sT0}, v{vT+6}
        v_add_u32 v{rhi}, s{sT1}, v{vT+6}
        v_and_b32 v{vT+4}, 31, v{vLANE}
        v_mul_u32_u24 v{vT+4}, {QP}, v{vT+4}
        v_lshrrev_b32 v{vT+5}, 5, v{vLANE}
        v_lshl_add_u32 v{vT+4}, v{vT+5}, 3, v{vT+4}
        s_lshl_b32 s{sXO}, s{sKH}, 7
        v_add_u32 v{vT+4}, s{sXO}, v{vT+4}
        v_add_u32 v{w3[0]}, s{sT0}, v{vT+4}
        s_add_u32 s{sXO}, s{sT1}, {16*QP}
        v_add_u32 v{w3[2]}, s{sXO}, v{vT+4}
        s_add_u32 s{sT0}, s{sT0}, {32*QP}
        s_sub_u32 s{sT1}, s{sT1}, {16*QP}
        v_add_u32 v{w3[1]}, s{sT0}, v{vT+4}
        v_add_u32 v{vT+5}, s{sT1}, v{vT+4}
        v_and_b32 v{vT+4}, 16, v{vLANE}
        v_cmp_ne_u32 vcc, 0, v{vT+4}
        v_mov_b32 v{vT+4}, {f32(CSC)}
        s_nop 0
        v_cndmask_b32 v{w3[1]}, v{w3[1]}, v{vT+5}, vcc
        """)
    def q_pack32(self, db, qb):
        w3 = [vT + 2, vT + 3, vT + 6]
        cs = vr(vT + 4, 2)
        out = []
        for rq in range(4):
            acc = QACC + (db * 3 + qb) * 16 + 4 * rq
            out += [f"v_pk_mul_f32 {vr(acc,2)}, {vr(acc,2)}, {cs} op_sel_hi:[1,0]",
                    f"v_pk_mul_f32 {vr(acc+2,2)}, {vr(acc+2,2)}, {cs} op_sel_hi:[1,0]",
                    f"v_cvt_pk_bf16_f32 v{acc}, v{acc}, v{acc+1}",
                    f"v_cvt_pk_bf16_f32 v{acc+1}, v{acc+2}, v{acc+3}",
                    f"ds_write_b64 v{w3[qb]}, {vr(acc,2)} offset:{db*64 + rq*16}"]
        return out
    def qphase32(self):
        a = self.a
        order = ["c0"] * 10 + ["c1"] * 10 + ["c2"] * 10
        if self.x4: order += ["c3"] * 6
        if self.touch == 2: order += ["t"] * 5
        kvl = [(t, n) for t in range(3) for n in range(8) if t < self.pre[n]]
        def next_kv():
            if not kvl: return None
            t, n = kvl.pop(0)
            order.append(f"kv{t}")
            if self.x4: return self.kv_piece(t, n, reg=KVR + 32 * t)
            return self.kv_piece(0, n) if t == 0 else self.kv_piece(t, n, reg=KVR + 32 * (t - 1))
        for _ in range(self.early.get(-1, 0)): self.emit_piece(next_kv())
        def xf(st, s, qb): return QSET[st] + (s * 3 + qb) * 4
        def wf(st, s, db): return QSET[st] + 48 + (s * 2 + db) * 4
        def reads(c):
            st = c & 1
            a(f"v_add_u32 v{vX2}, {self.xslot(c)}, v{vX}")
            a(f"v_add_u32 v{vW2}, {self.wslot(c)}, v{vW}")
            out = []
            for s in range(4):
                for qb in range(3):
                    out.append(f"ds_read_b128 {ar(xf(st,s,qb),4)}, v{vX2} offset:{qb*512 + s*32}")
                for db in range(2):
                    for u in range(2):
                        out.append(f"ds_read_b64_tr_b16 {ar(wf(st,s,db)+2*u,2)}, v{vW2} offset:{4*u*WP32 + s*256 + db*64}")
            return out
        def after(tag):
            idx = [i for i, t in enumerate(order) if t == tag]
            if not idx: return 63
            return len(order) - 1 - idx[-1]
        a(f"s_waitcnt vmcnt({after('c0')})\ns_barrier")
        self.stamp(1)
        for r in reads(0): a(r)
        for c in range(10):
            if c + 1 < 10: a(f"s_waitcnt vmcnt({min(63, after(f'c{c+1}'))}) lgkmcnt(0)")
            else: a("s_waitcnt lgkmcnt(0)")
            a("s_barrier")
            rd = reads(c + 1) if c + 1 < 10 else []
            if "qnolds" in self.abl: rd = []
            todo = []
            xa = 4 if self.x4 else 3
            if c + 3 < 10: todo += [(f"c{c+3}", pc) for pc in self.w_pieces(c + 3)]
            if c + xa < 10: todo += [(f"c{c+xa}", pc) for pc in self.x_pieces(c + xa)]
            todo += [("kv", None)] * self.early.get(c, 0)
            if self.touch == 10 + c: todo += [("t", pc) for pc in self.touch_pieces()]
            st = c & 1
            NG = self.qng
            g = 0
            seq = [(s, db, qb) for s in range(4) for db in range(2) for qb in range(3)]
            packq = []
            if c == 9:
                seq = [(s, db, qb) for db in range(2) for qb in range(3) for s in range(4)]
            NG = self.qng32
            for (s, db, qb) in seq:
                mine = todo[(g * len(todo) + NG - 1) // NG:((g + 1) * len(todo) + NG - 1) // NG]
                pcs = []
                for kind, pc in mine:
                    if kind[0] == "c" or kind == "t": order.append(kind); pcs.append(pc)
                    else:
                        pc = next_kv()
                        if pc: pcs.append(pc)
                if pcs and pcs[0][0]: a(pcs[0][0])
                acc = QACC + (db * 3 + qb) * 16
                cc = "0" if (c == 0 and s == 0) else vr(acc, 16)
                a(f"{MF32} {vr(acc,16)}, {ar(wf(st,s,db),4)}, {ar(xf(st,s,qb),4)}, {cc}")
                if c == 9:
                    mark = len(a.lines)
                    if g == 4: self.q_pack_setup32()
                    for _ in range(5):
                        if packq and sum(1 for l in a.lines[packq[0][0]:] if l.strip()) >= 12: a(packq.pop(0)[1])
                    if s == 3: packq += [(mark, l) for l in self.q_pack32(db, qb)]
                if pcs: a(pcs[0][1])
                for pc in pcs[1:]: self.emit_piece(pc)
                ng = self.qrg32
                for r in rd[(g * 28) // ng:((g + 1) * 28) // ng]: a(r)
                g += 1
                for t, cw in ((0, self.kvw[0]), (1, self.kvw[1])):
                    if c == cw and g == 18 and f"kv{t}" in order:
                        assert not any(tt == t for tt, _ in kvl)
                        a(f"s_waitcnt vmcnt({after(f'kv{t}')})")
                        for n in [n for n in range(8) if t < self.pre[n]]:
                            a(f"ds_write_b128 v{vKW + (n & 1)}, {ar(KVR+32*t+4*n,4)} offset:{t*TS + (n>>1)*PIT}")
            if self.qstamps and c in (2, 5, 8, 9): self.stamp({2: 3, 5: 4, 8: 5, 9: 6}[c])
        assert not kvl
        a('s_waitcnt vmcnt(0)') if False else None
        rlo, rhi = vT, vT + 1
        a("s_nop 11")
        for _, l in packq: a(l)
        a("s_waitcnt lgkmcnt(0)\ns_barrier")
        for s in range(4):
            for qb in range(6):
                a(f"ds_read_b128 {Qf(s,qb)}, v{rlo if qb < 3 else rhi} offset:{(qb%3)*16*QP + s*64}")
        self.stamp(2)

    def signal(self):
        a = self.a
        lab = a.newlabel("L_nosig")
        a(f"""
        s_cmp_lg_u32 s{sW}, 0
        s_cbranch_scc1 {lab}
        s_lshl_b32 s3, s{sB}, 5
        v_mov_b32 v254, s3
        v_mov_b32 v255, 1
        s_mov_b64 exec, 1
        global_atomic_add v254, v255, s[28:29] sc1
        s_mov_b64 exec, -1
        {lab}:
        """)
    def poll(self, sBATCH):
        a = self.a
        lab = a.newlabel("L_nopoll"); lp = a.newlabel("L_poll")
        a(f"""
        s_cmp_lg_u32 s{sW}, 0
        s_cbranch_scc1 {lab}
        s_lshl_b32 s3, s{sBATCH}, 5
        s_mov_b32 s{sLOOP}, 0
        v_mov_b32 v254, s3
        {lp}:
        global_load_dword v255, v254, s[28:29] sc1
        s_add_u32 s{sLOOP}, s{sLOOP}, 1
        s_waitcnt vmcnt(0)
        v_cmp_ne_u32 vcc, 32, v255
        s_cmp_gt_u32 s{sLOOP}, 0x40000
        s_cbranch_scc1 {lab}
        s_cbranch_vccz {lab}
        s_sleep 1
        s_branch {lp}
        {lab}:
        """)

    T_vO = [224, 225, 226, 227]; T_vA = [228, 229, 230, 231]; T_vE = [232, 233, 234, 235]
    T_vWD, T_vT2 = 250, 251
    sRT, sCT, sKW, sKO, sWOFF, sBATCH, sRX, sJ = 42, 43, 44, 48, 49, 50, 51, 38
    def tail_setup(self):
        sRT, sCT, sKW, sKO, sWOFF, sBATCH, sRX, sJ = self.sRT, self.sCT, self.sKW, self.sKO, self.sWOFF, self.sBATCH, self.sRX, self.sJ
        vWD2, t = self.T_vWD, self.T_vT2
        txt = f"""
        s_and_b32 s{sT0}, s2, 7
        s_lshr_b32 s{sJ}, s2, 3
        s_mul_i32 s{sRT}, s{sJ}, 52
        s_lshr_b32 s{sRT}, s{sRT}, 8
        s_mul_i32 s{sCT}, s{sRT}, 5
        s_sub_u32 s{sCT}, s{sJ}, s{sCT}
        s_mov_b32 s{sKW}, 0
        s_mov_b32 s{sKO}, 0
        s_and_b32 s3, s{sT0}, 1
        s_mul_i32 s3, s3, 12
        s_add_u32 s{sRT}, s{sRT}, s3
        s_bfe_u32 s3, s{sT0}, 0x10001
        s_mul_i32 s3, s3, 6
        s_add_u32 s{sRT}, s{sRT}, s3
        s_lshr_b32 s3, s{sT0}, 2
        s_mul_i32 s3, s3, 5
        s_add_u32 s{sCT}, s{sCT}, s3
        s_mul_i32 s{sBATCH}, s{sRT}, 86
        s_lshr_b32 s{sBATCH}, s{sBATCH}, 8
        s_mov_b32 s96, s58
        s_mov_b32 s97, s59
        s_mov_b32 s98, {1536*1280}
        s_mov_b32 s99, 0x20000
        s_mul_i32 s{sWOFF}, s{sW}, {32*1280}
        s_lshl_b32 s3, s{sCT}, 7
        s_add_u32 s{sWOFF}, s{sWOFF}, s3
        s_mul_i32 s{sRX}, s{sW}, 12288
        s_add_u32 s{sRX}, s{sRX}, {116736 - 12288}
        s_cmp_eq_u32 s{sW}, 0
        s_cselect_b32 s{sRX}, 49152, s{sRX}
        v_lshrrev_b32 v{vWD2}, 3, v{vLANE}
        v_mul_u32_u24 v{vWD2}, 1280, v{vWD2}
        v_bfe_u32 v{t}, v{vLANE}, 4, 2
        v_lshlrev_b32 v{t}, 1, v{t}
        v_xor_b32 v{t}, v{t}, v{vLANE}
        v_and_b32 v{t}, 7, v{t}
        v_lshl_add_u32 v{vWD2}, v{t}, 4, v{vWD2}
        """
        return [l.strip() for l in txt.strip().split("\n")]
    def wo_issue(self, i):
        a = self.a
        sl = i % 9
        base = f"s{self.sRX}, {sl*4096}" if sl < 3 else f"s{sKVL}, {(sl-3)*4096}"
        a(f"s_add_u32 s3, s{self.sWOFF}, {i*128*1280}")
        a(f"s_add_u32 m0, {base}")
        for pc in range(4):
            if pc: a(f"s_add_u32 m0, m0, 1024\ns_add_u32 s3, s3, {8*1280}")
            else: a("s_nop 0")
            a(f"buffer_load_dwordx4 v{self.T_vWD}, s[92:95], s3 offen lds")
            self.vq.append(("W", i))
    def tail_early(self):
        a = self.a
        self.vq = []
        a(f"s_cmp_ge_u32 s{self.sJ}, 30\ns_cbranch_scc1 L1_noearly")
        for i in range(3): self.wo_issue(i)
        a("L1_noearly:")
        self.vq += [("S", 0)] * 12

    def tail(self):
        a = self.a
        NS, nR, PDA, NST = 9, self.nR, self.PDA, 32
        ACC, AR, BV = 0, 64, 160
        assert AR + 16 * PDA <= BV and nR <= 20
        vO, vA, vE, vT2 = self.T_vO, self.T_vA, self.T_vE, self.T_vT2
        sRT, sCT, sBATCH = self.sRT, self.sCT, self.sBATCH
        vq = self.vq
        def blk(i, off, n):
            b = i % nR
            return ar(16 * b + off, n) if b < 16 else vr(BV + 16 * (b - 16) + off, n)
        a(f"s_cmp_ge_u32 s{self.sJ}, 30\ns_cbranch_scc1 L1_notile")
        def vwait(tag):
            idx = [n for n, t in enumerate(vq) if t == tag]
            if not idx: return
            cnt = len(vq) - 1 - idx[-1]
            assert cnt <= 63
            a(f"s_waitcnt vmcnt({cnt})")
            del vq[:idx[-1] + 1]
        def wo_read(i):
            sl = i % NS
            ad, off = (vE, sl * 4096) if sl < 3 else (vA, (sl - 3) * 4096)
            for nb in range(4):
                for u in range(2):
                    a(f"ds_read_b64_tr_b16 {blk(i,4*nb+2*u,2)}, v{ad[nb]} offset:{off + u*2048}")
        for i in range(3, NS): self.wo_issue(i)
        z = vO[3]
        a(f"""
        v_lshrrev_b32 v{vT2}, 2, v{vLANE}
        v_lshlrev_b32 v{z}, 7, v{vT2}
        v_bfe_u32 v{vT2}, v{vT2}, 1, 2
        v_lshl_or_b32 v{z}, v{vT2}, 5, v{z}
        v_and_b32 v{vT2}, 3, v{vLANE}
        v_lshl_or_b32 v{z}, v{vT2}, 3, v{z}
        v_xor_b32 v{vO[0]}, 32, v{z}
        v_xor_b32 v{vO[1]}, 64, v{z}
        v_xor_b32 v{vO[2]}, 96, v{z}
        v_add_u32 v{vA[0]}, s{sKVL}, v{z}
        v_add_u32 v{vA[1]}, s{sKVL}, v{vO[0]}
        v_add_u32 v{vA[2]}, s{sKVL}, v{vO[1]}
        v_add_u32 v{vA[3]}, s{sKVL}, v{vO[2]}
        v_add_u32 v{vE[0]}, s{self.sRX}, v{z}
        v_add_u32 v{vE[1]}, s{self.sRX}, v{vO[0]}
        v_add_u32 v{vE[2]}, s{self.sRX}, v{vO[1]}
        v_add_u32 v{vE[3]}, s{self.sRX}, v{vO[2]}
        s_lshl_b32 s3, s{sRT}, 19
        s_lshl_b32 s{sT0}, s{sW}, 10
        s_add_u32 s3, s3, s{sT0}
        v_lshlrev_b32 v{vT2}, 4, v{vLANE}
        v_add_u32 v{vO[0]}, s3, v{vT2}
        v_add_u32 v{vO[1]}, 0x20000, v{vO[0]}
        v_add_u32 v{vO[2]}, 0x40000, v{vO[0]}
        v_add_u32 v{vO[3]}, 0x60000, v{vO[0]}
        """)
        nextW = NS
        for i in range(3):
            vwait(("W", i))
            wo_read(i)
        a("s_waitcnt lgkmcnt(0)")
        for i in range(3): self.wo_issue(nextW); nextW += 1
        vwait(("S", 0))
        a("s_barrier")
        self.stamp(4)
        self.signal()
        def o_issue(i):
            b = AR + 16 * (i % PDA)
            a(f"s_mov_b32 s{sT1}, {i*4096}")
            for qb in range(4):
                a(f"buffer_load_dwordx4 {vr(b+4*qb,4)}, v{vO[qb]}, s[24:27], s{sT1} offen sc1")
                vq.append(("O", i))
        for i in range(3, nR):
            if i == self.xB:
                self.stamp(5)
                self.poll(sBATCH)
                a("s_barrier")
                self.stamp(6)
                for n in range(PDA): o_issue(n)
            vwait(("W", i))
            wo_read(i)
            if i >= 4 and nextW < NST:
                a("s_waitcnt lgkmcnt(8)")
                self.wo_issue(nextW); nextW += 1
        a("s_waitcnt lgkmcnt(0)")
        self.wo_issue(nextW); nextW += 1
        assert nextW == nR + NS
        if self.xB >= nR:
            self.stamp(5)
            self.poll(sBATCH)
            a("s_barrier")
            self.stamp(6)
            for n in range(PDA): o_issue(n)
        pend = None
        def capture(fn, *args):
            n0 = len(a.lines)
            fn(*args)
            out = a.lines[n0:]
            del a.lines[n0:]
            return out
        for i in range(NST):
            blkA = AR + 16 * (i % PDA)
            vwait(("O", i))
            if i == NST - nR + 2: a("s_waitcnt lgkmcnt(0)")
            fill = []
            if i >= 1:
                if i - 1 + PDA < NST: fill += capture(o_issue, i - 1 + PDA)
                if i - 1 + nR < NST:
                    fill += capture(vwait, ("W", i - 1 + nR)) + capture(wo_read, i - 1 + nR)
                if pend is not None:
                    fill += ["    s_waitcnt lgkmcnt(8)"] + capture(self.wo_issue, pend); pend = None
                if i - 1 + nR < NST and nextW < NST:
                    pend = nextW; nextW += 1
            fi = 0
            for mi in range(16):
                nb, qb = mi // 4, mi % 4
                acc = ACC + 4 * mi
                cc = "0" if i == 0 else vr(acc, 4)
                a(f"{MF} {vr(acc,4)}, {blk(i,4*nb,4)}, {vr(blkA+4*qb,4)}, {cc}")
                tgt = (len(fill) * (mi + 1) + 15) // 16
                while fi < tgt:
                    a.lines.append(fill[fi]); fi += 1
        assert nextW >= NST and pend is None, (nextW, pend)
        a(f"""
        s_lshl_b32 s3, s{sW}, 14
        v_add_u32 v{vA[0]}, s3, v{vT2}
        s_lshl_b32 s3, s{sW}, 12
        v_add_u32 v{vA[1]}, s3, v{vT2}
        s_nop 3
        s_barrier
        """)
        for j in range(16): a(f"ds_write_b128 v{vA[0]}, {vr(ACC+4*j,4)} offset:{1024*j}")
        a(f"""
        s_lshl_b32 s3, s{sRT}, 6
        s_mul_i32 s3, s3, 1280
        s_lshl_b32 s{sT1}, s{sCT}, 7
        s_add_u32 s3, s3, s{sT1}
        s_lshl_b32 s{sT0}, s{sW}, 5
        s_add_u32 s3, s3, s{sT0}
        v_and_b32 v64, 15, v{vLANE}
        v_mul_u32_u24 v64, 1280, v64
        v_lshrrev_b32 v65, 4, v{vLANE}
        v_lshl_add_u32 v64, v65, 3, v64
        v_add_u32 v64, s3, v64
        v_add_u32 v65, {16*1280}, v64
        v_add_u32 v66, {32*1280}, v64
        v_add_u32 v67, {48*1280}, v64
        s_waitcnt lgkmcnt(0)
        s_barrier
        """)
        for j in range(4):
            for w in range(4):
                a(f"ds_read_b128 {vr(16*w+4*j,4)}, v{vA[1]} offset:{w*16384 + 1024*j}")
        for qb in range(4):
            a(f"s_waitcnt lgkmcnt({12-4*qb})")
            for e in range(2):
                r = 4 * qb + 2 * e
                a(f"v_pk_add_f32 {vr(r,2)}, {vr(r,2)}, {vr(16+r,2)}")
                a(f"v_pk_add_f32 {vr(32+r,2)}, {vr(32+r,2)}, {vr(48+r,2)}")
            for e in range(2):
                r = 4 * qb + 2 * e
                a(f"v_pk_add_f32 {vr(r,2)}, {vr(r,2)}, {vr(32+r,2)}")
            a(f"v_cvt_pk_bf16_f32 v{68+2*qb}, v{4*qb}, v{4*qb+1}")
            a(f"v_cvt_pk_bf16_f32 v{69+2*qb}, v{4*qb+2}, v{4*qb+3}")
            a(f"buffer_store_dwordx2 {vr(68+2*qb,2)}, v{64+qb}, s[96:99], 0 offen")
        if self.stamps:
            a("s_waitcnt vmcnt(0)")
            if not (self.lstamps or self.qstamps): self.stamp(7)
            self.stamp_store("L1_end")
        a("s_branch L1_end")
        a.label("L1_notile")
        a("s_waitcnt vmcnt(0)\ns_barrier")
        self.signal()

    def kernel(self):
        a = self.a
        a.begin_kernel("attn_kernel", 256, 256, LDS1, 512, accum=256)
        self.prologue()
        self.qphase32() if self.qm32 else self.qphase()
        self.main_loop()
        if self.stamps and (self.lstamps or self.qstamps):
            st = self.stamps; self.stamps = False
            self.stamp = lambda i: None
            self.stamps = st
        self.tail()
        a.label("L1_end")
        a("s_endpgm")
        for stub, ret, h in self.stubs:
            a.label(stub)
            a(f"s_call_b64 s[{sRET}:{sRET+1}], L_slow{h}\ns_branch {ret}")
        for h in range(2): self.slow_sub(h)

def build(name, **kw):
    g = Gen(**kw)
    g.kernel()
    open(name, "w").write(g.a.text())

def rate(name, ahead, late, **kw):
    dist = tuple(2 if n < ahead else 1 for n in range(8))
    porder = tuple(range(ahead, 8)) + tuple(range(ahead))
    pos = list(range(8 - ahead)) + [late + 2 * i for i in range(ahead)]
    build(name, dist=dist, porder=porder, dma_pos=pos, **kw)

if __name__ == "__main__":
    kw = dict(qkorder=1, PDA=6, dist=(2,)*8, warm=30, xB=17)
    e2 = {3: 4, 4: 4, 5: 4, 6: 4}
    build("f3_s4.s", early=e2, dma_pos=[0, 4, 8, 12, 16, 20, 24, 28], wcap=4, **kw)
    build("f3_s4l.s", early=e2, dma_pos=[0, 4, 9, 14, 19, 22, 25, 28], wcap=4, **kw)
    build("f3_s3e.s", early=e2, dma_pos=[0, 3, 6, 10, 14, 18, 24, 28], wcap=3, **kw)
    kw = dict(qkorder=1, PDA=6, xB=17, early={4: 4, 5: 4, 6: 8})
    rate("f3_a1l.s", 1, 30, warm=31, **kw)
    rate("f3_a1m.s", 1, 27, warm=31, **kw)
    build("f3_b.s", dist=(2, 1, 1, 1, 1, 1, 1, 1), porder=(1, 2, 3, 4, 5, 6, 7, 0), dma_pos=[0, 2, 4, 6, 8, 10, 12, 24], warm=30, **kw)
```

```python
import sys, struct
from asmlib import Asm

def f32(x):
    return "0x%08x" % struct.unpack("<I", struct.pack("<f", x))[0]
def vr(b, n): return f"v[{b}:{b+n-1}]"
def ar(b, n): return f"a[{b}:{b+n-1}]"

PIT = 1056
TS = 16 * PIT
VB0 = 4 * TS
SPARE = 8 * TS
LDS1 = 163840
XP = 6 * 1024 + 32
XSZ = 4 * XP
XST = [TS, TS + XSZ, SPARE]
WST = [VB0 + TS, VB0 + 2 * TS, VB0 + 3 * TS]
QP = 288
QA1 = VB0 + 3 * TS
THR = 4096.0
CSC = 1.4426950408889634 / (128 ** 0.5)
MF = "v_mfma_f32_16x16x32_bf16"
MF32 = "v_mfma_f32_32x32x16_bf16"
XP32, WP32 = 3088, 1088

OW, S, P, NM = 0, 96, 144, 168
QA_, KF, VF = 96, 192, 224
vL, vTS, vT = 192, 198, 202
vTSH = [198, 222]
vSUM = [201, 208]
vST, vSTS = 226, 234
vK, vVA, vVB, vDMA, vLANE = 209, 210, 211, 212, 253
vX, vW, vX2, vW2, vXD, vWD, vKW = 214, 215, 216, 217, 218, 219, 220
QACC = 0
QSET = [0, 80]
KVR = 160

def Or(j, qb):
    return vr(OW + (j * 6 + qb) * 4, 4) if j < 4 else ar(((j - 4) * 6 + qb) * 4, 4)
def Qf(s, qb): return ar(QA_ + 4 * (s * 6 + qb), 4)
def Si(kb, qb): return S + ((qb // 3) * 6 + kb * 3 + qb % 3) * 4

sW, sB, sH = 32, 33, 34
sTHR = [36, 36]
sKVO, sKVL = 40, 41
sCH, sXO, sWO, sT0, sT1 = 42, 43, 44, 45, 46
sLOOP = 47
sXB, sWB, sXS, sWS = 48, 49, 50, 51
sQH, sKH = 52, 53
sRET = 54
sTW = 37
vTW = 252
sD = [30, 31, 35]
SRD_K, SRD_V, SRD_X, SRD_W = 16, 20, 24, 96

class Gen:
    def __init__(self, stamps=False, kvstride=16384, abl=(), early=None, kvw=(8, 9), fused=True, nR=20, xB=12,
                 dma_pos=None, touch=2, om32=False, tstamps=False, st0=True, orot=0, late_st=False, qm32=False, x4=False, ks=0, summode=0, wcap=63, tlbk=-1, dbgst=False, qrot=1, warm=0, qng=16, qrg=12, qng32=22, qrg32=20, pad=0, pvorder=0, qkorder=0, dist=(3,)*8, pre=None, porder=(0, 1, 2, 3, 4, 5, 6, 7), linear=False, korder=0, chain=False, head=12, target=2.4, gap_max=4, ds_cost=1, dma_cost=2, lstamps=False, qstamps=False, PDA=10, tilemap=0):
        self.a = Asm()
        self.__dict__.update(locals())
        if early is None: self.early = {3: 4, 4: 4, 5: 4, 6: 4, 7: 4, 8: 4}
        if pre is None: self.pre = self.dist
        self.dsq = []
        self.stubs = []
        self.src = {}

    def stamp(self, i):
        if self.stamps:
            self.a(f"s_memrealtime s[{60+2*i}:{61+2*i}]")
            self.a(f"s_memtime s[{76+2*i}:{77+2*i}]")
    def stamp_store(self, end):
        a = self.a
        if self.dbgst:
            a(f"""
            s_cmp_eq_u32 s{sW}, 0
            s_cbranch_scc0 {end}
            s_and_b32 s3, s2, 0xef
            s_cmp_eq_u32 s3, 0x60
            s_cbranch_scc0 {end}
            s_waitcnt lgkmcnt(0)
            s_lshr_b32 s3, s2, 4
            s_and_b32 s3, s3, 1
            s_lshl_b32 s3, s3, 5
            v_mov_b32 v1, s3
            """)
            for i in range(1, 8):
                a(f"s_sub_u32 s3, s{60+2*i}, s60\nv_mov_b32 v{3+i}, s3")
            a(f"""
            v_cmp_eq_u32 vcc, 0, v{vLANE}
            s_and_saveexec_b64 s[54:55], vcc
            global_store_dwordx4 v1, v[4:7], s[28:29] offset:4
            global_store_dwordx3 v1, v[8:10], s[28:29] offset:20
            """)
            return
        a(f"""
        s_cmp_eq_u32 s{sW}, 0
        s_cbranch_scc0 {end}
        s_waitcnt lgkmcnt(0)
        s_add_u32 s14, s12, 0x10000000
        s_addc_u32 s15, s13, 0
        s_lshl_b32 s3, s2, 7
        v_mov_b32 v1, s3
        """)
        for i in range(32): a(f"v_mov_b32 v{4+i}, s{60+i}")
        a(f"v_cmp_eq_u32 vcc, 0, v{vLANE}\ns_and_saveexec_b64 s[54:55], vcc")
        for i in range(8): a(f"global_store_dwordx4 v1, v[{4+4*i}:{7+4*i}], s[14:15] offset:{16*i}")

    def ds(self, text, tag):
        self.a(text); self.dsq.append(tag)
    def need(self, tag):
        idx = [i for i, t in enumerate(self.dsq) if t == tag]
        if not idx: return
        cnt = min(len(self.dsq) - 1 - idx[-1], 15)
        self.a(f"s_waitcnt lgkmcnt({cnt})")
        self.dsq = self.dsq[len(self.dsq) - cnt:]

    def toff(self, t):
        if self.kvstride == 0: return 0
        m = 1 << self.ks
        return ((t & (m - 1)) << 12) | ((t >> self.ks) << (14 + self.ks))
    def kv_piece(self, t, n, reg=None, k=None):
        isv, j = n & 1, n >> 1
        srd = SRD_V if isv else SRD_K
        off = f" offset:{j*256}" if j else ""
        pre = ""
        if k is None:
            pre = f"s_add_u32 s{sT1}, s{sKVO}, {self.toff(t)}\n"
            so = sT1
        else:
            so = sD[t - k - 1]
        if reg is None:
            pre += f"s_add_u32 m0, s{sKVL}, {isv*VB0 + (t%4)*TS + j*(PIT-256)}"
            post = f"buffer_load_dwordx4 v{vDMA}, s[{srd}:{srd+3}], s{so} offen{off} nt lds"
        else:
            post = f"buffer_load_dwordx4 {ar(reg+4*n,4)}, v{vDMA}, s[{srd}:{srd+3}], s{so} offen{off} nt"
        return pre.rstrip("\n"), post
    def dist_of(self, n, k):
        return self.dist[n]
    def main_pieces(self, k):
        out = []
        for n in self.porder:
            t = k + self.dist[n]
            if t >= self.pre[n] and (k <= 29 or t <= 31):
                out.append((n, t))
        return out
    def warm_on(self, k): return self.warm and 1 <= k <= 29
    def warm_piece(self):
        pre = f"s_mov_b32 m0, {LDS1-1024}"
        post = f"""buffer_load_dwordx4 v{vTW}, s[92:95], s{sTW} offen lds
        s_add_u32 s39, s39, 1
        s_cmp_eq_u32 s39, 5
        s_cselect_b32 s3, {32*1280-4*128}, s{sT1}
        s_cselect_b32 s39, 0, s39
        s_add_u32 s{sTW}, s{sTW}, s3"""
        return pre, post
    def main_wait(self, k):
        order = []
        for kk in range(0, k):
            order += [t for n, t in self.main_pieces(kk)]
            if self.warm_on(kk): order.append(999)
        idx = [i for i, t in enumerate(order) if t <= k]
        return len(order) - 1 - idx[-1] if idx else len(order)
    def w_pieces(self, c):
        wb = self.wslot(c)
        head = f"""s_lshl_b32 s{sWO}, s{sCH}, 19
        s_add_u32 s{sWO}, s{sWO}, s{sWS}
        s_add_u32 s{sCH}, s{sCH}, 1
        s_cmp_ge_u32 s{sCH}, 10
        s_cselect_b32 s{sCH}, 0, s{sCH}
        """
        W = f"s[{SRD_W}:{SRD_W+3}]"
        return [((head if e == 0 else f"s_add_u32 s{sWO}, s{sWO}, 8192\n") + f"s_add_u32 m0, s{sWB}, {wb + e*(WP32 if self.qm32 else PIT)}",
                 f"buffer_load_dwordx4 v{vWD}, {W}, s{sWO} offen lds") for e in range(4)]
    def x_pieces(self, c):
        xb = self.xslot(c)
        head = f"""s_lshl_b32 s{sXO}, s39, 7
        s_add_u32 s{sXO}, s{sXO}, s{sXS}
        s_add_u32 s39, s39, 1
        s_cmp_ge_u32 s39, 10
        s_cselect_b32 s39, 0, s39
        """
        X = f"s[{SRD_X}:{SRD_X+3}]"
        if self.qm32:
            inc = [0, 64*1280, 64*1280, 1280 - 128*1280, 64*1280, 64*1280]
            return [((head if u == 0 else (f"s_add_u32 s{sXO}, s{sXO}, {inc[u]}\n" if inc[u] > 0 else f"s_sub_u32 s{sXO}, s{sXO}, {-inc[u]}\n"))
                     + f"s_add_u32 m0, s{sXB}, {xb + (u//3)*XP32 + (u%3)*1024}",
                     f"buffer_load_dwordx4 v{vXD}, {X}, s{sXO} offen lds") for u in range(6)]
        return [((head if u == 0 else f"s_add_u32 s{sXO}, s{sXO}, {32*1280}\n") + f"s_add_u32 m0, s{sXB}, {xb + u*1024}",
                 f"buffer_load_dwordx4 v{vXD}, {X}, s{sXO} offen lds") for u in range(6)]
    def xslot(self, c):
        if self.x4: return [0, XSZ, SPARE, 2 * XSZ][{6: 0, 8: 1, 9: 2, 7: 3}[6 + (c - 6) % 4]]
        return XST[(c + 2) % 3]
    def wslot(self, c):
        if self.x4: return 3 * XSZ + ((c - 7) % 3) * (16 * WP32 if self.qm32 else TS)
        return WST[(c + 2) % 3]
    def touch_pieces(self):
        return [(f"s_mov_b32 m0, {LDS1-1024}", f"buffer_load_dwordx4 v{vTW}, s[92:95], s{sTW} offen lds\ns_add_u32 s{sTW}, s{sTW}, 1024") for n in range(5)]
    def emit_piece(self, pc):
        self.a((pc[0] + "\ns_nop 0\n" if pc[0] else "") + pc[1])

    def kread(self, slot, f):
        if "nolds" in self.abl: return
        kb, s = f >> 2, f & 3
        self.ds(f"ds_read_b128 {ar(KF+4*f,4)}, v{vK} offset:{slot*TS + kb*256 + s*64}", ("K", f))
    def vread(self, slot, j):
        if "nolds" in self.abl: return
        ad = vVA if j < 4 else vVB
        for u in range(2):
            self.ds(f"ds_read_b64_tr_b16 {ar(VF+4*j+2*u,2)}, v{ad} offset:{slot*TS + u*256 + j*32}", ("V", j))

    def sm_stream(self, h, T=vT, check=True):
        out = []
        if "nosm" in self.abl: return out
        TSV = vTSH[h]
        pairs = [(kb, q3, e) for kb in range(2) for q3 in range(3) for e in range(2)]
        def tmp(i): return T + (i % 3) * 2
        def ex(i):
            kb, q3, e = pairs[i]
            r = Si(kb, 3 * h + q3) + 2 * e
            self.src[f"v_exp_f32 v{tmp(i)}, v{r}"] = (h, kb, q3)
            out.append((2, f"v_exp_f32 v{tmp(i)}, v{r}"))
            out.append((2, f"v_exp_f32 v{tmp(i)+1}, v{r+1}"))
        ex(0)
        late = []
        for i, (kb, q3, e) in enumerate(pairs):
            if i + 1 < len(pairs): ex(i + 1)
            else: out.append((1, f"v_add_f32 v{vSUM[h]}, v{TSV}, v{TSV+1}"))
            t = tmp(i)
            pr = P + 4 * (3 * h + q3) + 2 * kb + e
            cv = (1, f"v_cvt_pk_bf16_f32 v{pr}, v{t}, v{t+1}")
            if self.summode == 1:
                acc2 = 238 + 6 * h + 2 * q3
                if kb == 0 and e == 0: out.append((1, f"v_pk_add_f32 {vr(acc2,2)}, {vr(t,2)}, 0"))
                else: out.append((1, f"v_pk_add_f32 {vr(acc2,2)}, {vr(acc2,2)}, {vr(t,2)}"))
                if kb == 1 and e == 1: out.append((1, f"v_add_f32 v{TSV+q3}, v{acc2}, v{acc2+1}"))
            elif self.summode == 2:
                out.append(cv)
                if kb == 0 and e == 0: cv = (1, f"v_dot2_f32_bf16 v{TSV+q3}, v{pr}, v250, 0")
                else: cv = (1, f"v_dot2c_f32_bf16 v{TSV+q3}, v{pr}, v250")
                out.append(cv); cv = None
            elif kb == 0 and e == 0:
                out.append((1, f"v_add_f32 v{TSV+q3}, v{t}, v{t+1}"))
            elif "noadd" not in self.abl:
                out.append((1, f"v_add_f32 v{TSV+q3}, v{TSV+q3}, v{t}"))
                out.append((1, f"v_add_f32 v{TSV+q3}, v{TSV+q3}, v{t+1}"))
            if cv is None: continue
            if i >= len(pairs) - 1: late.append(cv)
            else: out.append(cv)
        if check:
            out.append((1, f"v_add_f32 v{vSUM[h]}, v{vSUM[h]}, v{TSV+2}"))
            out.append((1, f"v_cmp_lt_f32 vcc, s{sTHR[h]}, v{vSUM[h]}"))
        out += late
        return out
    def gated(self, items, G, start=0):
        return [(c, t, self.src.get(t, 0)) for c, t in items]
    def ninstr(self):
        return sum(1 for l in self.a.lines[-40:] if not l.strip().endswith(":") ) + 0
    def gate_ok(self, key):
        if key == 0: return True
        if key not in self.ready: return False
        n = sum(1 for l in self.a.lines[self.ready[key]:] if l.strip() and not l.strip().endswith(":"))
        return n >= 8
    def first_stream(self, h):
        out = []
        m = [vST, vST + 1, vST + 2]; n = [vST + 3, vST + 4, vST + 5]
        def add(t, key=0): out.append((1, t, key))
        for q3 in range(3):
            s0, s1 = Si(0, 3*h+q3), Si(1, 3*h+q3)
            add(f"v_max3_f32 v{m[q3]}, v{s0}, v{s0+1}, v{s0+2}", (h, 0, q3))
        for q3 in range(3):
            s0, s1 = Si(0, 3*h+q3), Si(1, 3*h+q3)
            add(f"v_max3_f32 v{m[q3]}, v{m[q3]}, v{s0+3}, v{s1}", (h, 1, q3))
            add(f"v_max3_f32 v{m[q3]}, v{m[q3]}, v{s1+1}, v{s1+2}")
            add(f"v_max_f32 v{m[q3]}, v{m[q3]}, v{s1+3}")
        for sw in ("v_permlane16_swap_b32", "v_permlane32_swap_b32"):
            for q3 in range(3): add(f"v_mov_b32 v{n[q3]}, v{m[q3]}")
            add("s_nop 1")
            for q3 in range(3): add(f"{sw} v{m[q3]}, v{n[q3]}")
            for q3 in range(3): add(f"v_max_f32 v{m[q3]}, v{m[q3]}, v{n[q3]}")
        for q3 in range(3):
            qb = 3 * h + q3
            for kb in range(2):
                for r in range(4): add(f"v_sub_f32 v{Si(kb,qb)+r}, v{Si(kb,qb)+r}, v{m[q3]}")
            for r in range(4): add(f"v_sub_f32 v{NM+4*qb+r}, 0, v{m[q3]}")
        return out
    def check_branch(self, h):
        a = self.a
        if "nosm" in self.abl: return []
        if not self.abl:
            stub = a.newlabel("L_stub"); ret = a.newlabel("L_ret")
            self.stubs.append((stub, ret, h))
            a(f"s_cbranch_vccnz {stub}\n{ret}:")
        return [(1, f"v_add_f32 v{vL+3*h+q3}, v{vL+3*h+q3}, v{vTSH[h]+q3}") for q3 in range(3)]

    def slow_sub(self, h):
        a = self.a
        a.label(f"L_slow{h}")
        m = [vST, vST + 1, vST + 2]; n = [vST + 3, vST + 4, vST + 5]
        for q3 in range(3):
            s0, s1 = Si(0, 3*h+q3), Si(1, 3*h+q3)
            a(f"v_max3_f32 v{m[q3]}, v{s0}, v{s0+1}, v{s0+2}")
            a(f"v_max3_f32 v{m[q3]}, v{m[q3]}, v{s0+3}, v{s1}")
            a(f"v_max3_f32 v{m[q3]}, v{m[q3]}, v{s1+1}, v{s1+2}")
            a(f"v_max_f32 v{m[q3]}, v{m[q3]}, v{s1+3}")
        for sw in ("v_permlane16_swap_b32", "v_permlane32_swap_b32"):
            for q3 in range(3): a(f"v_mov_b32 v{n[q3]}, v{m[q3]}")
            a("s_nop 1")
            for q3 in range(3): a(f"{sw} v{m[q3]}, v{n[q3]}")
            for q3 in range(3): a(f"v_max_f32 v{m[q3]}, v{m[q3]}, v{n[q3]}")
        for q3 in range(3): a(f"v_max_f32 v{m[q3]}, 0, v{m[q3]}")
        for q3 in range(3): a(f"v_exp_f32 v{n[q3]}, -v{m[q3]}")
        for q3 in range(3):
            qb = 3 * h + q3
            for kb in range(2):
                for r in range(4): a(f"v_sub_f32 v{Si(kb,qb)+r}, v{Si(kb,qb)+r}, v{m[q3]}")
            for r in range(4): a(f"v_sub_f32 v{NM+4*qb+r}, v{NM+4*qb+r}, v{m[q3]}")
            a(f"v_mul_f32 v{vL+qb}, v{vL+qb}, v{n[q3]}")
            for j in range(4):
                for r in range(4): a(f"v_mul_f32 v{OW+(j*6+qb)*4+r}, v{OW+(j*6+qb)*4+r}, v{n[q3]}")
            for j in range(4):
                t = [vSTS, vSTS + 1, vSTS + 2, vSTS + 3]
                for r in range(4): a(f"v_accvgpr_read_b32 v{t[r]}, a{(j*6+qb)*4+r}")
                for r in range(4): a(f"v_mul_f32 v{t[r]}, v{t[r]}, v{n[q3]}")
                for r in range(4): a(f"v_accvgpr_write_b32 a{(j*6+qb)*4+r}, v{t[r]}")
        for c, t in self.sm_stream(h, T=vST, check=False): a(t)
        a(f"s_nop 1\ns_setpc_b64 s[{sRET}:{sRET+1}]")

    def mk(self, kind, h, items, **kw):
        return dict(kind=kind, h=h, items=items, **kw)
    def pv_groups(self, h, first=False, after=None, js=range(8)):
        if self.pvorder == 0:
            return [self.mk("pv", h, [(j, q3) for q3 in range(3)], first=first, after=[(lambda j=j: after(j))] if after else []) for j in js]
        seq = [(j, q3) for q3 in range(3) for j in range(8)]
        out = []
        for g in range(8):
            it = seq[3 * g:3 * g + 3]
            aft = []
            if after:
                if self.pv_after_k:
                    aft = [(lambda j=g: after(j))]
                else:
                    aft = [(lambda j=j: after(j)) for j, q3 in it if q3 == 2]
            out.append(self.mk("pv", h, it, first=first, after=aft))
        return out
    def qk_groups(self, h):
        if self.qkorder == 0:
            return [self.mk("qk", h, [(f, q3) for q3 in range(3)]) for f in range(8)]
        seq = [(4 * kb + s, q3) for kb in range(2) for q3 in range(3) for s in range(4)]
        return [self.mk("qk", h, seq[3 * g:3 * g + 3]) for g in range(8)]

    def run(self, groups, vq, target, keep=False):
        a = self.a
        cum = 0.0; m = 0
        if not keep: self.ready = {}
        for gi, g in enumerate(groups):
            kind, h = g["kind"], g["h"]
            if g.get("check") is not None:
                vq[0:0] = [(c, t, 0) for c, t in self.check_branch(g["check"])]
                cum += 1
            dma = g.get("dma")
            if self.pad: a(f"s_nop {self.pad-1}")
            if dma and dma[0]: a(dma[0]); cum += 1
            for n, (j, q3) in enumerate(g["items"]):
                qb = 3 * h + q3
                n0 = len(a.lines)
                self.need(("V" if kind == "pv" else "K", j))
                cum += len(a.lines) - n0
                if kind == "pv":
                    c = "0" if g.get("first") else Or(j, qb)
                    a(f"{MF} {Or(j,qb)}, {ar(VF+4*j,4)}, {vr(P+4*qb,4)}, {c}")
                    self.ready[("pv", j, qb)] = len(a.lines)
                else:
                    kb, s = j >> 2, j & 3
                    c = vr(NM + 4 * qb, 4) if s == 0 else vr(Si(kb, qb), 4)
                    a(f"{MF} {vr(Si(kb,qb),4)}, {ar(KF+4*j,4)}, {Qf(s,qb)}, {c}")
                    if s == 3: self.ready[(h, kb, q3)] = len(a.lines)
                cur = 0
                if n == 0 and dma:
                    a(dma[1]); cur += self.dma_cost
                if n == 2:
                    n0 = len(a.lines)
                    for fn in g.get("after", []): fn()
                    cur += (len(a.lines) - n0) * self.ds_cost
                m += 1
                while vq and self.gate_ok(vq[0][2]) and (cur < 2 or cum + cur + vq[0][0] <= target * m + 0.5):
                    if cur >= 2 and cur + vq[0][0] > self.gap_max: break
                    if cur == 1 and vq[0][0] == 2 and cum + cur + 2 > target * m + 1.5: break
                    c, t, _ = vq.pop(0)
                    a(t); cur += c
                cum += max(cur, 0)

    def tlb_warm(self):
        a = self.a
        for l in self.tail_setup(): a(l)
        a(f"""
        s_mov_b32 s24, s12
        s_mov_b32 s25, s13
        s_mov_b32 s26, {96*128*1024}
        s_mov_b32 s27, 0x20000
        s_mul_i32 s3, s{sB}, 12
        s_lshl_b32 s3, s3, 17
        s_lshl_b32 s{sT0}, s{sH}, 12
        s_add_u32 s3, s3, s{sT0}
        v_and_b32 v238, 15, v{vLANE}
        v_lshlrev_b32 v238, 17, v238
        buffer_load_dword v239, v238, s[24:27], s3 offen sc1
        s_lshl_b32 s3, s{self.sRT}, 19
        v_lshlrev_b32 v238, 13, v{vLANE}
        buffer_load_dword v240, v238, s[24:27], s3 offen sc1
        s_mul_i32 s3, s{self.sRT}, {64*1280}
        v_mul_u32_u24 v238, 1280, v{vLANE}
        buffer_load_dword v241, v238, s[96:99], s3 offen sc1
        v_mov_b32 v238, 4
        global_load_dword v242, v238, s[28:29] sc1
        s_movk_i32 s{sT1}, 128
        """)
    def interval(self, k):
        a = self.a
        slot = k % 4
        H = self.head
        w = self.main_wait(k) if k <= 30 else 0
        if 2 <= k <= 5:
            w = min(self.main_wait(k + 4 * i) for i in range(7))
        w = min(w, self.wcap)
        pcs = [self.kv_piece(t, n, k=k) for n, t in self.main_pieces(k)]
        if 2 <= k <= 5: assert len(pcs) == 8
        if "nodma" in self.abl: pcs = []
        pos = self.dma_pos or [1, 5, 9, 13, 17, 21, 25, 29]
        lead = []
        if k >= 1: lead = [(c, t, 0) for c, t in self.check_branch(0)]
        for d in sorted(set(self.dist)):
            if self.ks == 0 or self.kvstride == 0:
                if k == 0: a(f"s_add_u32 s{sD[d-1]}, s{sKVO}, {d*self.kvstride}")
                else: a(f"s_add_u32 s{sD[d-1]}, s{sD[d-1]}, {self.kvstride}")
            else:
                if k == 0: a(f"s_mov_b32 s{100+(d&1)}, {d}")
                else: a(f"s_add_u32 s{100+(d&1)}, s{100+(d&1)}, 1")
                a(f"""s_and_b32 s3, s{100+(d&1)}, {(1<<self.ks)-1}
                s_lshl_b32 s3, s3, 12
                s_lshr_b32 s{sD[d-1]}, s{100+(d&1)}, {self.ks}
                s_lshl_b32 s{sD[d-1]}, s{sD[d-1]}, {14+self.ks}
                s_add_u32 s{sD[d-1]}, s{sD[d-1]}, s3
                s_add_u32 s{sD[d-1]}, s{sD[d-1]}, s{sKVO}""")
        if "nobar" in self.abl and 0 < k < 31: a(f"s_waitcnt vmcnt({w}) lgkmcnt(0)")
        else: a(f"s_waitcnt vmcnt({w}) lgkmcnt(0)\ns_barrier")
        self.dsq = []
        if k == self.tlbk: self.tlb_warm()
        smA = self.sm_stream(0); smB = self.sm_stream(1)
        if k == 0:
            for f in range(8): self.kread(slot, f)
            for j in range(8): self.vread(slot, j)
            groups = self.qk_groups(0) + self.qk_groups(1)
            for i, pc in enumerate(pcs): groups[i]["dma"] = pc
            vq = self.first_stream(0) + [(c, t, 0) for c, t in smA] + self.first_stream(1) + [(c, t, 0) for c, t in smB[:H]]
            self.run(groups, vq, 3.0)
        else:
            self.pv_after_k = True
            groups = self.pv_groups(0, k == 1, lambda j: self.kread(slot, j)) + self.qk_groups(0)
            self.pv_after_k = False
            groups += self.pv_groups(1, k == 1, lambda j: self.vread(slot, j)) + self.qk_groups(1)
            groups[16]["check"] = 1
            for i, pc in enumerate(pcs): groups[pos[i]]["dma"] = pc
            if self.warm_on(k): groups[self.warm]["dma"] = self.warm_piece()
            vq = lead + [(c, t, 0) for c, t in smB[H:]] + self.gated(smA, 24) + self.gated(smB[:H], 72)
            nB = len(lead) + len(smB) - H
            self.run(groups, vq, self.target)
        for c, t, key in vq:
            if not self.gate_ok(key): a("s_nop 7")
            a(t)

    def main_loop(self):
        a = self.a
        if self.warm:
            a(f"""
            s_lshr_b32 s3, s2, 3
            s_mul_i32 s{sTW}, s3, {128*1280}
            s_mul_i32 s3, s{sW}, {8*1280}
            s_add_u32 s{sTW}, s{sTW}, s3
            s_bfe_u32 s3, s2, 0x10002
            s_mul_i32 s3, s3, 640
            s_add_u32 s{sTW}, s{sTW}, s3
            s_mov_b32 s39, 0
            s_movk_i32 s{sT1}, 128
            v_lshrrev_b32 v{vTW}, 3, v{vLANE}
            v_mul_u32_u24 v{vTW}, 1280, v{vTW}
            v_and_b32 v{vT}, 7, v{vLANE}
            v_lshl_add_u32 v{vTW}, v{vT}, 4, v{vTW}
            """)
        if self.summode == 2: a("v_mov_b32 v250, 0x3f803f80")
        self.interval(0)
        self.interval(1)
        a(f"s_mov_b32 s{sLOOP}, 0")
        a.label("L1_loop")
        for k in range(2, 6): self.interval(k)
        if self.lstamps:
            a(f"s_memrealtime s[100:101]\ns_mov_b32 m0, s{sLOOP}\ns_waitcnt lgkmcnt(0)\nv_writelane_b32 v254, s100, m0")
        a(f"s_add_u32 s{sLOOP}, s{sLOOP}, 1\ns_cmp_lt_u32 s{sLOOP}, 7\ns_cbranch_scc1 L1_loop")
        self.interval(30)
        self.interval(31)
        if self.lstamps:
            a("s_waitcnt lgkmcnt(0)")
            for i in range(7): a(f"v_readlane_b32 s{62+2*i}, v254, {i}\ns_mov_b32 s{63+2*i}, s61")
        self.endgame()

    def flush(self, vq):
        for c, t, key in vq:
            if not self.gate_ok(key): self.a("s_nop 7")
            self.a(t)
        del vq[:]

    def endgame(self):
        a = self.a
        js = [4, 5, 6, 7, 0, 1, 2, 3]
        ML = LDS1 - 4096
        vA, vB, vC = vX, vW, vX2
        mo, lo, g0, g1 = 224, 230, 236, 244
        t = [vST + 0, vST + 1, vST + 2, vST + 3, vST + 4, vST + 5]
        t = [202, 203, 204, 205, 206, 207]
        lead = [(c, tx, 0) for c, tx in self.check_branch(0)]
        setup = f"""v_lshlrev_b32 v{vA}, 4, v{vLANE}
        s_mul_i32 s{sT0}, s{sQH}, {VB0}
        s_mul_i32 s3, s{sKH}, 24576
        s_add_u32 s3, s3, s{sT0}
        v_add_u32 v{vB}, s3, v{vA}
        s_lshl_b32 s3, s{sW}, 10
        s_add_u32 s3, s3, {ML}
        v_and_b32 v{vC}, 15, v{vLANE}
        v_lshlrev_b32 v{vC}, 2, v{vC}
        v_add_u32 v{vC}, s3, v{vC}
        v_xor_b32 v{vW2}, 0x400, v{vC}
        s_xor_b32 s{sT1}, s{sKH}, 1
        s_mul_i32 s3, s{sT1}, 24576
        s_add_u32 s{sKVL}, s3, s{sT0}
        v_add_u32 v{vXD}, s{sKVL}, v{vA}
        s_mul_i32 s3, s{sB}, 12
        s_mul_i32 s{sT0}, s{sQH}, 6
        s_add_u32 s3, s3, s{sT0}
        s_lshl_b32 s3, s3, 7
        s_lshl_b32 s{sT0}, s{sH}, 2
        s_add_u32 s3, s3, s{sT0}
        s_lshl_b32 s{sT0}, s{sKH}, 1
        s_add_u32 s3, s3, s{sT0}
        s_lshl_b32 s3, s3, 10
        v_add_u32 v{vA}, s3, v{vA}
        s_mov_b32 s24, s12
        s_mov_b32 s25, s13
        s_mov_b32 s26, {96*128*1024}
        s_mov_b32 s27, 0x20000""".split("\n")
        if self.om32:
            setup += f"""s_mul_i32 s3, s{sB}, 6
            s_mul_i32 s{sT0}, s{sQH}, 3
            s_add_u32 s3, s3, s{sT0}
            s_lshl_b32 s3, s3, 8
            s_lshl_b32 s{sT0}, s{sH}, 3
            s_add_u32 s3, s3, s{sT0}
            s_lshl_b32 s{sT0}, s{sKH}, 2
            s_add_u32 s3, s3, s{sT0}
            s_lshl_b32 s3, s3, 10
            v_and_b32 v{vA}, 15, v{vLANE}
            v_lshlrev_b32 v{vA}, 4, v{vA}
            v_bfe_u32 v{vKW}, v{vLANE}, 4, 1
            v_lshl_or_b32 v{vA}, v{vKW}, 9, v{vA}
            v_lshrrev_b32 v{vKW}, 5, v{vLANE}
            v_lshl_or_b32 v{vA}, v{vKW}, 10, v{vA}
            v_add_u32 v{vA}, s3, v{vA}""".split("\n")
        vq = lead + [(c, tx, 0) for c, tx in self.sm_stream(1)[self.head:]] + [(1, l.strip(), 0) for l in setup + self.tail_setup()]
        self.run(self.pv_groups(0, js=js), vq, 4.5)
        self.flush(vq)
        for c, tx in self.check_branch(1): a(tx)
        def W(qb, jj): return (1, f"ds_write_b128 v{vB}, {ar((jj*6+qb)*4,4)} offset:{1024*(jj*6+qb)}", ("pv", jj + 4, qb))
        vq = []
        for sw in ("v_permlane16_swap_b32", "v_permlane32_swap_b32"):
            vq += [(1, f"v_mov_b32 v{t[qb]}, v{vL+qb}", 0) for qb in range(6)]
            vq += [(1, f"{sw} v{t[qb]}, v{vL+qb}", 0) for qb in range(6)]
            vq += [(1, f"v_add_f32 v{vL+qb}, v{vL+qb}, v{t[qb]}", 0) for qb in range(6)]
        for qb in range(6):
            vq += [(1, f"ds_write_b32 v{vC}, v{NM+4*qb} offset:{qb*64}", 0), (1, f"ds_write_b32 v{vC}, v{vL+qb} offset:{384+qb*64}", 0)]
        vq += [(1, "s_waitcnt lgkmcnt(0)", 0), (1, "s_barrier", 0)]
        for qb in range(6):
            vq += [(1, f"ds_read_b32 v{mo+qb}, v{vW2} offset:{qb*64}", 0), (1, f"ds_read_b32 v{lo+qb}, v{vW2} offset:{384+qb*64}", 0)]
        vq += [W(qb, jj) for jj in range(4) for qb in range(3)]
        vq += [(1, "s_waitcnt lgkmcnt(12)", 0)]
        for fn in (lambda qb: f"v_min_f32 v{t[qb]}, v{NM+4*qb}, v{mo+qb}",
                   lambda qb: f"v_sub_f32 v{g0+qb}, v{t[qb]}, v{NM+4*qb}",
                   lambda qb: f"v_sub_f32 v{g1+qb}, v{t[qb]}, v{mo+qb}",
                   lambda qb: f"v_exp_f32 v{g0+qb}, v{g0+qb}",
                   lambda qb: f"v_exp_f32 v{g1+qb}, v{g1+qb}",
                   lambda qb: f"v_mul_f32 v{t[qb]}, v{vL+qb}, v{g0+qb}",
                   lambda qb: f"v_fma_f32 v{t[qb]}, v{lo+qb}, v{g1+qb}, v{t[qb]}",
                   lambda qb: f"v_rcp_f32 v{t[qb]}, v{t[qb]}",
                   lambda qb: f"v_mul_f32 v{g0+qb}, v{g0+qb}, v{t[qb]}",
                   lambda qb: f"v_mul_f32 v{g1+qb}, v{g1+qb}, v{t[qb]}"):
            vq += [(1, fn(qb), 0) for qb in range(6)]
        vq += [W(qb, jj) for jj in range(4) for qb in range(3, 6)]
        self.dsq = []
        a("s_waitcnt lgkmcnt(0)")
        self.gap_max_save, self.gap_max = self.gap_max, 8
        self.run(self.pv_groups(1, js=js), vq, 6.0, keep=True)
        self.gap_max = self.gap_max_save
        self.flush(vq)
        self.stamp(7 if self.qstamps else 3) if not self.lstamps else None
        def pair(g, qb):
            r = g + qb
            return (vr(r & ~1, 2), 1 if r & 1 else 0)
        order = [(jj, qb) for qb in range(3) for jj in range(4)] + [(jj, qb) for qb in range(3, 6) for jj in range(4)]
        for jj, qb in order:
            if not self.gate_ok(("pv", jj, qb)): a("s_nop 7")
            pr, sel = pair(g0, qb)
            for e in range(2):
                r = OW + (jj * 6 + qb) * 4 + 2 * e
                a(f"v_pk_mul_f32 {vr(r,2)}, {vr(r,2)}, {pr} op_sel:[0,{sel}] op_sel_hi:[1,{sel}]")
        a("s_waitcnt lgkmcnt(0)\ns_barrier")
        RB = 96
        rd = [(jj, qb) for i in range(2) for qb in range(6) for jj in (2 * i, 2 * i + 1)]
        for jj, qb in rd:
            a(f"ds_read_b128 {vr(RB+(jj*6+qb)*4,4)}, v{vXD} offset:{1024*(jj*6+qb)}")
        self.tail_early()
        st = "sc1"
        stores = []
        n = 0
        for i in range(2):
            for qb in range(6):
                n += 2
                a(f"s_waitcnt lgkmcnt({min(15, 24 - n)})")
                pr, sel = pair(g1, qb)
                for jj in (2 * i, 2 * i + 1):
                    for e in range(2):
                        r = OW + (jj * 6 + qb) * 4 + 2 * e
                        rb = RB + (jj * 6 + qb) * 4 + 2 * e
                        a(f"v_pk_fma_f32 {vr(r,2)}, {vr(rb,2)}, {pr}, {vr(r,2)} op_sel:[0,{sel},0] op_sel_hi:[1,{sel},1]")
                pk = RB + (2 * i * 6 + qb) * 4
                o0, o1 = OW + (2 * i * 6 + qb) * 4, OW + ((2 * i + 1) * 6 + qb) * 4
                a(f"v_cvt_pk_bf16_f32 v{pk}, v{o0}, v{o0+1}")
                a(f"v_cvt_pk_bf16_f32 v{pk+1}, v{o0+2}, v{o0+3}")
                a(f"v_cvt_pk_bf16_f32 v{pk+2}, v{o1}, v{o1+1}")
                a(f"v_cvt_pk_bf16_f32 v{pk+3}, v{o1+2}, v{o1+3}")
                stl = f"s_mov_b32 s3, {qb*0x20000}\nbuffer_store_dwordx4 {vr(pk,4)}, v{vA}, s[24:27], s3 offen offset:{1024*i} {st}"
                if self.om32:
                    stl = f"""s_mov_b32 s3, {(qb>>1)*0x40000}
                    s_nop 0
                    v_permlane32_swap_b32 v{pk}, v{pk+2}
                    v_permlane32_swap_b32 v{pk+1}, v{pk+3}
                    buffer_store_dwordx4 {vr(pk,4)}, v{vA}, s[24:27], s3 offen offset:{2048*i + 256*(qb&1)} {st}"""
                if self.late_st: stores.append(stl)
                else: a(stl)
        if self.late_st:
            a(f"s_cmp_ge_u32 s{self.sJ}, 30\ns_cbranch_scc1 L1_noearly2")
            for i in range(3, 9): self.wo_issue(i)
            a("L1_noearly2:")
            for stl in stores: a(stl)
        self.vq += [("S", 0)] * 12

    def rot_code(self):
        if self.qrot == 0: return f"s_mov_b32 s{sCH}, 0"
        if self.qrot == 1:
            return f"""s_and_b32 s{sCH}, s{sH}, 7
            s_and_b32 s3, s{sB}, 3
            s_lshl_b32 s3, s3, 1
            s_add_u32 s{sCH}, s{sCH}, s3
            s_cmp_ge_u32 s{sCH}, 10
            s_cselect_b32 s3, 10, 0
            s_sub_u32 s{sCH}, s{sCH}, s3"""
        if self.qrot == 2:
            return f"""s_xor_b32 s{sCH}, s{sH}, s{sB}
            s_and_b32 s{sCH}, s{sCH}, 1
            s_mul_i32 s{sCH}, s{sCH}, 5"""
        if self.qrot == 3:
            return f"""s_add_u32 s{sCH}, s{sH}, s{sB}
            s_and_b32 s{sCH}, s{sCH}, 3
            s_mul_i32 s{sCH}, s{sCH}, 3"""
        if self.qrot == 4:
            return f"""s_add_u32 s{sCH}, s{sH}, s{sB}
            s_and_b32 s{sCH}, s{sCH}, 3"""
    def prologue(self):
        a = self.a
        a("s_cmp_ge_u32 s2, 256\ns_cbranch_scc1 L1_end")
        self.stamp(0)
        a(f"""
        s_load_dwordx8 s[4:11], s[0:1], 0
        s_load_dwordx2 s[12:13], s[0:1], 56
        s_load_dwordx4 s[56:59], s[0:1], 32
        s_load_dwordx2 s[28:29], s[0:1], 48
        v_lshrrev_b32 v1, 6, v0
        v_and_b32 v{vLANE}, 63, v0
        s_and_b32 s{sT0}, s2, 7
        v_readfirstlane_b32 s{sW}, v1
        s_lshr_b32 s{sT1}, s2, 3
        s_and_b32 s{sB}, s{sT0}, 1
        s_lshl_b32 s{sB}, s{sB}, 2
        s_and_b32 s3, s{sT1}, 3
        s_or_b32 s{sB}, s{sB}, s3
        s_lshr_b32 s{sH}, s{sT0}, 1
        s_lshl_b32 s{sH}, s{sH}, 3
        s_lshr_b32 s3, s{sT1}, 2
        s_or_b32 s{sH}, s{sH}, s3
        {self.rot_code()}
        v_lshrrev_b32 v1, 4, v{vLANE}             ; g
        v_and_b32 v2, 15, v{vLANE}                ; q
        v_lshlrev_b32 v3, {12+self.ks}, v1
        v_lshl_or_b32 v{vDMA}, v2, 4, v3
        v_lshlrev_b32 v3, 17, v1
        v_lshl_or_b32 v{vWD}, v2, 4, v3
        v_lshrrev_b32 v3, 3, v{vLANE}
        v_and_b32 v4, 7, v{vLANE}
        v_mul_u32_u24 v3, {4*1280}, v3
        v_lshl_add_u32 v{vXD}, v4, 4, v3
        s_lshr_b32 s{sQH}, s{sW}, 1
        s_and_b32 s{sKH}, s{sW}, 1
        s_mul_i32 s{sXB}, s{sW}, {XP}
        s_mul_i32 s{sXS}, s{sW}, 1280
        s_mul_i32 s{sWB}, s{sW}, {4*PIT}
        s_lshl_b32 s{sWS}, s{sKH}, 3
        s_lshl_b32 s3, s{sQH}, 2
        s_or_b32 s{sWS}, s{sWS}, s3
        s_lshl_b32 s{sWS}, s{sWS}, 13
        s_lshl_b32 s{sKVO}, s{sW}, 10
        s_mov_b32 s{sKVL}, s{sWB}
        s_lshl_b32 s{sT0}, s{sB}, 5
        s_add_u32 s{sT0}, s{sT0}, s{sH}
        s_lshl_b32 s{sT1}, s{sT0}, 19
        s_lshr_b32 s{sT0}, s{sT0}, 13
        s_waitcnt lgkmcnt(0)
        s_add_u32 s{SRD_K}, s6, s{sT1}
        s_addc_u32 s{SRD_K+1}, s7, s{sT0}
        s_mov_b32 s{SRD_K+2}, 524288
        s_mov_b32 s{SRD_K+3}, 0x20000
        s_add_u32 s{SRD_V}, s8, s{sT1}
        s_addc_u32 s{SRD_V+1}, s9, s{sT0}
        s_mov_b32 s{SRD_V+2}, 524288
        s_mov_b32 s{SRD_V+3}, 0x20000
        s_mul_i32 s{sT0}, s{sB}, 245760
        s_add_u32 s{SRD_X}, s4, s{sT0}
        s_addc_u32 s{SRD_X+1}, s5, 0
        s_mov_b32 s{SRD_X+2}, 245760
        s_mov_b32 s{SRD_X+3}, 0x20000
        s_lshl_b32 s{sT0}, s{sH}, 8
        s_add_u32 s{SRD_W}, s10, s{sT0}
        s_addc_u32 s{SRD_W+1}, s11, 0
        s_sub_u32 s{SRD_W+2}, {640*8192}, s{sT0}
        s_mov_b32 s{SRD_W+3}, 0x20000
        """)
        a(f"""
        s_mov_b32 s92, s56
        s_mov_b32 s93, s57
        s_mov_b32 s94, {4096*1280}
        s_mov_b32 s95, 0x20000
        s_mul_i32 s{sTW}, s2, 20480
        s_mul_i32 s{sT1}, s{sW}, 5120
        s_add_u32 s{sTW}, s{sTW}, s{sT1}
        v_lshlrev_b32 v{vTW}, 4, v{vLANE}
        """)
        def touch():
            for pc in self.touch_pieces(): self.emit_piece(pc)
        if self.touch == 1: touch()
        if self.qm32:
            assert self.x4
            a(f"""
            v_lshrrev_b32 v3, 3, v{vLANE}
            v_and_b32 v4, 7, v{vLANE}
            v_mul_u32_u24 v3, {8*1280}, v3
            v_lshl_add_u32 v{vXD}, v4, 4, v3
            s_mul_i32 s{sXB}, s{sW}, {2*XP32}
            s_mul_i32 s{sXS}, s{sW}, {2*1280}
            s_mul_i32 s{sWB}, s{sW}, {4*WP32}
            s_lshl_b32 s{sWS}, s{sW}, 15
            """)
        a(f"s_mov_b32 s39, s{sCH}")
        for c in range(3):
            for pc in self.w_pieces(c) + self.x_pieces(c): self.emit_piece(pc)
        if self.x4:
            for pc in self.x_pieces(3): self.emit_piece(pc)
        if self.touch == 2: touch()
        a(f"""
        v_bfe_u32 v3, v{vLANE}, 2, 2              ; r
        v_and_b32 v4, 3, v{vLANE}                 ; c
        v_mul_u32_u24 v5, {PIT}, v2
        v_lshl_add_u32 v5, v1, 4, v5
        s_lshl_b32 s3, s{sKH}, 9
        v_add_u32 v{vK}, s3, v5
        v_lshl_add_u32 v5, v1, 2, v3
        v_mul_u32_u24 v5, {PIT}, v5
        v_lshl_add_u32 v5, v4, 3, v5
        s_mul_i32 s3, s{sKH}, {512+128}
        s_add_u32 s3, s3, {VB0}
        v_add_u32 v{vVA}, s3, v5
        s_mul_i32 s3, s{sKH}, {512-128}
        s_add_u32 s3, s3, {VB0}
        v_add_u32 v{vVB}, s3, v5
        v_mul_u32_u24 v5, {XP}, v4
        v_lshl_add_u32 v5, v3, 7, v5
        v_lshl_add_u32 v5, v1, 4, v5
        s_mul_i32 s3, s{sQH}, 3072
        v_add_u32 v{vX}, s3, v5
        v_and_b32 v5, 1, v1
        v_lshl_add_u32 v5, v5, 2, v3
        v_mul_u32_u24 v5, {PIT}, v5
        v_lshrrev_b32 v6, 1, v1
        v_lshl_add_u32 v5, v6, 8, v5
        v_lshl_add_u32 v5, v4, 3, v5
        s_lshl_b32 s3, s{sKH}, 7
        v_add_u32 v{vW}, s3, v5
        v_lshlrev_b32 v{vKW}, 4, v{vLANE}
        v_add_u32 v{vKW}, s{sKVL}, v{vKW}
        v_add_u32 v{vKW+1}, {VB0}, v{vKW}
        s_mov_b32 s{sTHR[0]}, {f32(THR)}
        """)
        if self.qm32:
            a(f"""
            v_and_b32 v5, 7, v{vLANE}
            v_mul_u32_u24 v5, {XP32}, v5
            v_bfe_u32 v6, v{vLANE}, 3, 2
            v_lshl_add_u32 v5, v6, 7, v5
            v_lshrrev_b32 v6, 5, v{vLANE}
            v_lshl_add_u32 v5, v6, 4, v5
            s_mul_i32 s3, s{sQH}, {12*128}
            v_add_u32 v{vX}, s3, v5
            v_lshl_add_u32 v5, v6, 3, v3
            v_mul_u32_u24 v5, {WP32}, v5
            v_bfe_u32 v6, v{vLANE}, 4, 1
            v_lshl_add_u32 v5, v6, 5, v5
            v_lshl_add_u32 v5, v4, 3, v5
            s_lshl_b32 s3, s{sKH}, 7
            v_add_u32 v{vW}, s3, v5
            """)
        for i in range(24): a(f"v_mov_b32 v{NM+i}, 0")
        for i in range(6): a(f"v_mov_b32 v{vL+i}, 0")

    def q_pack_setup(self):
        rlo, rhi, wlo, whi = vT, vT + 1, vT + 2, vT + 3
        self.a(f"""
        s_mul_i32 s{sT0}, s{sQH}, {96*QP}
        s_add_u32 s{sT0}, s{sT0}, {QA1}
        s_cmp_eq_u32 s{sQH}, 0
        s_mov_b32 s{sT1}, {3*TS}
        s_cselect_b32 s{sT1}, {QA1 + 48*QP}, s{sT1}
        v_and_b32 v{vT+4}, 15, v{vLANE}
        v_mul_u32_u24 v{vT+4}, {QP}, v{vT+4}
        v_lshrrev_b32 v{vT+5}, 4, v{vLANE}
        v_lshl_add_u32 v{vT+6}, v{vT+5}, 4, v{vT+4}
        v_add_u32 v{rlo}, s{sT0}, v{vT+6}
        v_add_u32 v{rhi}, s{sT1}, v{vT+6}
        v_lshl_add_u32 v{vT+6}, v{vT+5}, 3, v{vT+4}
        s_lshl_b32 s{sXO}, s{sKH}, 7
        v_add_u32 v{vT+6}, s{sXO}, v{vT+6}
        v_add_u32 v{wlo}, s{sT0}, v{vT+6}
        v_add_u32 v{whi}, s{sT1}, v{vT+6}
        v_mov_b32 v{vT+4}, {f32(CSC)}
        """)
    def q_pack(self, db, qb):
        wlo, whi = vT + 2, vT + 3
        acc = QACC + (db * 6 + qb) * 4
        cs = vr(vT + 4, 2)
        assert (vT + 4) % 2 == 0
        return [f"v_pk_mul_f32 {vr(acc,2)}, {vr(acc,2)}, {cs} op_sel_hi:[1,0]",
                f"v_pk_mul_f32 {vr(acc+2,2)}, {vr(acc+2,2)}, {cs} op_sel_hi:[1,0]",
                f"v_cvt_pk_bf16_f32 v{acc}, v{acc}, v{acc+1}",
                f"v_cvt_pk_bf16_f32 v{acc+1}, v{acc+2}, v{acc+3}",
                f"ds_write_b64 v{wlo if qb < 3 else whi}, {vr(acc,2)} offset:{(qb%3)*16*QP + db*32}"]
    def qphase(self):
        a = self.a
        order = ["c0"] * 10 + ["c1"] * 10 + ["c2"] * 10
        if self.x4: order += ["c3"] * 6
        if self.touch == 2: order += ["t"] * 5
        kvl = [(t, n) for t in range(3) for n in range(8) if t < self.pre[n]]
        def next_kv():
            if not kvl: return None
            t, n = kvl.pop(0)
            order.append(f"kv{t}")
            if self.x4: return self.kv_piece(t, n, reg=KVR + 32 * t)
            return self.kv_piece(0, n) if t == 0 else self.kv_piece(t, n, reg=KVR + 32 * (t - 1))
        for _ in range(self.early.get(-1, 0)): self.emit_piece(next_kv())
        def xf(st, s, qb): return QSET[st] + (s * 6 + qb) * 4
        def wf(st, s, db): return QSET[st] + 48 + (s * 4 + db) * 4
        def reads(c):
            st = c & 1
            a(f"v_add_u32 v{vX2}, {self.xslot(c)}, v{vX}")
            a(f"v_add_u32 v{vW2}, {self.wslot(c)}, v{vW}")
            out = []
            for s in range(2):
                for qb in range(6):
                    out.append(f"ds_read_b128 {ar(xf(st,s,qb),4)}, v{vX2} offset:{qb*512 + s*64}")
                for db in range(4):
                    for u in range(2):
                        out.append(f"ds_read_b64_tr_b16 {ar(wf(st,s,db)+2*u,2)}, v{vW2} offset:{u*8*PIT + s*512 + db*32}")
            return out
        def after(tag):
            idx = [i for i, t in enumerate(order) if t == tag]
            if not idx: return 63
            return len(order) - 1 - idx[-1]
        a(f"s_waitcnt vmcnt({after('c0')})\ns_barrier")
        self.stamp(1)
        for r in reads(0): a(r)
        for c in range(10):
            if c + 1 < 10: a(f"s_waitcnt vmcnt({min(63, after(f'c{c+1}'))}) lgkmcnt(0)")
            else: a("s_waitcnt lgkmcnt(0)")
            a("s_barrier")
            rd = reads(c + 1) if c + 1 < 10 else []
            if "qnolds" in self.abl: rd = []
            todo = []
            xa = 4 if self.x4 else 3
            if c + 3 < 10: todo += [(f"c{c+3}", pc) for pc in self.w_pieces(c + 3)]
            if c + xa < 10: todo += [(f"c{c+xa}", pc) for pc in self.x_pieces(c + xa)]
            todo += [("kv", None)] * self.early.get(c, 0)
            if self.touch == 10 + c: todo += [("t", pc) for pc in self.touch_pieces()]
            st = c & 1
            NG = self.qng
            g = 0
            seq = [(s, db, hh) for s in range(2) for db in range(4) for hh in range(2)]
            packq = []
            if c == 9:
                seq = [(s, db, hh) for db in range(4) for hh in range(2) for s in range(2)]
                self.q_pack_setup()
            for (s, db, hh) in seq:
                if True:
                    if True:
                        mine = todo[(g * len(todo) + NG - 1) // NG:((g + 1) * len(todo) + NG - 1) // NG]
                        pcs = []
                        for kind, pc in mine:
                            if kind[0] == "c": order.append(kind); pcs.append(pc)
                            elif kind == "t": order.append("t"); pcs.append(pc)
                            else:
                                pc = next_kv()
                                if pc: pcs.append(pc)
                        if pcs and pcs[0][0]: a(pcs[0][0])
                        for q3 in range(3):
                            qb = 3 * hh + q3
                            acc = QACC + (db * 6 + qb) * 4
                            cc = "0" if (c == 0 and s == 0) else vr(acc, 4)
                            a(f"{MF} {vr(acc,4)}, {ar(wf(st,s,db),4)}, {ar(xf(st,s,qb),4)}, {cc}")
                            if c == 9:
                                for _ in range(3):
                                    if packq and packq[0][0] <= g - 3: a(packq.pop(0)[1])
                        if c == 9 and s == 1:
                            for q3 in range(3):
                                packq += [(g, l) for l in self.q_pack(db, 3 * hh + q3)]
                        if pcs: a(pcs[0][1])
                        for pc in pcs[1:]: self.emit_piece(pc)
                        ng = self.qrg
                        for r in rd[(g * 28) // ng:((g + 1) * 28) // ng]: a(r)
                        g += 1
                        for t, cw in (((0, self.kvw[0]), (1, self.kvw[1])) if self.x4 else ((1, self.kvw[0]), (2, self.kvw[1]))):
                            if c == cw and g == 12 and f"kv{t}" in order:
                                assert not any(tt == t for tt, _ in kvl)
                                a(f"s_waitcnt vmcnt({after(f'kv{t}')})")
                                for n in [n for n in range(8) if t < self.pre[n]]:
                                    a(f"ds_write_b128 v{vKW + (n & 1)}, {ar(KVR+32*(t-(0 if self.x4 else 1))+4*n,4)} offset:{t*TS + (n>>1)*PIT}")
            if self.qstamps and c in (2, 5, 8, 9): self.stamp({2: 3, 5: 4, 8: 5, 9: 6}[c])
        assert not kvl
        a('s_waitcnt vmcnt(0)') if False else None
        rlo, rhi = vT, vT + 1
        a("s_nop 4")
        for _, l in packq: a(l)
        a("s_waitcnt lgkmcnt(0)\ns_barrier")
        for s in range(4):
            for qb in range(6):
                a(f"ds_read_b128 {Qf(s,qb)}, v{rlo if qb < 3 else rhi} offset:{(qb%3)*16*QP + s*64}")
        self.stamp(2)

    def q_pack_setup32(self):
        rlo, rhi = vT, vT + 1
        w3 = [vT + 2, vT + 3, vT + 6]
        self.a(f"""
        s_mul_i32 s{sT0}, s{sQH}, {96*QP}
        s_add_u32 s{sT0}, s{sT0}, {QA1}
        s_cmp_eq_u32 s{sQH}, 0
        s_mov_b32 s{sT1}, {3*TS}
        s_cselect_b32 s{sT1}, {QA1 + 48*QP}, s{sT1}
        v_and_b32 v{vT+4}, 15, v{vLANE}
        v_mul_u32_u24 v{vT+4}, {QP}, v{vT+4}
        v_lshrrev_b32 v{vT+5}, 4, v{vLANE}
        v_lshl_add_u32 v{vT+6}, v{vT+5}, 4, v{vT+4}
        v_add_u32 v{rlo}, s{sT0}, v{vT+6}
        v_add_u32 v{rhi}, s{sT1}, v{vT+6}
        v_and_b32 v{vT+4}, 31, v{vLANE}
        v_mul_u32_u24 v{vT+4}, {QP}, v{vT+4}
        v_lshrrev_b32 v{vT+5}, 5, v{vLANE}
        v_lshl_add_u32 v{vT+4}, v{vT+5}, 3, v{vT+4}
        s_lshl_b32 s{sXO}, s{sKH}, 7
        v_add_u32 v{vT+4}, s{sXO}, v{vT+4}
        v_add_u32 v{w3[0]}, s{sT0}, v{vT+4}
        s_add_u32 s{sXO}, s{sT1}, {16*QP}
        v_add_u32 v{w3[2]}, s{sXO}, v{vT+4}
        s_add_u32 s{sT0}, s{sT0}, {32*QP}
        s_sub_u32 s{sT1}, s{sT1}, {16*QP}
        v_add_u32 v{w3[1]}, s{sT0}, v{vT+4}
        v_add_u32 v{vT+5}, s{sT1}, v{vT+4}
        v_and_b32 v{vT+4}, 16, v{vLANE}
        v_cmp_ne_u32 vcc, 0, v{vT+4}
        v_mov_b32 v{vT+4}, {f32(CSC)}
        s_nop 0
        v_cndmask_b32 v{w3[1]}, v{w3[1]}, v{vT+5}, vcc
        """)
    def q_pack32(self, db, qb):
        w3 = [vT + 2, vT + 3, vT + 6]
        cs = vr(vT + 4, 2)
        out = []
        for rq in range(4):
            acc = QACC + (db * 3 + qb) * 16 + 4 * rq
            out += [f"v_pk_mul_f32 {vr(acc,2)}, {vr(acc,2)}, {cs} op_sel_hi:[1,0]",
                    f"v_pk_mul_f32 {vr(acc+2,2)}, {vr(acc+2,2)}, {cs} op_sel_hi:[1,0]",
                    f"v_cvt_pk_bf16_f32 v{acc}, v{acc}, v{acc+1}",
                    f"v_cvt_pk_bf16_f32 v{acc+1}, v{acc+2}, v{acc+3}",
                    f"ds_write_b64 v{w3[qb]}, {vr(acc,2)} offset:{db*64 + rq*16}"]
        return out
    def qphase32(self):
        a = self.a
        order = ["c0"] * 10 + ["c1"] * 10 + ["c2"] * 10
        if self.x4: order += ["c3"] * 6
        if self.touch == 2: order += ["t"] * 5
        kvl = [(t, n) for t in range(3) for n in range(8) if t < self.pre[n]]
        def next_kv():
            if not kvl: return None
            t, n = kvl.pop(0)
            order.append(f"kv{t}")
            if self.x4: return self.kv_piece(t, n, reg=KVR + 32 * t)
            return self.kv_piece(0, n) if t == 0 else self.kv_piece(t, n, reg=KVR + 32 * (t - 1))
        for _ in range(self.early.get(-1, 0)): self.emit_piece(next_kv())
        def xf(st, s, qb): return QSET[st] + (s * 3 + qb) * 4
        def wf(st, s, db): return QSET[st] + 48 + (s * 2 + db) * 4
        def reads(c):
            st = c & 1
            a(f"v_add_u32 v{vX2}, {self.xslot(c)}, v{vX}")
            a(f"v_add_u32 v{vW2}, {self.wslot(c)}, v{vW}")
            out = []
            for s in range(4):
                for qb in range(3):
                    out.append(f"ds_read_b128 {ar(xf(st,s,qb),4)}, v{vX2} offset:{qb*512 + s*32}")
                for db in range(2):
                    for u in range(2):
                        out.append(f"ds_read_b64_tr_b16 {ar(wf(st,s,db)+2*u,2)}, v{vW2} offset:{4*u*WP32 + s*256 + db*64}")
            return out
        def after(tag):
            idx = [i for i, t in enumerate(order) if t == tag]
            if not idx: return 63
            return len(order) - 1 - idx[-1]
        a(f"s_waitcnt vmcnt({after('c0')})\ns_barrier")
        self.stamp(1)
        for r in reads(0): a(r)
        for c in range(10):
            if c + 1 < 10: a(f"s_waitcnt vmcnt({min(63, after(f'c{c+1}'))}) lgkmcnt(0)")
            else: a("s_waitcnt lgkmcnt(0)")
            a("s_barrier")
            rd = reads(c + 1) if c + 1 < 10 else []
            if "qnolds" in self.abl: rd = []
            todo = []
            xa = 4 if self.x4 else 3
            if c + 3 < 10: todo += [(f"c{c+3}", pc) for pc in self.w_pieces(c + 3)]
            if c + xa < 10: todo += [(f"c{c+xa}", pc) for pc in self.x_pieces(c + xa)]
            todo += [("kv", None)] * self.early.get(c, 0)
            if self.touch == 10 + c: todo += [("t", pc) for pc in self.touch_pieces()]
            st = c & 1
            NG = self.qng
            g = 0
            seq = [(s, db, qb) for s in range(4) for db in range(2) for qb in range(3)]
            packq = []
            if c == 9:
                seq = [(s, db, qb) for db in range(2) for qb in range(3) for s in range(4)]
            NG = self.qng32
            for (s, db, qb) in seq:
                mine = todo[(g * len(todo) + NG - 1) // NG:((g + 1) * len(todo) + NG - 1) // NG]
                pcs = []
                for kind, pc in mine:
                    if kind[0] == "c" or kind == "t": order.append(kind); pcs.append(pc)
                    else:
                        pc = next_kv()
                        if pc: pcs.append(pc)
                if pcs and pcs[0][0]: a(pcs[0][0])
                acc = QACC + (db * 3 + qb) * 16
                cc = "0" if (c == 0 and s == 0) else vr(acc, 16)
                a(f"{MF32} {vr(acc,16)}, {ar(wf(st,s,db),4)}, {ar(xf(st,s,qb),4)}, {cc}")
                if c == 9:
                    mark = len(a.lines)
                    if g == 4: self.q_pack_setup32()
                    for _ in range(5):
                        if packq and sum(1 for l in a.lines[packq[0][0]:] if l.strip()) >= 12: a(packq.pop(0)[1])
                    if s == 3: packq += [(mark, l) for l in self.q_pack32(db, qb)]
                if pcs: a(pcs[0][1])
                for pc in pcs[1:]: self.emit_piece(pc)
                ng = self.qrg32
                for r in rd[(g * 28) // ng:((g + 1) * 28) // ng]: a(r)
                g += 1
                for t, cw in ((0, self.kvw[0]), (1, self.kvw[1])):
                    if c == cw and g == 18 and f"kv{t}" in order:
                        assert not any(tt == t for tt, _ in kvl)
                        a(f"s_waitcnt vmcnt({after(f'kv{t}')})")
                        for n in [n for n in range(8) if t < self.pre[n]]:
                            a(f"ds_write_b128 v{vKW + (n & 1)}, {ar(KVR+32*t+4*n,4)} offset:{t*TS + (n>>1)*PIT}")
            if self.qstamps and c in (2, 5, 8, 9): self.stamp({2: 3, 5: 4, 8: 5, 9: 6}[c])
        assert not kvl
        a('s_waitcnt vmcnt(0)') if False else None
        rlo, rhi = vT, vT + 1
        a("s_nop 11")
        for _, l in packq: a(l)
        a("s_waitcnt lgkmcnt(0)\ns_barrier")
        for s in range(4):
            for qb in range(6):
                a(f"ds_read_b128 {Qf(s,qb)}, v{rlo if qb < 3 else rhi} offset:{(qb%3)*16*QP + s*64}")
        self.stamp(2)

    def signal(self):
        a = self.a
        lab = a.newlabel("L_nosig")
        a(f"""
        s_cmp_lg_u32 s{sW}, 0
        s_cbranch_scc1 {lab}
        s_lshl_b32 s3, s{sB}, 5
        v_mov_b32 v254, s3
        v_mov_b32 v255, 1
        s_mov_b64 exec, 1
        global_atomic_add v254, v255, s[28:29] sc1
        s_mov_b64 exec, -1
        {lab}:
        """)
    def poll(self, sBATCH):
        a = self.a
        lab = a.newlabel("L_nopoll"); lp = a.newlabel("L_poll")
        a(f"""
        s_cmp_lg_u32 s{sW}, 0
        s_cbranch_scc1 {lab}
        s_lshl_b32 s3, s{sBATCH}, 5
        s_mov_b32 s{sLOOP}, 0
        v_mov_b32 v254, s3
        {lp}:
        global_load_dword v255, v254, s[28:29] sc1
        s_add_u32 s{sLOOP}, s{sLOOP}, 1
        s_waitcnt vmcnt(0)
        v_cmp_ne_u32 vcc, 32, v255
        s_cmp_gt_u32 s{sLOOP}, 0x40000
        s_cbranch_scc1 {lab}
        s_cbranch_vccz {lab}
        s_sleep 1
        s_branch {lp}
        {lab}:
        """)

    T_vO = [224, 225, 226, 227]; T_vA = [228, 229, 230, 231]; T_vE = [232, 233, 234, 235]
    T_vWD, T_vT2 = 250, 251
    sRT, sCT, sKW, sKO, sWOFF, sBATCH, sRX, sJ = 42, 43, 44, 48, 49, 50, 51, 38
    def tail_setup(self):
        sRT, sCT, sKW, sKO, sWOFF, sBATCH, sRX, sJ = self.sRT, self.sCT, self.sKW, self.sKO, self.sWOFF, self.sBATCH, self.sRX, self.sJ
        vWD2, t = self.T_vWD, self.T_vT2
        txt = f"""
        s_and_b32 s{sT0}, s2, 7
        s_lshr_b32 s{sJ}, s2, 3
        s_mul_i32 s{sRT}, s{sJ}, 52
        s_lshr_b32 s{sRT}, s{sRT}, 8
        s_mul_i32 s{sCT}, s{sRT}, 5
        s_sub_u32 s{sCT}, s{sJ}, s{sCT}
        s_add_u32 s{sKW}, s{sRT}, s{sCT}
        s_mul_i32 s{sKW}, s{sKW}, {self.orot}
        s_and_b32 s{sKW}, s{sKW}, 31
        s_mov_b32 s{sKO}, s{sKW}
        s_and_b32 s3, s{sT0}, 1
        s_mul_i32 s3, s3, 12
        s_add_u32 s{sRT}, s{sRT}, s3
        s_bfe_u32 s3, s{sT0}, 0x10001
        s_mul_i32 s3, s3, 6
        s_add_u32 s{sRT}, s{sRT}, s3
        s_lshr_b32 s3, s{sT0}, 2
        s_mul_i32 s3, s3, 5
        s_add_u32 s{sCT}, s{sCT}, s3
        s_mul_i32 s{sBATCH}, s{sRT}, 86
        s_lshr_b32 s{sBATCH}, s{sBATCH}, 8
        s_mov_b32 s96, s58
        s_mov_b32 s97, s59
        s_mov_b32 s98, {1536*1280}
        s_mov_b32 s99, 0x20000
        s_mul_i32 s{sWOFF}, s{sW}, {32*1280}
        s_lshl_b32 s3, s{sCT}, 7
        s_add_u32 s{sWOFF}, s{sWOFF}, s3
        s_mul_i32 s{sRX}, s{sW}, 12288
        s_add_u32 s{sRX}, s{sRX}, {116736 - 12288}
        s_cmp_eq_u32 s{sW}, 0
        s_cselect_b32 s{sRX}, 49152, s{sRX}
        v_lshrrev_b32 v{vWD2}, 3, v{vLANE}
        v_mul_u32_u24 v{vWD2}, 1280, v{vWD2}
        v_bfe_u32 v{t}, v{vLANE}, 4, 2
        v_lshlrev_b32 v{t}, 1, v{t}
        v_xor_b32 v{t}, v{t}, v{vLANE}
        v_and_b32 v{t}, 7, v{t}
        v_lshl_add_u32 v{vWD2}, v{t}, 4, v{vWD2}
        """
        if self.om32:
            txt += f"""v_lshrrev_b32 v{vWD2}, 3, v{vLANE}
            v_mul_u32_u24 v{vWD2}, 1280, v{vWD2}
            v_bfe_u32 v{t}, v{vLANE}, 4, 1
            v_lshlrev_b32 v{t}, 2, v{t}
            v_xor_b32 v{t}, v{t}, v{vLANE}
            v_and_b32 v{t}, 7, v{t}
            v_lshl_add_u32 v{vWD2}, v{t}, 4, v{vWD2}
            """
        return [l.strip() for l in txt.strip().split("\n")]
    def wo_issue(self, i):
        a = self.a
        sl = i % 9
        base = f"s{self.sRX}, {sl*4096}" if sl < 3 else f"s{sKVL}, {(sl-3)*4096}"
        if self.orot:
            a(f"s_mul_i32 s3, s{self.sKW}, {128*1280}\ns_add_u32 s{self.sKW}, s{self.sKW}, 1\ns_and_b32 s{self.sKW}, s{self.sKW}, 31\ns_add_u32 s3, s3, s{self.sWOFF}")
        else:
            a(f"s_add_u32 s3, s{self.sWOFF}, {i*128*1280}")
        a(f"s_add_u32 m0, {base}")
        for pc in range(4):
            if pc: a(f"s_add_u32 m0, m0, 1024\ns_add_u32 s3, s3, {8*1280}")
            else: a("s_nop 0")
            a(f"buffer_load_dwordx4 v{self.T_vWD}, s[92:95], s3 offen lds")
            self.vq.append(("W", i))
    def tail_early(self):
        a = self.a
        self.vq = []
        a(f"s_cmp_ge_u32 s{self.sJ}, 30\ns_cbranch_scc1 L1_noearly")
        for i in range(3): self.wo_issue(i)
        a("L1_noearly:")

    def tail(self):
        a = self.a
        NS, nR, PDA, NST = 9, self.nR, self.PDA, 32
        ACC, AR, BV = 0, 64, 160
        assert AR + 16 * PDA <= BV and nR <= 20
        vO, vA, vE, vT2 = self.T_vO, self.T_vA, self.T_vE, self.T_vT2
        sRT, sCT, sBATCH = self.sRT, self.sCT, self.sBATCH
        vq = self.vq
        def blk(i, off, n):
            b = i % nR
            return ar(16 * b + off, n) if b < 16 else vr(BV + 16 * (b - 16) + off, n)
        a(f"s_cmp_ge_u32 s{self.sJ}, 30\ns_cbranch_scc1 L1_notile")
        def vwait(tag):
            idx = [n for n, t in enumerate(vq) if t == tag]
            if not idx: return
            cnt = len(vq) - 1 - idx[-1]
            assert cnt <= 63
            a(f"s_waitcnt vmcnt({cnt})")
            del vq[:idx[-1] + 1]
        def wo_read(i):
            sl = i % NS
            ad, off = (vE, sl * 4096) if sl < 3 else (vA, (sl - 3) * 4096)
            for nb in range(4):
                for u in range(2):
                    if self.om32:
                        a(f"ds_read_b64_tr_b16 {blk(i,4*nb+2*u,2)}, v{ad[nb&1]} offset:{off + (nb>>1)*2048 + u*1024}")
                    else:
                        a(f"ds_read_b64_tr_b16 {blk(i,4*nb+2*u,2)}, v{ad[nb]} offset:{off + u*2048}")
        if not self.late_st:
            for i in range(3, NS): self.wo_issue(i)
        z = vO[3]
        a(f"""
        v_lshrrev_b32 v{vT2}, 2, v{vLANE}
        v_lshlrev_b32 v{z}, 7, v{vT2}
        v_bfe_u32 v{vT2}, v{vT2}, 1, 2
        v_lshl_or_b32 v{z}, v{vT2}, 5, v{z}
        v_and_b32 v{vT2}, 3, v{vLANE}
        v_lshl_or_b32 v{z}, v{vT2}, 3, v{z}
        v_xor_b32 v{vO[0]}, 32, v{z}
        v_xor_b32 v{vO[1]}, 64, v{z}
        v_xor_b32 v{vO[2]}, 96, v{z}
        v_add_u32 v{vA[0]}, s{sKVL}, v{z}
        v_add_u32 v{vA[1]}, s{sKVL}, v{vO[0]}
        v_add_u32 v{vA[2]}, s{sKVL}, v{vO[1]}
        v_add_u32 v{vA[3]}, s{sKVL}, v{vO[2]}
        v_add_u32 v{vE[0]}, s{self.sRX}, v{z}
        v_add_u32 v{vE[1]}, s{self.sRX}, v{vO[0]}
        v_add_u32 v{vE[2]}, s{self.sRX}, v{vO[1]}
        v_add_u32 v{vE[3]}, s{self.sRX}, v{vO[2]}
        s_lshl_b32 s3, s{sRT}, 19
        s_lshl_b32 s{sT0}, s{sW}, 10
        s_add_u32 s3, s3, s{sT0}
        v_lshlrev_b32 v{vT2}, 4, v{vLANE}
        v_add_u32 v{vO[0]}, s3, v{vT2}
        v_add_u32 v{vO[1]}, 0x20000, v{vO[0]}
        v_add_u32 v{vO[2]}, 0x40000, v{vO[0]}
        v_add_u32 v{vO[3]}, 0x60000, v{vO[0]}
        """)
        if self.om32:
            a(f"""
            v_lshrrev_b32 v{vE[2]}, 5, v{vLANE}
            v_bfe_u32 v{vE[3]}, v{vLANE}, 2, 2
            v_lshl_add_u32 v{vE[2]}, v{vE[2]}, 2, v{vE[3]}
            v_lshlrev_b32 v{vA[2]}, 7, v{vE[2]}
            v_bfe_u32 v{vE[3]}, v{vE[2]}, 1, 1
            v_lshl_or_b32 v{vA[2]}, v{vE[3]}, 6, v{vA[2]}
            v_bfe_u32 v{vE[3]}, v{vLANE}, 4, 1
            v_lshl_or_b32 v{vA[2]}, v{vE[3]}, 5, v{vA[2]}
            v_and_b32 v{vE[3]}, 3, v{vLANE}
            v_lshl_or_b32 v{vA[2]}, v{vE[3]}, 3, v{vA[2]}
            v_xor_b32 v{vA[3]}, 64, v{vA[2]}
            v_add_u32 v{vA[0]}, s{sKVL}, v{vA[2]}
            v_add_u32 v{vA[1]}, s{sKVL}, v{vA[3]}
            v_add_u32 v{vE[0]}, s{self.sRX}, v{vA[2]}
            v_add_u32 v{vE[1]}, s{self.sRX}, v{vA[3]}
            s_lshl_b32 s3, s{sRT}, 19
            s_lshl_b32 s{sT0}, s{sW}, 11
            s_add_u32 s3, s3, s{sT0}
            v_add_u32 v{vO[0]}, s3, v{vT2}
            v_add_u32 v{vO[1]}, 0x40000, v{vO[0]}
            """)
        nextW = NS
        n0 = NS if self.late_st else 3
        for i in range(n0):
            vwait(("W", i))
            wo_read(i)
            if i >= 1:
                a("s_waitcnt lgkmcnt(8)")
                self.wo_issue(nextW); nextW += 1
        if self.st0:
            a("s_waitcnt vmcnt(0)"); del vq[:]
        else: vwait(("S", 0))
        a("s_barrier")
        self.stamp(4)
        self.signal()
        def o_issue(i):
            b = AR + 16 * (i % PDA)
            if self.orot: a(f"s_lshl_b32 s{sT1}, s{self.sKO}, 12\ns_add_u32 s{self.sKO}, s{self.sKO}, 1\ns_and_b32 s{self.sKO}, s{self.sKO}, 31")
            else: a(f"s_mov_b32 s{sT1}, {i*(8192 if self.om32 else 4096)}")
            for qb in range(4):
                if self.om32:
                    a(f"buffer_load_dwordx4 {vr(b+4*qb,4)}, v{vO[qb&1]}, s[24:27], s{sT1} offen offset:{(qb>>1)*1024} sc1")
                else:
                    a(f"buffer_load_dwordx4 {vr(b+4*qb,4)}, v{vO[qb]}, s[24:27], s{sT1} offen sc1")
                vq.append(("O", i))
        for i in range(n0, nR):
            if i == self.xB:
                self.stamp(5)
                self.poll(sBATCH)
                a("s_barrier")
                self.stamp(6)
                for n in range(PDA): o_issue(n)
            vwait(("W", i))
            wo_read(i)
            if nextW < NST:
                a("s_waitcnt lgkmcnt(8)")
                self.wo_issue(nextW); nextW += 1
        a("s_waitcnt lgkmcnt(0)")
        self.wo_issue(nextW); nextW += 1
        assert nextW == nR + NS
        if self.xB >= nR:
            self.stamp(5)
            self.poll(sBATCH)
            a("s_barrier")
            self.stamp(6)
            for n in range(PDA): o_issue(n)
        if self.tstamps: self.stamp(1)
        pend = None
        def capture(fn, *args):
            n0 = len(a.lines)
            fn(*args)
            out = a.lines[n0:]
            del a.lines[n0:]
            return out
        for i in range(NST):
            blkA = AR + 16 * (i % PDA)
            vwait(("O", i))
            if self.tstamps and i == 0: self.stamp(4)
            if self.tstamps and i == 16: self.stamp(5)
            if i == NST - nR + 2: a("s_waitcnt lgkmcnt(0)")
            fill = []
            if i >= 1:
                if i - 1 + PDA < NST: fill += capture(o_issue, i - 1 + PDA)
                if i - 1 + nR < NST:
                    fill += capture(vwait, ("W", i - 1 + nR)) + capture(wo_read, i - 1 + nR)
                if pend is not None:
                    fill += ["    s_waitcnt lgkmcnt(8)"] + capture(self.wo_issue, pend); pend = None
                if i - 1 + nR < NST and nextW < NST:
                    pend = nextW; nextW += 1
            fi = 0
            NM_ = 8 if self.om32 else 16
            for mi in range(NM_):
                if self.om32:
                    kk, nb, qb = mi >> 2, (mi >> 1) & 1, mi & 1
                    acc = ACC + 16 * (nb * 2 + qb)
                    cc = "0" if (i == 0 and kk == 0) else vr(acc, 16)
                    a(f"{MF32} {vr(acc,16)}, {blk(i,4*(2*kk+nb),4)}, {vr(blkA+4*(2*kk+qb),4)}, {cc}")
                else:
                    nb, qb = mi // 4, mi % 4
                    acc = ACC + 4 * mi
                    cc = "0" if i == 0 else vr(acc, 4)
                    a(f"{MF} {vr(acc,4)}, {blk(i,4*nb,4)}, {vr(blkA+4*qb,4)}, {cc}")
                tgt = (len(fill) * (mi + 1) + NM_ - 1) // NM_
                while fi < tgt:
                    a.lines.append(fill[fi]); fi += 1
        assert nextW >= NST and pend is None, (nextW, pend)
        if self.tstamps: self.stamp(2)
        a(f"""
        s_lshl_b32 s3, s{sW}, 14
        v_add_u32 v{vA[0]}, s3, v{vT2}
        s_lshl_b32 s3, s{sW}, 12
        v_add_u32 v{vA[1]}, s3, v{vT2}
        s_nop 7
        s_barrier
        """)
        for j in range(16): a(f"ds_write_b128 v{vA[0]}, {vr(ACC+4*j,4)} offset:{1024*j}")
        a(f"""
        s_lshl_b32 s3, s{sRT}, 6
        s_mul_i32 s3, s3, 1280
        s_lshl_b32 s{sT1}, s{sCT}, 7
        s_add_u32 s3, s3, s{sT1}
        s_lshl_b32 s{sT0}, s{sW}, 5
        s_add_u32 s3, s3, s{sT0}
        v_and_b32 v64, 15, v{vLANE}
        v_mul_u32_u24 v64, 1280, v64
        v_lshrrev_b32 v65, 4, v{vLANE}
        v_lshl_add_u32 v64, v65, 3, v64
        v_add_u32 v64, s3, v64
        v_add_u32 v65, {16*1280}, v64
        v_add_u32 v66, {32*1280}, v64
        v_add_u32 v67, {48*1280}, v64
        """)
        if self.om32:
            a(f"""
            s_lshl_b32 s3, s{sRT}, 6
            s_and_b32 s{sT0}, s{sW}, 1
            s_lshl_b32 s{sT0}, s{sT0}, 5
            s_add_u32 s3, s3, s{sT0}
            s_mul_i32 s3, s3, 1280
            s_lshl_b32 s{sT1}, s{sCT}, 7
            s_add_u32 s3, s3, s{sT1}
            s_lshr_b32 s{sT0}, s{sW}, 1
            s_lshl_b32 s{sT0}, s{sT0}, 6
            s_add_u32 s3, s3, s{sT0}
            v_and_b32 v64, 31, v{vLANE}
            v_mul_u32_u24 v64, 1280, v64
            v_lshrrev_b32 v65, 5, v{vLANE}
            v_lshl_add_u32 v64, v65, 3, v64
            v_add_u32 v64, s3, v64
            v_add_u32 v65, 16, v64
            v_add_u32 v66, 32, v64
            v_add_u32 v67, 48, v64
            """)
        a("s_waitcnt lgkmcnt(0)\ns_barrier")
        for j in range(4):
            for w in range(4):
                a(f"ds_read_b128 {vr(16*w+4*j,4)}, v{vA[1]} offset:{w*16384 + 1024*j}")
        for qb in range(4):
            a(f"s_waitcnt lgkmcnt({12-4*qb})")
            for e in range(2):
                r = 4 * qb + 2 * e
                a(f"v_pk_add_f32 {vr(r,2)}, {vr(r,2)}, {vr(16+r,2)}")
                a(f"v_pk_add_f32 {vr(32+r,2)}, {vr(32+r,2)}, {vr(48+r,2)}")
            for e in range(2):
                r = 4 * qb + 2 * e
                a(f"v_pk_add_f32 {vr(r,2)}, {vr(r,2)}, {vr(32+r,2)}")
            a(f"v_cvt_pk_bf16_f32 v{68+2*qb}, v{4*qb}, v{4*qb+1}")
            a(f"v_cvt_pk_bf16_f32 v{69+2*qb}, v{4*qb+2}, v{4*qb+3}")
            a(f"buffer_store_dwordx2 {vr(68+2*qb,2)}, v{64+qb}, s[96:99], 0 offen")
        if self.stamps:
            a("s_waitcnt vmcnt(0)")
            if not (self.lstamps or self.qstamps): self.stamp(7)
            self.stamp_store("L1_end")
        a("s_branch L1_end")
        a.label("L1_notile")
        a("s_waitcnt vmcnt(0)\ns_barrier")
        self.signal()

    def kernel(self):
        a = self.a
        a.begin_kernel("attn_kernel", 256, 256, LDS1, 512, accum=256)
        self.prologue()
        self.qphase32() if self.qm32 else self.qphase()
        self.main_loop()
        if self.stamps and (self.lstamps or self.qstamps):
            st = self.stamps; self.stamps = False
            self.stamp = lambda i: None
            self.stamps = st
        self.tail()
        a.label("L1_end")
        a("s_endpgm")
        for stub, ret, h in self.stubs:
            a.label(stub)
            a(f"s_call_b64 s[{sRET}:{sRET+1}], L_slow{h}\ns_branch {ret}")
        for h in range(2): self.slow_sub(h)

def build(name, **kw):
    g = Gen(**kw)
    g.kernel()
    open(name, "w").write(g.a.text())

def rate(name, ahead, late, **kw):
    dist = tuple(2 if n < ahead else 1 for n in range(8))
    porder = tuple(range(ahead, 8)) + tuple(range(ahead))
    pos = list(range(8 - ahead)) + [late + 2 * i for i in range(ahead)]
    build(name, dist=dist, porder=porder, dma_pos=pos, **kw)

if __name__ == "__main__":
    kw = dict(qkorder=1, dist=(2,)*8, warm=30, early={3: 4, 4: 4, 5: 4, 6: 4}, PDA=6, xB=17)
    build("f5.s", dma_pos=[0, 3, 6, 10, 14, 18, 24, 28], wcap=3, **kw)
    build("f5_b.s", dma_pos=[0, 3, 6, 9, 13, 17, 24, 28], wcap=3, **kw)
    build("f5_c.s", dma_pos=[0, 3, 7, 11, 15, 19, 24, 28], wcap=3, **kw)
    build("f5_d.s", dma_pos=[1, 5, 9, 13, 17, 21, 25, 29], wcap=4, kvw=(8, 9), **{**kw, "warm": 31})
    build("f5_nw.s", dma_pos=[0, 3, 6, 10, 14, 18, 24, 28], wcap=2, **{**kw, "warm": 0})
```

```python
import sys, struct
from asmlib import Asm

def f32(x):
    return "0x%08x" % struct.unpack("<I", struct.pack("<f", x))[0]
def vr(b, n): return f"v[{b}:{b+n-1}]"
def ar(b, n): return f"a[{b}:{b+n-1}]"

PIT = 1056
TS = 16 * PIT
VB0 = 4 * TS
SPARE = 8 * TS
LDS1 = 163840
XP = 6 * 1024 + 32
XSZ = 4 * XP
XST = [TS, TS + XSZ, SPARE]
WST = [VB0 + TS, VB0 + 2 * TS, VB0 + 3 * TS]
QP = 288
QA1 = VB0 + 3 * TS
THR = 4096.0
CSC = 1.4426950408889634 / (128 ** 0.5)
MF = "v_mfma_f32_16x16x32_bf16"
MF32 = "v_mfma_f32_32x32x16_bf16"
XP32, WP32 = 3088, 1088

OW, S, P, NM = 0, 96, 144, 168
QA_, KF, VF = 96, 192, 224
vL, vTS, vT = 192, 198, 202
vTSH = [198, 222]
vSUM = [201, 208]
vST, vSTS = 226, 234
vK, vVA, vVB, vDMA, vLANE = 209, 210, 211, 212, 253
vX, vW, vX2, vW2, vXD, vWD, vKW = 214, 215, 216, 217, 218, 219, 220
QACC = 0
QSET = [0, 80]
KVR = 160

def Or(j, qb):
    return vr(OW + (j * 6 + qb) * 4, 4) if j < 4 else ar(((j - 4) * 6 + qb) * 4, 4)
def Qf(s, qb): return ar(QA_ + 4 * (s * 6 + qb), 4)
def Si(kb, qb): return S + ((qb // 3) * 6 + kb * 3 + qb % 3) * 4

sW, sB, sH = 32, 33, 34
sTHR = [36, 36]
sKVO, sKVL = 40, 41
sCH, sXO, sWO, sT0, sT1 = 42, 43, 44, 45, 46
sLOOP = 47
sXB, sWB, sXS, sWS = 48, 49, 50, 51
sQH, sKH = 52, 53
sRET = 54
sTW = 37
vTW = 252
sD = [30, 31, 35]
SRD_K, SRD_V, SRD_X, SRD_W = 16, 20, 24, 96

class Gen:
    def __init__(self, stamps=False, kvstride=16384, abl=(), early=None, kvw=(8, 9), fused=True, nR=20, xB=12,
                 dma_pos=None, touch=2, nfirst=3, pstamps=False, om32=False, tstamps=False, st0=True, orot=0, late_st=False, qm32=False, x4=False, ks=0, summode=0, wcap=63, tlbk=-1, dbgst=False, qrot=1, warm=0, qng=16, qrg=12, qng32=22, qrg32=20, pad=0, pvorder=0, qkorder=0, dist=(3,)*8, pre=None, porder=(0, 1, 2, 3, 4, 5, 6, 7), linear=False, korder=0, chain=False, head=12, target=2.4, gap_max=4, ds_cost=1, dma_cost=2, lstamps=False, qstamps=False, PDA=10, tilemap=0):
        self.a = Asm()
        self.__dict__.update(locals())
        if early is None: self.early = {3: 4, 4: 4, 5: 4, 6: 4, 7: 4, 8: 4}
        if pre is None: self.pre = self.dist
        self.dsq = []
        self.stubs = []
        self.src = {}

    def stamp(self, i):
        if self.pstamps and i in (3, 4, 5, 6): return
        if self.stamps:
            self.a(f"s_memrealtime s[{60+2*i}:{61+2*i}]")
            self.a(f"s_memtime s[{76+2*i}:{77+2*i}]")
    def stamp_store(self, end):
        a = self.a
        if self.dbgst:
            a(f"""
            s_cmp_eq_u32 s{sW}, 0
            s_cbranch_scc0 {end}
            s_and_b32 s3, s2, 0xef
            s_cmp_eq_u32 s3, 0x60
            s_cbranch_scc0 {end}
            s_waitcnt lgkmcnt(0)
            s_lshr_b32 s3, s2, 4
            s_and_b32 s3, s3, 1
            s_lshl_b32 s3, s3, 5
            v_mov_b32 v1, s3
            """)
            for i in range(1, 8):
                a(f"s_sub_u32 s3, s{60+2*i}, s60\nv_mov_b32 v{3+i}, s3")
            a(f"""
            v_cmp_eq_u32 vcc, 0, v{vLANE}
            s_and_saveexec_b64 s[54:55], vcc
            global_store_dwordx4 v1, v[4:7], s[28:29] offset:4
            global_store_dwordx3 v1, v[8:10], s[28:29] offset:20
            """)
            return
        a(f"""
        s_cmp_eq_u32 s{sW}, 0
        s_cbranch_scc0 {end}
        s_waitcnt lgkmcnt(0)
        s_add_u32 s14, s12, 0x10000000
        s_addc_u32 s15, s13, 0
        s_lshl_b32 s3, s2, 7
        v_mov_b32 v1, s3
        """)
        for i in range(32): a(f"v_mov_b32 v{4+i}, s{60+i}")
        a(f"v_cmp_eq_u32 vcc, 0, v{vLANE}\ns_and_saveexec_b64 s[54:55], vcc")
        for i in range(8): a(f"global_store_dwordx4 v1, v[{4+4*i}:{7+4*i}], s[14:15] offset:{16*i}")

    def ds(self, text, tag):
        self.a(text); self.dsq.append(tag)
    def need(self, tag):
        idx = [i for i, t in enumerate(self.dsq) if t == tag]
        if not idx: return
        cnt = min(len(self.dsq) - 1 - idx[-1], 15)
        self.a(f"s_waitcnt lgkmcnt({cnt})")
        self.dsq = self.dsq[len(self.dsq) - cnt:]

    def toff(self, t):
        if self.kvstride == 0: return 0
        m = 1 << self.ks
        return ((t & (m - 1)) << 12) | ((t >> self.ks) << (14 + self.ks))
    def kv_piece(self, t, n, reg=None, k=None):
        isv, j = n & 1, n >> 1
        srd = SRD_V if isv else SRD_K
        off = f" offset:{j*256}" if j else ""
        pre = ""
        if k is None:
            pre = f"s_add_u32 s{sT1}, s{sKVO}, {self.toff(t)}\n"
            so = sT1
        else:
            so = sD[t - k - 1]
        if reg is None:
            pre += f"s_add_u32 m0, s{sKVL}, {isv*VB0 + (t%4)*TS + j*(PIT-256)}"
            post = f"buffer_load_dwordx4 v{vDMA}, s[{srd}:{srd+3}], s{so} offen{off} nt lds"
        else:
            post = f"buffer_load_dwordx4 {ar(reg+4*n,4)}, v{vDMA}, s[{srd}:{srd+3}], s{so} offen{off} nt"
        return pre.rstrip("\n"), post
    def dist_of(self, n, k):
        return self.dist[n]
    def main_pieces(self, k):
        out = []
        for n in self.porder:
            t = k + self.dist[n]
            if t >= self.pre[n] and (k <= 29 or t <= 31):
                out.append((n, t))
        return out
    def warm_on(self, k): return self.warm and 1 <= k <= 29
    def warm_piece(self):
        pre = f"s_mov_b32 m0, {LDS1-1024}"
        post = f"""buffer_load_dwordx4 v{vTW}, s[92:95], s{sTW} offen lds
        s_add_u32 s39, s39, 1
        s_cmp_eq_u32 s39, 5
        s_cselect_b32 s3, {32*1280-4*128}, s{sT1}
        s_cselect_b32 s39, 0, s39
        s_add_u32 s{sTW}, s{sTW}, s3"""
        return pre, post
    def main_wait(self, k):
        order = []
        for kk in range(0, k):
            order += [t for n, t in self.main_pieces(kk)]
            if self.warm_on(kk): order.append(999)
        idx = [i for i, t in enumerate(order) if t <= k]
        return len(order) - 1 - idx[-1] if idx else len(order)
    def w_pieces(self, c):
        wb = self.wslot(c)
        head = f"""s_lshl_b32 s{sWO}, s{sCH}, 19
        s_add_u32 s{sWO}, s{sWO}, s{sWS}
        s_add_u32 s{sCH}, s{sCH}, 1
        s_cmp_ge_u32 s{sCH}, 10
        s_cselect_b32 s{sCH}, 0, s{sCH}
        """
        W = f"s[{SRD_W}:{SRD_W+3}]"
        return [((head if e == 0 else f"s_add_u32 s{sWO}, s{sWO}, 8192\n") + f"s_add_u32 m0, s{sWB}, {wb + e*(WP32 if self.qm32 else PIT)}",
                 f"buffer_load_dwordx4 v{vWD}, {W}, s{sWO} offen lds") for e in range(4)]
    def x_pieces(self, c):
        xb = self.xslot(c)
        head = f"""s_lshl_b32 s{sXO}, s39, 7
        s_add_u32 s{sXO}, s{sXO}, s{sXS}
        s_add_u32 s39, s39, 1
        s_cmp_ge_u32 s39, 10
        s_cselect_b32 s39, 0, s39
        """
        X = f"s[{SRD_X}:{SRD_X+3}]"
        if self.qm32:
            inc = [0, 64*1280, 64*1280, 1280 - 128*1280, 64*1280, 64*1280]
            return [((head if u == 0 else (f"s_add_u32 s{sXO}, s{sXO}, {inc[u]}\n" if inc[u] > 0 else f"s_sub_u32 s{sXO}, s{sXO}, {-inc[u]}\n"))
                     + f"s_add_u32 m0, s{sXB}, {xb + (u//3)*XP32 + (u%3)*1024}",
                     f"buffer_load_dwordx4 v{vXD}, {X}, s{sXO} offen lds") for u in range(6)]
        return [((head if u == 0 else f"s_add_u32 s{sXO}, s{sXO}, {32*1280}\n") + f"s_add_u32 m0, s{sXB}, {xb + u*1024}",
                 f"buffer_load_dwordx4 v{vXD}, {X}, s{sXO} offen lds") for u in range(6)]
    def xslot(self, c):
        if self.x4: return [0, XSZ, SPARE, 2 * XSZ][{6: 0, 8: 1, 9: 2, 7: 3}[6 + (c - 6) % 4]]
        return XST[(c + 2) % 3]
    def wslot(self, c):
        if self.x4: return 3 * XSZ + ((c - 7) % 3) * (16 * WP32 if self.qm32 else TS)
        return WST[(c + 2) % 3]
    def touch_pieces(self):
        return [(f"s_mov_b32 m0, {LDS1-1024}", f"buffer_load_dwordx4 v{vTW}, s[92:95], s{sTW} offen lds\ns_add_u32 s{sTW}, s{sTW}, 1024") for n in range(5)]
    def emit_piece(self, pc):
        self.a((pc[0] + "\ns_nop 0\n" if pc[0] else "") + pc[1])

    def kread(self, slot, f):
        if "nolds" in self.abl: return
        kb, s = f >> 2, f & 3
        self.ds(f"ds_read_b128 {ar(KF+4*f,4)}, v{vK} offset:{slot*TS + kb*256 + s*64}", ("K", f))
    def vread(self, slot, j):
        if "nolds" in self.abl: return
        ad = vVA if j < 4 else vVB
        for u in range(2):
            self.ds(f"ds_read_b64_tr_b16 {ar(VF+4*j+2*u,2)}, v{ad} offset:{slot*TS + u*256 + j*32}", ("V", j))

    def sm_stream(self, h, T=vT, check=True):
        out = []
        if "nosm" in self.abl: return out
        TSV = vTSH[h]
        pairs = [(kb, q3, e) for kb in range(2) for q3 in range(3) for e in range(2)]
        def tmp(i): return T + (i % 3) * 2
        def ex(i):
            kb, q3, e = pairs[i]
            r = Si(kb, 3 * h + q3) + 2 * e
            self.src[f"v_exp_f32 v{tmp(i)}, v{r}"] = (h, kb, q3)
            out.append((2, f"v_exp_f32 v{tmp(i)}, v{r}"))
            out.append((2, f"v_exp_f32 v{tmp(i)+1}, v{r+1}"))
        ex(0)
        late = []
        for i, (kb, q3, e) in enumerate(pairs):
            if i + 1 < len(pairs): ex(i + 1)
            else: out.append((1, f"v_add_f32 v{vSUM[h]}, v{TSV}, v{TSV+1}"))
            t = tmp(i)
            pr = P + 4 * (3 * h + q3) + 2 * kb + e
            cv = (1, f"v_cvt_pk_bf16_f32 v{pr}, v{t}, v{t+1}")
            if self.summode == 1:
                acc2 = 238 + 6 * h + 2 * q3
                if kb == 0 and e == 0: out.append((1, f"v_pk_add_f32 {vr(acc2,2)}, {vr(t,2)}, 0"))
                else: out.append((1, f"v_pk_add_f32 {vr(acc2,2)}, {vr(acc2,2)}, {vr(t,2)}"))
                if kb == 1 and e == 1: out.append((1, f"v_add_f32 v{TSV+q3}, v{acc2}, v{acc2+1}"))
            elif self.summode == 2:
                out.append(cv)
                if kb == 0 and e == 0: cv = (1, f"v_dot2_f32_bf16 v{TSV+q3}, v{pr}, v250, 0")
                else: cv = (1, f"v_dot2c_f32_bf16 v{TSV+q3}, v{pr}, v250")
                out.append(cv); cv = None
            elif kb == 0 and e == 0:
                out.append((1, f"v_add_f32 v{TSV+q3}, v{t}, v{t+1}"))
            elif "noadd" not in self.abl:
                out.append((1, f"v_add_f32 v{TSV+q3}, v{TSV+q3}, v{t}"))
                out.append((1, f"v_add_f32 v{TSV+q3}, v{TSV+q3}, v{t+1}"))
            if cv is None: continue
            if i >= len(pairs) - 1: late.append(cv)
            else: out.append(cv)
        if check:
            out.append((1, f"v_add_f32 v{vSUM[h]}, v{vSUM[h]}, v{TSV+2}"))
            out.append((1, f"v_cmp_lt_f32 vcc, s{sTHR[h]}, v{vSUM[h]}"))
        out += late
        return out
    def gated(self, items, G, start=0):
        return [(c, t, self.src.get(t, 0)) for c, t in items]
    def ninstr(self):
        return sum(1 for l in self.a.lines[-40:] if not l.strip().endswith(":") ) + 0
    def gate_ok(self, key):
        if key == 0: return True
        if key not in self.ready: return False
        n = sum(1 for l in self.a.lines[self.ready[key]:] if l.strip() and not l.strip().endswith(":"))
        return n >= 8
    def first_stream(self, h):
        out = []
        m = [vST, vST + 1, vST + 2]; n = [vST + 3, vST + 4, vST + 5]
        def add(t, key=0): out.append((1, t, key))
        for q3 in range(3):
            s0, s1 = Si(0, 3*h+q3), Si(1, 3*h+q3)
            add(f"v_max3_f32 v{m[q3]}, v{s0}, v{s0+1}, v{s0+2}", (h, 0, q3))
        for q3 in range(3):
            s0, s1 = Si(0, 3*h+q3), Si(1, 3*h+q3)
            add(f"v_max3_f32 v{m[q3]}, v{m[q3]}, v{s0+3}, v{s1}", (h, 1, q3))
            add(f"v_max3_f32 v{m[q3]}, v{m[q3]}, v{s1+1}, v{s1+2}")
            add(f"v_max_f32 v{m[q3]}, v{m[q3]}, v{s1+3}")
        for sw in ("v_permlane16_swap_b32", "v_permlane32_swap_b32"):
            for q3 in range(3): add(f"v_mov_b32 v{n[q3]}, v{m[q3]}")
            add("s_nop 1")
            for q3 in range(3): add(f"{sw} v{m[q3]}, v{n[q3]}")
            for q3 in range(3): add(f"v_max_f32 v{m[q3]}, v{m[q3]}, v{n[q3]}")
        for q3 in range(3):
            qb = 3 * h + q3
            for kb in range(2):
                for r in range(4): add(f"v_sub_f32 v{Si(kb,qb)+r}, v{Si(kb,qb)+r}, v{m[q3]}")
            for r in range(4): add(f"v_sub_f32 v{NM+4*qb+r}, 0, v{m[q3]}")
        return out
    def check_branch(self, h):
        a = self.a
        if "nosm" in self.abl: return []
        if not self.abl:
            stub = a.newlabel("L_stub"); ret = a.newlabel("L_ret")
            self.stubs.append((stub, ret, h))
            a(f"s_cbranch_vccnz {stub}\n{ret}:")
        return [(1, f"v_add_f32 v{vL+3*h+q3}, v{vL+3*h+q3}, v{vTSH[h]+q3}") for q3 in range(3)]

    def slow_sub(self, h):
        a = self.a
        a.label(f"L_slow{h}")
        m = [vST, vST + 1, vST + 2]; n = [vST + 3, vST + 4, vST + 5]
        for q3 in range(3):
            s0, s1 = Si(0, 3*h+q3), Si(1, 3*h+q3)
            a(f"v_max3_f32 v{m[q3]}, v{s0}, v{s0+1}, v{s0+2}")
            a(f"v_max3_f32 v{m[q3]}, v{m[q3]}, v{s0+3}, v{s1}")
            a(f"v_max3_f32 v{m[q3]}, v{m[q3]}, v{s1+1}, v{s1+2}")
            a(f"v_max_f32 v{m[q3]}, v{m[q3]}, v{s1+3}")
        for sw in ("v_permlane16_swap_b32", "v_permlane32_swap_b32"):
            for q3 in range(3): a(f"v_mov_b32 v{n[q3]}, v{m[q3]}")
            a("s_nop 1")
            for q3 in range(3): a(f"{sw} v{m[q3]}, v{n[q3]}")
            for q3 in range(3): a(f"v_max_f32 v{m[q3]}, v{m[q3]}, v{n[q3]}")
        for q3 in range(3): a(f"v_max_f32 v{m[q3]}, 0, v{m[q3]}")
        for q3 in range(3): a(f"v_exp_f32 v{n[q3]}, -v{m[q3]}")
        for q3 in range(3):
            qb = 3 * h + q3
            for kb in range(2):
                for r in range(4): a(f"v_sub_f32 v{Si(kb,qb)+r}, v{Si(kb,qb)+r}, v{m[q3]}")
            for r in range(4): a(f"v_sub_f32 v{NM+4*qb+r}, v{NM+4*qb+r}, v{m[q3]}")
            a(f"v_mul_f32 v{vL+qb}, v{vL+qb}, v{n[q3]}")
            for j in range(4):
                for r in range(4): a(f"v_mul_f32 v{OW+(j*6+qb)*4+r}, v{OW+(j*6+qb)*4+r}, v{n[q3]}")
            for j in range(4):
                t = [vSTS, vSTS + 1, vSTS + 2, vSTS + 3]
                for r in range(4): a(f"v_accvgpr_read_b32 v{t[r]}, a{(j*6+qb)*4+r}")
                for r in range(4): a(f"v_mul_f32 v{t[r]}, v{t[r]}, v{n[q3]}")
                for r in range(4): a(f"v_accvgpr_write_b32 a{(j*6+qb)*4+r}, v{t[r]}")
        for c, t in self.sm_stream(h, T=vST, check=False): a(t)
        a(f"s_nop 1\ns_setpc_b64 s[{sRET}:{sRET+1}]")

    def mk(self, kind, h, items, **kw):
        return dict(kind=kind, h=h, items=items, **kw)
    def pv_groups(self, h, first=False, after=None, js=range(8)):
        if self.pvorder == 0:
            return [self.mk("pv", h, [(j, q3) for q3 in range(3)], first=first, after=[(lambda j=j: after(j))] if after else []) for j in js]
        seq = [(j, q3) for q3 in range(3) for j in range(8)]
        out = []
        for g in range(8):
            it = seq[3 * g:3 * g + 3]
            aft = []
            if after:
                if self.pv_after_k:
                    aft = [(lambda j=g: after(j))]
                else:
                    aft = [(lambda j=j: after(j)) for j, q3 in it if q3 == 2]
            out.append(self.mk("pv", h, it, first=first, after=aft))
        return out
    def qk_groups(self, h):
        if self.qkorder == 0:
            return [self.mk("qk", h, [(f, q3) for q3 in range(3)]) for f in range(8)]
        seq = [(4 * kb + s, q3) for kb in range(2) for q3 in range(3) for s in range(4)]
        return [self.mk("qk", h, seq[3 * g:3 * g + 3]) for g in range(8)]

    def run(self, groups, vq, target, keep=False):
        a = self.a
        cum = 0.0; m = 0
        if not keep: self.ready = {}
        for gi, g in enumerate(groups):
            kind, h = g["kind"], g["h"]
            if g.get("check") is not None:
                vq[0:0] = [(c, t, 0) for c, t in self.check_branch(g["check"])]
                cum += 1
            dma = g.get("dma")
            if self.pad: a(f"s_nop {self.pad-1}")
            if dma and dma[0]: a(dma[0]); cum += 1
            for n, (j, q3) in enumerate(g["items"]):
                qb = 3 * h + q3
                n0 = len(a.lines)
                self.need(("V" if kind == "pv" else "K", j))
                cum += len(a.lines) - n0
                if kind == "pv":
                    c = "0" if g.get("first") else Or(j, qb)
                    a(f"{MF} {Or(j,qb)}, {ar(VF+4*j,4)}, {vr(P+4*qb,4)}, {c}")
                    self.ready[("pv", j, qb)] = len(a.lines)
                else:
                    kb, s = j >> 2, j & 3
                    c = vr(NM + 4 * qb, 4) if s == 0 else vr(Si(kb, qb), 4)
                    a(f"{MF} {vr(Si(kb,qb),4)}, {ar(KF+4*j,4)}, {Qf(s,qb)}, {c}")
                    if s == 3: self.ready[(h, kb, q3)] = len(a.lines)
                cur = 0
                if n == 0 and dma:
                    a(dma[1]); cur += self.dma_cost
                if n == 2:
                    n0 = len(a.lines)
                    for fn in g.get("after", []): fn()
                    cur += (len(a.lines) - n0) * self.ds_cost
                m += 1
                while vq and self.gate_ok(vq[0][2]) and (cur < 2 or cum + cur + vq[0][0] <= target * m + 0.5):
                    if cur >= 2 and cur + vq[0][0] > self.gap_max: break
                    if cur == 1 and vq[0][0] == 2 and cum + cur + 2 > target * m + 1.5: break
                    c, t, _ = vq.pop(0)
                    a(t); cur += c
                cum += max(cur, 0)

    def tlb_warm(self):
        a = self.a
        for l in self.tail_setup(): a(l)
        a(f"""
        s_mov_b32 s24, s12
        s_mov_b32 s25, s13
        s_mov_b32 s26, {96*128*1024}
        s_mov_b32 s27, 0x20000
        s_mul_i32 s3, s{sB}, 12
        s_lshl_b32 s3, s3, 17
        s_lshl_b32 s{sT0}, s{sH}, 12
        s_add_u32 s3, s3, s{sT0}
        v_and_b32 v238, 15, v{vLANE}
        v_lshlrev_b32 v238, 17, v238
        buffer_load_dword v239, v238, s[24:27], s3 offen sc1
        s_lshl_b32 s3, s{self.sRT}, 19
        v_lshlrev_b32 v238, 13, v{vLANE}
        buffer_load_dword v240, v238, s[24:27], s3 offen sc1
        s_mul_i32 s3, s{self.sRT}, {64*1280}
        v_mul_u32_u24 v238, 1280, v{vLANE}
        buffer_load_dword v241, v238, s[96:99], s3 offen sc1
        v_mov_b32 v238, 4
        global_load_dword v242, v238, s[28:29] sc1
        s_movk_i32 s{sT1}, 128
        """)
    def interval(self, k):
        a = self.a
        slot = k % 4
        H = self.head
        w = self.main_wait(k) if k <= 30 else 0
        if 2 <= k <= 5:
            w = min(self.main_wait(k + 4 * i) for i in range(7))
        w = min(w, self.wcap)
        pcs = [self.kv_piece(t, n, k=k) for n, t in self.main_pieces(k)]
        if 2 <= k <= 5: assert len(pcs) == 8
        if "nodma" in self.abl: pcs = []
        pos = self.dma_pos or [1, 5, 9, 13, 17, 21, 25, 29]
        lead = []
        if k >= 1: lead = [(c, t, 0) for c, t in self.check_branch(0)]
        for d in sorted(set(self.dist)):
            if self.ks == 0 or self.kvstride == 0:
                if k == 0: a(f"s_add_u32 s{sD[d-1]}, s{sKVO}, {d*self.kvstride}")
                else: a(f"s_add_u32 s{sD[d-1]}, s{sD[d-1]}, {self.kvstride}")
            else:
                if k == 0: a(f"s_mov_b32 s{100+(d&1)}, {d}")
                else: a(f"s_add_u32 s{100+(d&1)}, s{100+(d&1)}, 1")
                a(f"""s_and_b32 s3, s{100+(d&1)}, {(1<<self.ks)-1}
                s_lshl_b32 s3, s3, 12
                s_lshr_b32 s{sD[d-1]}, s{100+(d&1)}, {self.ks}
                s_lshl_b32 s{sD[d-1]}, s{sD[d-1]}, {14+self.ks}
                s_add_u32 s{sD[d-1]}, s{sD[d-1]}, s3
                s_add_u32 s{sD[d-1]}, s{sD[d-1]}, s{sKVO}""")
        if "nobar" in self.abl and 0 < k < 31: a(f"s_waitcnt vmcnt({w}) lgkmcnt(0)")
        else: a(f"s_waitcnt vmcnt({w}) lgkmcnt(0)\ns_barrier")
        self.dsq = []
        if k == self.tlbk: self.tlb_warm()
        smA = self.sm_stream(0); smB = self.sm_stream(1)
        if k == 0:
            for f in range(8): self.kread(slot, f)
            for j in range(8): self.vread(slot, j)
            groups = self.qk_groups(0) + self.qk_groups(1)
            for i, pc in enumerate(pcs): groups[i]["dma"] = pc
            vq = self.first_stream(0) + [(c, t, 0) for c, t in smA] + self.first_stream(1) + [(c, t, 0) for c, t in smB[:H]]
            self.run(groups, vq, 3.0)
        else:
            self.pv_after_k = True
            groups = self.pv_groups(0, k == 1, lambda j: self.kread(slot, j)) + self.qk_groups(0)
            self.pv_after_k = False
            groups += self.pv_groups(1, k == 1, lambda j: self.vread(slot, j)) + self.qk_groups(1)
            groups[16]["check"] = 1
            for i, pc in enumerate(pcs): groups[pos[i]]["dma"] = pc
            if self.warm_on(k): groups[self.warm]["dma"] = self.warm_piece()
            vq = lead + [(c, t, 0) for c, t in smB[H:]] + self.gated(smA, 24) + self.gated(smB[:H], 72)
            nB = len(lead) + len(smB) - H
            self.run(groups, vq, self.target)
        for c, t, key in vq:
            if not self.gate_ok(key): a("s_nop 7")
            a(t)

    def main_loop(self):
        a = self.a
        if self.warm:
            a(f"""
            s_lshr_b32 s3, s2, 3
            s_mul_i32 s{sTW}, s3, {128*1280}
            s_mul_i32 s3, s{sW}, {8*1280}
            s_add_u32 s{sTW}, s{sTW}, s3
            s_bfe_u32 s3, s2, 0x10002
            s_mul_i32 s3, s3, 640
            s_add_u32 s{sTW}, s{sTW}, s3
            s_mov_b32 s39, 0
            s_movk_i32 s{sT1}, 128
            v_lshrrev_b32 v{vTW}, 3, v{vLANE}
            v_mul_u32_u24 v{vTW}, 1280, v{vTW}
            v_and_b32 v{vT}, 7, v{vLANE}
            v_lshl_add_u32 v{vTW}, v{vT}, 4, v{vTW}
            """)
        if self.summode == 2: a("v_mov_b32 v250, 0x3f803f80")
        self.interval(0)
        self.interval(1)
        a(f"s_mov_b32 s{sLOOP}, 0")
        a.label("L1_loop")
        for k in range(2, 6): self.interval(k)
        if self.lstamps:
            a(f"s_memrealtime s[100:101]\ns_mov_b32 m0, s{sLOOP}\ns_waitcnt lgkmcnt(0)\nv_writelane_b32 v254, s100, m0")
        a(f"s_add_u32 s{sLOOP}, s{sLOOP}, 1\ns_cmp_lt_u32 s{sLOOP}, 7\ns_cbranch_scc1 L1_loop")
        self.interval(30)
        self.interval(31)
        if self.lstamps:
            a("s_waitcnt lgkmcnt(0)")
            for i in range(7): a(f"v_readlane_b32 s{62+2*i}, v254, {i}\ns_mov_b32 s{63+2*i}, s61")
        self.endgame()

    def flush(self, vq):
        for c, t, key in vq:
            if not self.gate_ok(key): self.a("s_nop 7")
            self.a(t)
        del vq[:]

    def endgame(self):
        a = self.a
        js = [4, 5, 6, 7, 0, 1, 2, 3]
        ML = LDS1 - 4096
        vA, vB, vC = vX, vW, vX2
        mo, lo, g0, g1 = 224, 230, 236, 244
        t = [vST + 0, vST + 1, vST + 2, vST + 3, vST + 4, vST + 5]
        t = [202, 203, 204, 205, 206, 207]
        lead = [(c, tx, 0) for c, tx in self.check_branch(0)]
        setup = f"""v_lshlrev_b32 v{vA}, 4, v{vLANE}
        s_mul_i32 s{sT0}, s{sQH}, {VB0}
        s_mul_i32 s3, s{sKH}, 24576
        s_add_u32 s3, s3, s{sT0}
        v_add_u32 v{vB}, s3, v{vA}
        s_lshl_b32 s3, s{sW}, 10
        s_add_u32 s3, s3, {ML}
        v_and_b32 v{vC}, 15, v{vLANE}
        v_lshlrev_b32 v{vC}, 2, v{vC}
        v_add_u32 v{vC}, s3, v{vC}
        v_xor_b32 v{vW2}, 0x400, v{vC}
        s_xor_b32 s{sT1}, s{sKH}, 1
        s_mul_i32 s3, s{sT1}, 24576
        s_add_u32 s{sKVL}, s3, s{sT0}
        v_add_u32 v{vXD}, s{sKVL}, v{vA}
        s_mul_i32 s3, s{sB}, 12
        s_mul_i32 s{sT0}, s{sQH}, 6
        s_add_u32 s3, s3, s{sT0}
        s_lshl_b32 s3, s3, 7
        s_lshl_b32 s{sT0}, s{sH}, 2
        s_add_u32 s3, s3, s{sT0}
        s_lshl_b32 s{sT0}, s{sKH}, 1
        s_add_u32 s3, s3, s{sT0}
        s_lshl_b32 s3, s3, 10
        v_add_u32 v{vA}, s3, v{vA}
        s_mov_b32 s24, s12
        s_mov_b32 s25, s13
        s_mov_b32 s26, {96*128*1024}
        s_mov_b32 s27, 0x20000""".split("\n")
        if self.om32:
            setup += f"""s_mul_i32 s3, s{sB}, 6
            s_mul_i32 s{sT0}, s{sQH}, 3
            s_add_u32 s3, s3, s{sT0}
            s_lshl_b32 s3, s3, 8
            s_lshl_b32 s{sT0}, s{sH}, 3
            s_add_u32 s3, s3, s{sT0}
            s_lshl_b32 s{sT0}, s{sKH}, 2
            s_add_u32 s3, s3, s{sT0}
            s_lshl_b32 s3, s3, 10
            v_and_b32 v{vA}, 15, v{vLANE}
            v_lshlrev_b32 v{vA}, 4, v{vA}
            v_bfe_u32 v{vKW}, v{vLANE}, 4, 1
            v_lshl_or_b32 v{vA}, v{vKW}, 9, v{vA}
            v_lshrrev_b32 v{vKW}, 5, v{vLANE}
            v_lshl_or_b32 v{vA}, v{vKW}, 10, v{vA}
            v_add_u32 v{vA}, s3, v{vA}""".split("\n")
        vq = lead + [(c, tx, 0) for c, tx in self.sm_stream(1)[self.head:]] + [(1, l.strip(), 0) for l in setup + self.tail_setup()]
        self.run(self.pv_groups(0, js=js), vq, 4.5)
        self.flush(vq)
        for c, tx in self.check_branch(1): a(tx)
        def W(qb, jj): return (1, f"ds_write_b128 v{vB}, {ar((jj*6+qb)*4,4)} offset:{1024*(jj*6+qb)}", ("pv", jj + 4, qb))
        vq = []
        for sw in ("v_permlane16_swap_b32", "v_permlane32_swap_b32"):
            vq += [(1, f"v_mov_b32 v{t[qb]}, v{vL+qb}", 0) for qb in range(6)]
            vq += [(1, f"{sw} v{t[qb]}, v{vL+qb}", 0) for qb in range(6)]
            vq += [(1, f"v_add_f32 v{vL+qb}, v{vL+qb}, v{t[qb]}", 0) for qb in range(6)]
        for qb in range(6):
            vq += [(1, f"ds_write_b32 v{vC}, v{NM+4*qb} offset:{qb*64}", 0), (1, f"ds_write_b32 v{vC}, v{vL+qb} offset:{384+qb*64}", 0)]
        vq += [(1, "s_waitcnt lgkmcnt(0)", 0), (1, "s_barrier", 0)]
        for qb in range(6):
            vq += [(1, f"ds_read_b32 v{mo+qb}, v{vW2} offset:{qb*64}", 0), (1, f"ds_read_b32 v{lo+qb}, v{vW2} offset:{384+qb*64}", 0)]
        vq += [W(qb, jj) for jj in range(4) for qb in range(3)]
        vq += [(1, "s_waitcnt lgkmcnt(12)", 0)]
        for fn in (lambda qb: f"v_min_f32 v{t[qb]}, v{NM+4*qb}, v{mo+qb}",
                   lambda qb: f"v_sub_f32 v{g0+qb}, v{t[qb]}, v{NM+4*qb}",
                   lambda qb: f"v_sub_f32 v{g1+qb}, v{t[qb]}, v{mo+qb}",
                   lambda qb: f"v_exp_f32 v{g0+qb}, v{g0+qb}",
                   lambda qb: f"v_exp_f32 v{g1+qb}, v{g1+qb}",
                   lambda qb: f"v_mul_f32 v{t[qb]}, v{vL+qb}, v{g0+qb}",
                   lambda qb: f"v_fma_f32 v{t[qb]}, v{lo+qb}, v{g1+qb}, v{t[qb]}",
                   lambda qb: f"v_rcp_f32 v{t[qb]}, v{t[qb]}",
                   lambda qb: f"v_mul_f32 v{g0+qb}, v{g0+qb}, v{t[qb]}",
                   lambda qb: f"v_mul_f32 v{g1+qb}, v{g1+qb}, v{t[qb]}"):
            vq += [(1, fn(qb), 0) for qb in range(6)]
        vq += [W(qb, jj) for jj in range(4) for qb in range(3, 6)]
        self.dsq = []
        a("s_waitcnt lgkmcnt(0)")
        self.gap_max_save, self.gap_max = self.gap_max, 8
        self.run(self.pv_groups(1, js=js), vq, 6.0, keep=True)
        self.gap_max = self.gap_max_save
        self.flush(vq)
        self.stamp(7 if self.qstamps else 3) if not self.lstamps else None
        def pair(g, qb):
            r = g + qb
            return (vr(r & ~1, 2), 1 if r & 1 else 0)
        order = [(jj, qb) for qb in range(3) for jj in range(4)] + [(jj, qb) for qb in range(3, 6) for jj in range(4)]
        for jj, qb in order:
            if not self.gate_ok(("pv", jj, qb)): a("s_nop 7")
            pr, sel = pair(g0, qb)
            for e in range(2):
                r = OW + (jj * 6 + qb) * 4 + 2 * e
                a(f"v_pk_mul_f32 {vr(r,2)}, {vr(r,2)}, {pr} op_sel:[0,{sel}] op_sel_hi:[1,{sel}]")
        a("s_waitcnt lgkmcnt(0)\ns_barrier")
        RB = 96
        rd = [(jj, qb) for i in range(2) for qb in range(6) for jj in (2 * i, 2 * i + 1)]
        for jj, qb in rd:
            a(f"ds_read_b128 {vr(RB+(jj*6+qb)*4,4)}, v{vXD} offset:{1024*(jj*6+qb)}")
        self.tail_early()
        st = "sc1"
        stores = []
        n = 0
        for i in range(2):
            for qb in range(6):
                n += 2
                a(f"s_waitcnt lgkmcnt({min(15, 24 - n)})")
                pr, sel = pair(g1, qb)
                for jj in (2 * i, 2 * i + 1):
                    for e in range(2):
                        r = OW + (jj * 6 + qb) * 4 + 2 * e
                        rb = RB + (jj * 6 + qb) * 4 + 2 * e
                        a(f"v_pk_fma_f32 {vr(r,2)}, {vr(rb,2)}, {pr}, {vr(r,2)} op_sel:[0,{sel},0] op_sel_hi:[1,{sel},1]")
                pk = RB + (2 * i * 6 + qb) * 4
                o0, o1 = OW + (2 * i * 6 + qb) * 4, OW + ((2 * i + 1) * 6 + qb) * 4
                a(f"v_cvt_pk_bf16_f32 v{pk}, v{o0}, v{o0+1}")
                a(f"v_cvt_pk_bf16_f32 v{pk+1}, v{o0+2}, v{o0+3}")
                a(f"v_cvt_pk_bf16_f32 v{pk+2}, v{o1}, v{o1+1}")
                a(f"v_cvt_pk_bf16_f32 v{pk+3}, v{o1+2}, v{o1+3}")
                stl = f"s_mov_b32 s3, {qb*0x20000}\nbuffer_store_dwordx4 {vr(pk,4)}, v{vA}, s[24:27], s3 offen offset:{1024*i} {st}"
                if self.om32:
                    stl = f"""s_mov_b32 s3, {(qb>>1)*0x40000}
                    s_nop 0
                    v_permlane32_swap_b32 v{pk}, v{pk+2}
                    v_permlane32_swap_b32 v{pk+1}, v{pk+3}
                    buffer_store_dwordx4 {vr(pk,4)}, v{vA}, s[24:27], s3 offen offset:{2048*i + 256*(qb&1)} {st}"""
                if self.late_st: stores.append(stl)
                else: a(stl)
        if self.late_st:
            a(f"s_cmp_ge_u32 s{self.sJ}, 30\ns_cbranch_scc1 L1_noearly2")
            for i in range(3, 9): self.wo_issue(i)
            a("L1_noearly2:")
            for stl in stores: a(stl)
        self.vq += [("S", 0)] * 12

    def rot_code(self):
        if self.qrot == 0: return f"s_mov_b32 s{sCH}, 0"
        if self.qrot == 1:
            return f"""s_and_b32 s{sCH}, s{sH}, 7
            s_and_b32 s3, s{sB}, 3
            s_lshl_b32 s3, s3, 1
            s_add_u32 s{sCH}, s{sCH}, s3
            s_cmp_ge_u32 s{sCH}, 10
            s_cselect_b32 s3, 10, 0
            s_sub_u32 s{sCH}, s{sCH}, s3"""
        if self.qrot in (5, 6):
            return f"""s_and_b32 s{sCH}, s{sH}, 7
            s_mul_i32 s{sCH}, s{sCH}, 5
            s_add_u32 s{sCH}, s{sCH}, 2
            s_lshr_b32 s{sCH}, s{sCH}, 2
            s_and_b32 s3, s{sB}, 3
            s_mul_i32 s3, s3, 5
            s_add_u32 s3, s3, 1
            s_lshr_b32 s3, s3, 1
            s_add_u32 s{sCH}, s{sCH}, s3
            s_cmp_ge_u32 s{sCH}, 10
            s_cselect_b32 s3, 10, 0
            s_sub_u32 s{sCH}, s{sCH}, s3""" + (f"""
            s_and_b32 s3, s2, 7
            s_add_u32 s{sCH}, s{sCH}, s3
            s_cmp_ge_u32 s{sCH}, 10
            s_cselect_b32 s3, 10, 0
            s_sub_u32 s{sCH}, s{sCH}, s3""" if self.qrot == 6 else "")
        if self.qrot == 2:
            return f"""s_xor_b32 s{sCH}, s{sH}, s{sB}
            s_and_b32 s{sCH}, s{sCH}, 1
            s_mul_i32 s{sCH}, s{sCH}, 5"""
        if self.qrot == 3:
            return f"""s_add_u32 s{sCH}, s{sH}, s{sB}
            s_and_b32 s{sCH}, s{sCH}, 3
            s_mul_i32 s{sCH}, s{sCH}, 3"""
        if self.qrot == 4:
            return f"""s_add_u32 s{sCH}, s{sH}, s{sB}
            s_and_b32 s{sCH}, s{sCH}, 3"""
    def prologue(self):
        a = self.a
        a("s_cmp_ge_u32 s2, 256\ns_cbranch_scc1 L1_end")
        self.stamp(0)
        a(f"""
        s_load_dwordx8 s[4:11], s[0:1], 0
        s_load_dwordx2 s[12:13], s[0:1], 56
        s_load_dwordx4 s[56:59], s[0:1], 32
        s_load_dwordx2 s[28:29], s[0:1], 48
        v_lshrrev_b32 v1, 6, v0
        v_and_b32 v{vLANE}, 63, v0
        s_and_b32 s{sT0}, s2, 7
        v_readfirstlane_b32 s{sW}, v1
        s_lshr_b32 s{sT1}, s2, 3
        s_and_b32 s{sB}, s{sT0}, 1
        s_lshl_b32 s{sB}, s{sB}, 2
        s_and_b32 s3, s{sT1}, 3
        s_or_b32 s{sB}, s{sB}, s3
        s_lshr_b32 s{sH}, s{sT0}, 1
        s_lshl_b32 s{sH}, s{sH}, 3
        s_lshr_b32 s3, s{sT1}, 2
        s_or_b32 s{sH}, s{sH}, s3
        {self.rot_code()}
        v_lshrrev_b32 v1, 4, v{vLANE}             ; g
        v_and_b32 v2, 15, v{vLANE}                ; q
        v_lshlrev_b32 v3, {12+self.ks}, v1
        v_lshl_or_b32 v{vDMA}, v2, 4, v3
        v_lshlrev_b32 v3, 17, v1
        v_lshl_or_b32 v{vWD}, v2, 4, v3
        v_lshrrev_b32 v3, 3, v{vLANE}
        v_and_b32 v4, 7, v{vLANE}
        v_mul_u32_u24 v3, {4*1280}, v3
        v_lshl_add_u32 v{vXD}, v4, 4, v3
        s_lshr_b32 s{sQH}, s{sW}, 1
        s_and_b32 s{sKH}, s{sW}, 1
        s_mul_i32 s{sXB}, s{sW}, {XP}
        s_mul_i32 s{sXS}, s{sW}, 1280
        s_mul_i32 s{sWB}, s{sW}, {4*PIT}
        s_lshl_b32 s{sWS}, s{sKH}, 3
        s_lshl_b32 s3, s{sQH}, 2
        s_or_b32 s{sWS}, s{sWS}, s3
        s_lshl_b32 s{sWS}, s{sWS}, 13
        s_lshl_b32 s{sKVO}, s{sW}, 10
        s_mov_b32 s{sKVL}, s{sWB}
        s_lshl_b32 s{sT0}, s{sB}, 5
        s_add_u32 s{sT0}, s{sT0}, s{sH}
        s_lshl_b32 s{sT1}, s{sT0}, 19
        s_lshr_b32 s{sT0}, s{sT0}, 13
        s_waitcnt lgkmcnt(0)
        {"s_memrealtime s[66:67]" if self.pstamps else ""}
        s_add_u32 s{SRD_K}, s6, s{sT1}
        s_addc_u32 s{SRD_K+1}, s7, s{sT0}
        s_mov_b32 s{SRD_K+2}, 524288
        s_mov_b32 s{SRD_K+3}, 0x20000
        s_add_u32 s{SRD_V}, s8, s{sT1}
        s_addc_u32 s{SRD_V+1}, s9, s{sT0}
        s_mov_b32 s{SRD_V+2}, 524288
        s_mov_b32 s{SRD_V+3}, 0x20000
        s_mul_i32 s{sT0}, s{sB}, 245760
        s_add_u32 s{SRD_X}, s4, s{sT0}
        s_addc_u32 s{SRD_X+1}, s5, 0
        s_mov_b32 s{SRD_X+2}, 245760
        s_mov_b32 s{SRD_X+3}, 0x20000
        s_lshl_b32 s{sT0}, s{sH}, 8
        s_add_u32 s{SRD_W}, s10, s{sT0}
        s_addc_u32 s{SRD_W+1}, s11, 0
        s_sub_u32 s{SRD_W+2}, {640*8192}, s{sT0}
        s_mov_b32 s{SRD_W+3}, 0x20000
        """)
        a(f"""
        s_mov_b32 s92, s56
        s_mov_b32 s93, s57
        s_mov_b32 s94, {4096*1280}
        s_mov_b32 s95, 0x20000
        s_mul_i32 s{sTW}, s2, 20480
        s_mul_i32 s{sT1}, s{sW}, 5120
        s_add_u32 s{sTW}, s{sTW}, s{sT1}
        v_lshlrev_b32 v{vTW}, 4, v{vLANE}
        """)
        def touch():
            for pc in self.touch_pieces(): self.emit_piece(pc)
        if self.touch == 1: touch()
        if self.qm32:
            assert self.x4
            a(f"""
            v_lshrrev_b32 v3, 3, v{vLANE}
            v_and_b32 v4, 7, v{vLANE}
            v_mul_u32_u24 v3, {8*1280}, v3
            v_lshl_add_u32 v{vXD}, v4, 4, v3
            s_mul_i32 s{sXB}, s{sW}, {2*XP32}
            s_mul_i32 s{sXS}, s{sW}, {2*1280}
            s_mul_i32 s{sWB}, s{sW}, {4*WP32}
            s_lshl_b32 s{sWS}, s{sW}, 15
            """)
        a(f"s_mov_b32 s39, s{sCH}")
        for c in range(self.nfirst):
            for pc in self.w_pieces(c) + self.x_pieces(c): self.emit_piece(pc)
        if self.x4:
            for pc in self.x_pieces(3): self.emit_piece(pc)
        if self.pstamps: a("s_memrealtime s[68:69]")
        if self.touch == 2 and self.nfirst == 3: touch()
        if self.pstamps: a("s_memrealtime s[70:71]\ns_waitcnt vmcnt(34)\ns_memrealtime s[72:73]")
        a(f"""
        v_bfe_u32 v3, v{vLANE}, 2, 2              ; r
        v_and_b32 v4, 3, v{vLANE}                 ; c
        v_mul_u32_u24 v5, {PIT}, v2
        v_lshl_add_u32 v5, v1, 4, v5
        s_lshl_b32 s3, s{sKH}, 9
        v_add_u32 v{vK}, s3, v5
        v_lshl_add_u32 v5, v1, 2, v3
        v_mul_u32_u24 v5, {PIT}, v5
        v_lshl_add_u32 v5, v4, 3, v5
        s_mul_i32 s3, s{sKH}, {512+128}
        s_add_u32 s3, s3, {VB0}
        v_add_u32 v{vVA}, s3, v5
        s_mul_i32 s3, s{sKH}, {512-128}
        s_add_u32 s3, s3, {VB0}
        v_add_u32 v{vVB}, s3, v5
        v_mul_u32_u24 v5, {XP}, v4
        v_lshl_add_u32 v5, v3, 7, v5
        v_lshl_add_u32 v5, v1, 4, v5
        s_mul_i32 s3, s{sQH}, 3072
        v_add_u32 v{vX}, s3, v5
        v_and_b32 v5, 1, v1
        v_lshl_add_u32 v5, v5, 2, v3
        v_mul_u32_u24 v5, {PIT}, v5
        v_lshrrev_b32 v6, 1, v1
        v_lshl_add_u32 v5, v6, 8, v5
        v_lshl_add_u32 v5, v4, 3, v5
        s_lshl_b32 s3, s{sKH}, 7
        v_add_u32 v{vW}, s3, v5
        v_lshlrev_b32 v{vKW}, 4, v{vLANE}
        v_add_u32 v{vKW}, s{sKVL}, v{vKW}
        v_add_u32 v{vKW+1}, {VB0}, v{vKW}
        s_mov_b32 s{sTHR[0]}, {f32(THR)}
        """)
        if self.qm32:
            a(f"""
            v_and_b32 v5, 7, v{vLANE}
            v_mul_u32_u24 v5, {XP32}, v5
            v_bfe_u32 v6, v{vLANE}, 3, 2
            v_lshl_add_u32 v5, v6, 7, v5
            v_lshrrev_b32 v6, 5, v{vLANE}
            v_lshl_add_u32 v5, v6, 4, v5
            s_mul_i32 s3, s{sQH}, {12*128}
            v_add_u32 v{vX}, s3, v5
            v_lshl_add_u32 v5, v6, 3, v3
            v_mul_u32_u24 v5, {WP32}, v5
            v_bfe_u32 v6, v{vLANE}, 4, 1
            v_lshl_add_u32 v5, v6, 5, v5
            v_lshl_add_u32 v5, v4, 3, v5
            s_lshl_b32 s3, s{sKH}, 7
            v_add_u32 v{vW}, s3, v5
            """)
        for i in range(24): a(f"v_mov_b32 v{NM+i}, 0")
        for i in range(6): a(f"v_mov_b32 v{vL+i}, 0")

    def q_pack_setup(self):
        rlo, rhi, wlo, whi = vT, vT + 1, vT + 2, vT + 3
        self.a(f"""
        s_mul_i32 s{sT0}, s{sQH}, {96*QP}
        s_add_u32 s{sT0}, s{sT0}, {QA1}
        s_cmp_eq_u32 s{sQH}, 0
        s_mov_b32 s{sT1}, {3*TS}
        s_cselect_b32 s{sT1}, {QA1 + 48*QP}, s{sT1}
        v_and_b32 v{vT+4}, 15, v{vLANE}
        v_mul_u32_u24 v{vT+4}, {QP}, v{vT+4}
        v_lshrrev_b32 v{vT+5}, 4, v{vLANE}
        v_lshl_add_u32 v{vT+6}, v{vT+5}, 4, v{vT+4}
        v_add_u32 v{rlo}, s{sT0}, v{vT+6}
        v_add_u32 v{rhi}, s{sT1}, v{vT+6}
        v_lshl_add_u32 v{vT+6}, v{vT+5}, 3, v{vT+4}
        s_lshl_b32 s{sXO}, s{sKH}, 7
        v_add_u32 v{vT+6}, s{sXO}, v{vT+6}
        v_add_u32 v{wlo}, s{sT0}, v{vT+6}
        v_add_u32 v{whi}, s{sT1}, v{vT+6}
        v_mov_b32 v{vT+4}, {f32(CSC)}
        """)
    def q_pack(self, db, qb):
        wlo, whi = vT + 2, vT + 3
        acc = QACC + (db * 6 + qb) * 4
        cs = vr(vT + 4, 2)
        assert (vT + 4) % 2 == 0
        return [f"v_pk_mul_f32 {vr(acc,2)}, {vr(acc,2)}, {cs} op_sel_hi:[1,0]",
                f"v_pk_mul_f32 {vr(acc+2,2)}, {vr(acc+2,2)}, {cs} op_sel_hi:[1,0]",
                f"v_cvt_pk_bf16_f32 v{acc}, v{acc}, v{acc+1}",
                f"v_cvt_pk_bf16_f32 v{acc+1}, v{acc+2}, v{acc+3}",
                f"ds_write_b64 v{wlo if qb < 3 else whi}, {vr(acc,2)} offset:{(qb%3)*16*QP + db*32}"]
    def qphase(self):
        a = self.a
        order = []
        for c in range(self.nfirst): order += [f"c{c}"] * 10
        if self.x4: order += ["c3"] * 6
        if self.touch == 2 and self.nfirst == 3: order += ["t"] * 5
        kvl = [(t, n) for t in range(3) for n in range(8) if t < self.pre[n]]
        def next_kv():
            if not kvl: return None
            t, n = kvl.pop(0)
            order.append(f"kv{t}")
            if self.x4: return self.kv_piece(t, n, reg=KVR + 32 * t)
            return self.kv_piece(0, n) if t == 0 else self.kv_piece(t, n, reg=KVR + 32 * (t - 1))
        for _ in range(self.early.get(-1, 0)): self.emit_piece(next_kv())
        def xf(st, s, qb): return QSET[st] + (s * 6 + qb) * 4
        def wf(st, s, db): return QSET[st] + 48 + (s * 4 + db) * 4
        def reads(c):
            st = c & 1
            a(f"v_add_u32 v{vX2}, {self.xslot(c)}, v{vX}")
            a(f"v_add_u32 v{vW2}, {self.wslot(c)}, v{vW}")
            out = []
            for s in range(2):
                for qb in range(6):
                    out.append(f"ds_read_b128 {ar(xf(st,s,qb),4)}, v{vX2} offset:{qb*512 + s*64}")
                for db in range(4):
                    for u in range(2):
                        out.append(f"ds_read_b64_tr_b16 {ar(wf(st,s,db)+2*u,2)}, v{vW2} offset:{u*8*PIT + s*512 + db*32}")
            return out
        def after(tag):
            idx = [i for i, t in enumerate(order) if t == tag]
            if not idx: return 63
            return len(order) - 1 - idx[-1]
        a(f"s_waitcnt vmcnt({after('c0')})\ns_barrier")
        self.stamp(1)
        for r in reads(0): a(r)
        for c in range(self.nfirst, 3):
            for pc in self.w_pieces(c) + self.x_pieces(c): self.emit_piece(pc)
            order += [f"c{c}"] * 10
        if self.touch == 2 and self.nfirst < 3:
            for pc in self.touch_pieces(): self.emit_piece(pc)
            order += ["t"] * 5
        for c in range(10):
            if c + 1 < 10: a(f"s_waitcnt vmcnt({min(63, after(f'c{c+1}'))}) lgkmcnt(0)")
            else: a("s_waitcnt lgkmcnt(0)")
            a("s_barrier")
            rd = reads(c + 1) if c + 1 < 10 else []
            if "qnolds" in self.abl: rd = []
            todo = []
            xa = 4 if self.x4 else 3
            if c + 3 < 10: todo += [(f"c{c+3}", pc) for pc in self.w_pieces(c + 3)]
            if c + xa < 10: todo += [(f"c{c+xa}", pc) for pc in self.x_pieces(c + xa)]
            todo += [("kv", None)] * self.early.get(c, 0)
            if self.touch == 10 + c: todo += [("t", pc) for pc in self.touch_pieces()]
            st = c & 1
            NG = self.qng
            g = 0
            seq = [(s, db, hh) for s in range(2) for db in range(4) for hh in range(2)]
            packq = []
            if c == 9:
                seq = [(s, db, hh) for db in range(4) for hh in range(2) for s in range(2)]
                self.q_pack_setup()
            for (s, db, hh) in seq:
                if True:
                    if True:
                        mine = todo[(g * len(todo) + NG - 1) // NG:((g + 1) * len(todo) + NG - 1) // NG]
                        pcs = []
                        for kind, pc in mine:
                            if kind[0] == "c": order.append(kind); pcs.append(pc)
                            elif kind == "t": order.append("t"); pcs.append(pc)
                            else:
                                pc = next_kv()
                                if pc: pcs.append(pc)
                        if pcs and pcs[0][0]: a(pcs[0][0])
                        for q3 in range(3):
                            qb = 3 * hh + q3
                            acc = QACC + (db * 6 + qb) * 4
                            cc = "0" if (c == 0 and s == 0) else vr(acc, 4)
                            a(f"{MF} {vr(acc,4)}, {ar(wf(st,s,db),4)}, {ar(xf(st,s,qb),4)}, {cc}")
                            if c == 9:
                                for _ in range(3):
                                    if packq and packq[0][0] <= g - 3: a(packq.pop(0)[1])
                        if c == 9 and s == 1:
                            for q3 in range(3):
                                packq += [(g, l) for l in self.q_pack(db, 3 * hh + q3)]
                        if pcs: a(pcs[0][1])
                        for pc in pcs[1:]: self.emit_piece(pc)
                        ng = self.qrg
                        for r in rd[(g * 28) // ng:((g + 1) * 28) // ng]: a(r)
                        g += 1
                        for t, cw in (((0, self.kvw[0]), (1, self.kvw[1])) if self.x4 else ((1, self.kvw[0]), (2, self.kvw[1]))):
                            if c == cw and g == 12 and f"kv{t}" in order:
                                assert not any(tt == t for tt, _ in kvl)
                                a(f"s_waitcnt vmcnt({after(f'kv{t}')})")
                                for n in [n for n in range(8) if t < self.pre[n]]:
                                    a(f"ds_write_b128 v{vKW + (n & 1)}, {ar(KVR+32*(t-(0 if self.x4 else 1))+4*n,4)} offset:{t*TS + (n>>1)*PIT}")
            if self.qstamps and c in (2, 5, 8, 9): self.stamp({2: 3, 5: 4, 8: 5, 9: 6}[c])
        assert not kvl
        a('s_waitcnt vmcnt(0)') if False else None
        rlo, rhi = vT, vT + 1
        a("s_nop 4")
        for _, l in packq: a(l)
        a("s_waitcnt lgkmcnt(0)\ns_barrier")
        for s in range(4):
            for qb in range(6):
                a(f"ds_read_b128 {Qf(s,qb)}, v{rlo if qb < 3 else rhi} offset:{(qb%3)*16*QP + s*64}")
        self.stamp(2)

    def q_pack_setup32(self):
        rlo, rhi = vT, vT + 1
        w3 = [vT + 2, vT + 3, vT + 6]
        self.a(f"""
        s_mul_i32 s{sT0}, s{sQH}, {96*QP}
        s_add_u32 s{sT0}, s{sT0}, {QA1}
        s_cmp_eq_u32 s{sQH}, 0
        s_mov_b32 s{sT1}, {3*TS}
        s_cselect_b32 s{sT1}, {QA1 + 48*QP}, s{sT1}
        v_and_b32 v{vT+4}, 15, v{vLANE}
        v_mul_u32_u24 v{vT+4}, {QP}, v{vT+4}
        v_lshrrev_b32 v{vT+5}, 4, v{vLANE}
        v_lshl_add_u32 v{vT+6}, v{vT+5}, 4, v{vT+4}
        v_add_u32 v{rlo}, s{sT0}, v{vT+6}
        v_add_u32 v{rhi}, s{sT1}, v{vT+6}
        v_and_b32 v{vT+4}, 31, v{vLANE}
        v_mul_u32_u24 v{vT+4}, {QP}, v{vT+4}
        v_lshrrev_b32 v{vT+5}, 5, v{vLANE}
        v_lshl_add_u32 v{vT+4}, v{vT+5}, 3, v{vT+4}
        s_lshl_b32 s{sXO}, s{sKH}, 7
        v_add_u32 v{vT+4}, s{sXO}, v{vT+4}
        v_add_u32 v{w3[0]}, s{sT0}, v{vT+4}
        s_add_u32 s{sXO}, s{sT1}, {16*QP}
        v_add_u32 v{w3[2]}, s{sXO}, v{vT+4}
        s_add_u32 s{sT0}, s{sT0}, {32*QP}
        s_sub_u32 s{sT1}, s{sT1}, {16*QP}
        v_add_u32 v{w3[1]}, s{sT0}, v{vT+4}
        v_add_u32 v{vT+5}, s{sT1}, v{vT+4}
        v_and_b32 v{vT+4}, 16, v{vLANE}
        v_cmp_ne_u32 vcc, 0, v{vT+4}
        v_mov_b32 v{vT+4}, {f32(CSC)}
        s_nop 0
        v_cndmask_b32 v{w3[1]}, v{w3[1]}, v{vT+5}, vcc
        """)
    def q_pack32(self, db, qb):
        w3 = [vT + 2, vT + 3, vT + 6]
        cs = vr(vT + 4, 2)
        out = []
        for rq in range(4):
            acc = QACC + (db * 3 + qb) * 16 + 4 * rq
            out += [f"v_pk_mul_f32 {vr(acc,2)}, {vr(acc,2)}, {cs} op_sel_hi:[1,0]",
                    f"v_pk_mul_f32 {vr(acc+2,2)}, {vr(acc+2,2)}, {cs} op_sel_hi:[1,0]",
                    f"v_cvt_pk_bf16_f32 v{acc}, v{acc}, v{acc+1}",
                    f"v_cvt_pk_bf16_f32 v{acc+1}, v{acc+2}, v{acc+3}",
                    f"ds_write_b64 v{w3[qb]}, {vr(acc,2)} offset:{db*64 + rq*16}"]
        return out
    def qphase32(self):
        a = self.a
        order = []
        for c in range(self.nfirst): order += [f"c{c}"] * 10
        if self.x4: order += ["c3"] * 6
        if self.touch == 2 and self.nfirst == 3: order += ["t"] * 5
        kvl = [(t, n) for t in range(3) for n in range(8) if t < self.pre[n]]
        def next_kv():
            if not kvl: return None
            t, n = kvl.pop(0)
            order.append(f"kv{t}")
            if self.x4: return self.kv_piece(t, n, reg=KVR + 32 * t)
            return self.kv_piece(0, n) if t == 0 else self.kv_piece(t, n, reg=KVR + 32 * (t - 1))
        for _ in range(self.early.get(-1, 0)): self.emit_piece(next_kv())
        def xf(st, s, qb): return QSET[st] + (s * 3 + qb) * 4
        def wf(st, s, db): return QSET[st] + 48 + (s * 2 + db) * 4
        def reads(c):
            st = c & 1
            a(f"v_add_u32 v{vX2}, {self.xslot(c)}, v{vX}")
            a(f"v_add_u32 v{vW2}, {self.wslot(c)}, v{vW}")
            out = []
            for s in range(4):
                for qb in range(3):
                    out.append(f"ds_read_b128 {ar(xf(st,s,qb),4)}, v{vX2} offset:{qb*512 + s*32}")
                for db in range(2):
                    for u in range(2):
                        out.append(f"ds_read_b64_tr_b16 {ar(wf(st,s,db)+2*u,2)}, v{vW2} offset:{4*u*WP32 + s*256 + db*64}")
            return out
        def after(tag):
            idx = [i for i, t in enumerate(order) if t == tag]
            if not idx: return 63
            return len(order) - 1 - idx[-1]
        a(f"s_waitcnt vmcnt({after('c0')})\ns_barrier")
        self.stamp(1)
        for r in reads(0): a(r)
        for c in range(self.nfirst, 3):
            for pc in self.w_pieces(c) + self.x_pieces(c): self.emit_piece(pc)
            order += [f"c{c}"] * 10
        if self.touch == 2 and self.nfirst < 3:
            for pc in self.touch_pieces(): self.emit_piece(pc)
            order += ["t"] * 5
        for c in range(10):
            if c + 1 < 10: a(f"s_waitcnt vmcnt({min(63, after(f'c{c+1}'))}) lgkmcnt(0)")
            else: a("s_waitcnt lgkmcnt(0)")
            a("s_barrier")
            rd = reads(c + 1) if c + 1 < 10 else []
            if "qnolds" in self.abl: rd = []
            todo = []
            xa = 4 if self.x4 else 3
            if c + 3 < 10: todo += [(f"c{c+3}", pc) for pc in self.w_pieces(c + 3)]
            if c + xa < 10: todo += [(f"c{c+xa}", pc) for pc in self.x_pieces(c + xa)]
            todo += [("kv", None)] * self.early.get(c, 0)
            if self.touch == 10 + c: todo += [("t", pc) for pc in self.touch_pieces()]
            st = c & 1
            NG = self.qng
            g = 0
            seq = [(s, db, qb) for s in range(4) for db in range(2) for qb in range(3)]
            packq = []
            if c == 9:
                seq = [(s, db, qb) for db in range(2) for qb in range(3) for s in range(4)]
            NG = self.qng32
            for (s, db, qb) in seq:
                mine = todo[(g * len(todo) + NG - 1) // NG:((g + 1) * len(todo) + NG - 1) // NG]
                pcs = []
                for kind, pc in mine:
                    if kind[0] == "c" or kind == "t": order.append(kind); pcs.append(pc)
                    else:
                        pc = next_kv()
                        if pc: pcs.append(pc)
                if pcs and pcs[0][0]: a(pcs[0][0])
                acc = QACC + (db * 3 + qb) * 16
                cc = "0" if (c == 0 and s == 0) else vr(acc, 16)
                a(f"{MF32} {vr(acc,16)}, {ar(wf(st,s,db),4)}, {ar(xf(st,s,qb),4)}, {cc}")
                if c == 9:
                    mark = len(a.lines)
                    if g == 4: self.q_pack_setup32()
                    for _ in range(5):
                        if packq and sum(1 for l in a.lines[packq[0][0]:] if l.strip()) >= 12: a(packq.pop(0)[1])
                    if s == 3: packq += [(mark, l) for l in self.q_pack32(db, qb)]
                if pcs: a(pcs[0][1])
                for pc in pcs[1:]: self.emit_piece(pc)
                ng = self.qrg32
                for r in rd[(g * 28) // ng:((g + 1) * 28) // ng]: a(r)
                g += 1
                for t, cw in ((0, self.kvw[0]), (1, self.kvw[1])):
                    if c == cw and g == 18 and f"kv{t}" in order:
                        assert not any(tt == t for tt, _ in kvl)
                        a(f"s_waitcnt vmcnt({after(f'kv{t}')})")
                        for n in [n for n in range(8) if t < self.pre[n]]:
                            a(f"ds_write_b128 v{vKW + (n & 1)}, {ar(KVR+32*t+4*n,4)} offset:{t*TS + (n>>1)*PIT}")
            if self.qstamps and c in (2, 5, 8, 9): self.stamp({2: 3, 5: 4, 8: 5, 9: 6}[c])
        assert not kvl
        a('s_waitcnt vmcnt(0)') if False else None
        rlo, rhi = vT, vT + 1
        a("s_nop 11")
        for _, l in packq: a(l)
        a("s_waitcnt lgkmcnt(0)\ns_barrier")
        for s in range(4):
            for qb in range(6):
                a(f"ds_read_b128 {Qf(s,qb)}, v{rlo if qb < 3 else rhi} offset:{(qb%3)*16*QP + s*64}")
        self.stamp(2)

    def signal(self):
        a = self.a
        lab = a.newlabel("L_nosig")
        a(f"""
        s_cmp_lg_u32 s{sW}, 0
        s_cbranch_scc1 {lab}
        s_lshl_b32 s3, s{sB}, 5
        v_mov_b32 v254, s3
        v_mov_b32 v255, 1
        s_mov_b64 exec, 1
        global_atomic_add v254, v255, s[28:29] sc1
        s_mov_b64 exec, -1
        {lab}:
        """)
    def poll(self, sBATCH):
        a = self.a
        lab = a.newlabel("L_nopoll"); lp = a.newlabel("L_poll")
        a(f"""
        s_cmp_lg_u32 s{sW}, 0
        s_cbranch_scc1 {lab}
        s_lshl_b32 s3, s{sBATCH}, 5
        s_mov_b32 s{sLOOP}, 0
        v_mov_b32 v254, s3
        {lp}:
        global_load_dword v255, v254, s[28:29] sc1
        s_add_u32 s{sLOOP}, s{sLOOP}, 1
        s_waitcnt vmcnt(0)
        v_cmp_ne_u32 vcc, 32, v255
        s_cmp_gt_u32 s{sLOOP}, 0x40000
        s_cbranch_scc1 {lab}
        s_cbranch_vccz {lab}
        s_sleep 1
        s_branch {lp}
        {lab}:
        """)

    T_vO = [224, 225, 226, 227]; T_vA = [228, 229, 230, 231]; T_vE = [232, 233, 234, 235]
    T_vWD, T_vT2 = 250, 251
    sRT, sCT, sKW, sKO, sWOFF, sBATCH, sRX, sJ = 42, 43, 44, 48, 49, 50, 51, 38
    def tail_setup(self):
        sRT, sCT, sKW, sKO, sWOFF, sBATCH, sRX, sJ = self.sRT, self.sCT, self.sKW, self.sKO, self.sWOFF, self.sBATCH, self.sRX, self.sJ
        vWD2, t = self.T_vWD, self.T_vT2
        txt = f"""
        s_and_b32 s{sT0}, s2, 7
        s_lshr_b32 s{sJ}, s2, 3
        s_mul_i32 s{sRT}, s{sJ}, 52
        s_lshr_b32 s{sRT}, s{sRT}, 8
        s_mul_i32 s{sCT}, s{sRT}, 5
        s_sub_u32 s{sCT}, s{sJ}, s{sCT}
        s_add_u32 s{sKW}, s{sRT}, s{sCT}
        s_mul_i32 s{sKW}, s{sKW}, {self.orot}
        s_and_b32 s{sKW}, s{sKW}, 31
        s_mov_b32 s{sKO}, s{sKW}
        s_and_b32 s3, s{sT0}, 1
        s_mul_i32 s3, s3, 12
        s_add_u32 s{sRT}, s{sRT}, s3
        s_bfe_u32 s3, s{sT0}, 0x10001
        s_mul_i32 s3, s3, 6
        s_add_u32 s{sRT}, s{sRT}, s3
        s_lshr_b32 s3, s{sT0}, 2
        s_mul_i32 s3, s3, 5
        s_add_u32 s{sCT}, s{sCT}, s3
        s_mul_i32 s{sBATCH}, s{sRT}, 86
        s_lshr_b32 s{sBATCH}, s{sBATCH}, 8
        s_mov_b32 s96, s58
        s_mov_b32 s97, s59
        s_mov_b32 s98, {1536*1280}
        s_mov_b32 s99, 0x20000
        s_mul_i32 s{sWOFF}, s{sW}, {32*1280}
        s_lshl_b32 s3, s{sCT}, 7
        s_add_u32 s{sWOFF}, s{sWOFF}, s3
        s_mul_i32 s{sRX}, s{sW}, 12288
        s_add_u32 s{sRX}, s{sRX}, {116736 - 12288}
        s_cmp_eq_u32 s{sW}, 0
        s_cselect_b32 s{sRX}, 49152, s{sRX}
        v_lshrrev_b32 v{vWD2}, 3, v{vLANE}
        v_mul_u32_u24 v{vWD2}, 1280, v{vWD2}
        v_bfe_u32 v{t}, v{vLANE}, 4, 2
        v_lshlrev_b32 v{t}, 1, v{t}
        v_xor_b32 v{t}, v{t}, v{vLANE}
        v_and_b32 v{t}, 7, v{t}
        v_lshl_add_u32 v{vWD2}, v{t}, 4, v{vWD2}
        """
        if self.om32:
            txt += f"""v_lshrrev_b32 v{vWD2}, 3, v{vLANE}
            v_mul_u32_u24 v{vWD2}, 1280, v{vWD2}
            v_bfe_u32 v{t}, v{vLANE}, 4, 1
            v_lshlrev_b32 v{t}, 2, v{t}
            v_xor_b32 v{t}, v{t}, v{vLANE}
            v_and_b32 v{t}, 7, v{t}
            v_lshl_add_u32 v{vWD2}, v{t}, 4, v{vWD2}
            """
        return [l.strip() for l in txt.strip().split("\n")]
    def wo_issue(self, i):
        a = self.a
        sl = i % 9
        base = f"s{self.sRX}, {sl*4096}" if sl < 3 else f"s{sKVL}, {(sl-3)*4096}"
        if self.orot:
            a(f"s_mul_i32 s3, s{self.sKW}, {128*1280}\ns_add_u32 s{self.sKW}, s{self.sKW}, 1\ns_and_b32 s{self.sKW}, s{self.sKW}, 31\ns_add_u32 s3, s3, s{self.sWOFF}")
        else:
            a(f"s_add_u32 s3, s{self.sWOFF}, {i*128*1280}")
        a(f"s_add_u32 m0, {base}")
        for pc in range(4):
            if pc: a(f"s_add_u32 m0, m0, 1024\ns_add_u32 s3, s3, {8*1280}")
            else: a("s_nop 0")
            a(f"buffer_load_dwordx4 v{self.T_vWD}, s[92:95], s3 offen lds")
            self.vq.append(("W", i))
    def tail_early(self):
        a = self.a
        self.vq = []
        a(f"s_cmp_ge_u32 s{self.sJ}, 30\ns_cbranch_scc1 L1_noearly")
        for i in range(3): self.wo_issue(i)
        a("L1_noearly:")

    def tail(self):
        a = self.a
        NS, nR, PDA, NST = 9, self.nR, self.PDA, 32
        ACC, AR, BV = 0, 64, 160
        assert AR + 16 * PDA <= BV and nR <= 20
        vO, vA, vE, vT2 = self.T_vO, self.T_vA, self.T_vE, self.T_vT2
        sRT, sCT, sBATCH = self.sRT, self.sCT, self.sBATCH
        vq = self.vq
        def blk(i, off, n):
            b = i % nR
            return ar(16 * b + off, n) if b < 16 else vr(BV + 16 * (b - 16) + off, n)
        a(f"s_cmp_ge_u32 s{self.sJ}, 30\ns_cbranch_scc1 L1_notile")
        def vwait(tag):
            idx = [n for n, t in enumerate(vq) if t == tag]
            if not idx: return
            cnt = len(vq) - 1 - idx[-1]
            assert cnt <= 63
            a(f"s_waitcnt vmcnt({cnt})")
            del vq[:idx[-1] + 1]
        def wo_read(i):
            sl = i % NS
            ad, off = (vE, sl * 4096) if sl < 3 else (vA, (sl - 3) * 4096)
            for nb in range(4):
                for u in range(2):
                    if self.om32:
                        a(f"ds_read_b64_tr_b16 {blk(i,4*nb+2*u,2)}, v{ad[nb&1]} offset:{off + (nb>>1)*2048 + u*1024}")
                    else:
                        a(f"ds_read_b64_tr_b16 {blk(i,4*nb+2*u,2)}, v{ad[nb]} offset:{off + u*2048}")
        if not self.late_st:
            for i in range(3, NS): self.wo_issue(i)
        z = vO[3]
        a(f"""
        v_lshrrev_b32 v{vT2}, 2, v{vLANE}
        v_lshlrev_b32 v{z}, 7, v{vT2}
        v_bfe_u32 v{vT2}, v{vT2}, 1, 2
        v_lshl_or_b32 v{z}, v{vT2}, 5, v{z}
        v_and_b32 v{vT2}, 3, v{vLANE}
        v_lshl_or_b32 v{z}, v{vT2}, 3, v{z}
        v_xor_b32 v{vO[0]}, 32, v{z}
        v_xor_b32 v{vO[1]}, 64, v{z}
        v_xor_b32 v{vO[2]}, 96, v{z}
        v_add_u32 v{vA[0]}, s{sKVL}, v{z}
        v_add_u32 v{vA[1]}, s{sKVL}, v{vO[0]}
        v_add_u32 v{vA[2]}, s{sKVL}, v{vO[1]}
        v_add_u32 v{vA[3]}, s{sKVL}, v{vO[2]}
        v_add_u32 v{vE[0]}, s{self.sRX}, v{z}
        v_add_u32 v{vE[1]}, s{self.sRX}, v{vO[0]}
        v_add_u32 v{vE[2]}, s{self.sRX}, v{vO[1]}
        v_add_u32 v{vE[3]}, s{self.sRX}, v{vO[2]}
        s_lshl_b32 s3, s{sRT}, 19
        s_lshl_b32 s{sT0}, s{sW}, 10
        s_add_u32 s3, s3, s{sT0}
        v_lshlrev_b32 v{vT2}, 4, v{vLANE}
        v_add_u32 v{vO[0]}, s3, v{vT2}
        v_add_u32 v{vO[1]}, 0x20000, v{vO[0]}
        v_add_u32 v{vO[2]}, 0x40000, v{vO[0]}
        v_add_u32 v{vO[3]}, 0x60000, v{vO[0]}
        """)
        if self.om32:
            a(f"""
            v_lshrrev_b32 v{vE[2]}, 5, v{vLANE}
            v_bfe_u32 v{vE[3]}, v{vLANE}, 2, 2
            v_lshl_add_u32 v{vE[2]}, v{vE[2]}, 2, v{vE[3]}
            v_lshlrev_b32 v{vA[2]}, 7, v{vE[2]}
            v_bfe_u32 v{vE[3]}, v{vE[2]}, 1, 1
            v_lshl_or_b32 v{vA[2]}, v{vE[3]}, 6, v{vA[2]}
            v_bfe_u32 v{vE[3]}, v{vLANE}, 4, 1
            v_lshl_or_b32 v{vA[2]}, v{vE[3]}, 5, v{vA[2]}
            v_and_b32 v{vE[3]}, 3, v{vLANE}
            v_lshl_or_b32 v{vA[2]}, v{vE[3]}, 3, v{vA[2]}
            v_xor_b32 v{vA[3]}, 64, v{vA[2]}
            v_add_u32 v{vA[0]}, s{sKVL}, v{vA[2]}
            v_add_u32 v{vA[1]}, s{sKVL}, v{vA[3]}
            v_add_u32 v{vE[0]}, s{self.sRX}, v{vA[2]}
            v_add_u32 v{vE[1]}, s{self.sRX}, v{vA[3]}
            s_lshl_b32 s3, s{sRT}, 19
            s_lshl_b32 s{sT0}, s{sW}, 11
            s_add_u32 s3, s3, s{sT0}
            v_add_u32 v{vO[0]}, s3, v{vT2}
            v_add_u32 v{vO[1]}, 0x40000, v{vO[0]}
            """)
        nextW = NS
        n0 = NS if self.late_st else 3
        for i in range(n0):
            vwait(("W", i))
            wo_read(i)
            if i >= 1:
                a("s_waitcnt lgkmcnt(8)")
                self.wo_issue(nextW); nextW += 1
        if self.st0:
            a("s_waitcnt vmcnt(0)"); del vq[:]
        else: vwait(("S", 0))
        a("s_barrier")
        self.stamp(4)
        self.signal()
        def o_issue(i):
            b = AR + 16 * (i % PDA)
            if self.orot: a(f"s_lshl_b32 s{sT1}, s{self.sKO}, 12\ns_add_u32 s{self.sKO}, s{self.sKO}, 1\ns_and_b32 s{self.sKO}, s{self.sKO}, 31")
            else: a(f"s_mov_b32 s{sT1}, {i*(8192 if self.om32 else 4096)}")
            for qb in range(4):
                if self.om32:
                    a(f"buffer_load_dwordx4 {vr(b+4*qb,4)}, v{vO[qb&1]}, s[24:27], s{sT1} offen offset:{(qb>>1)*1024} sc1")
                else:
                    a(f"buffer_load_dwordx4 {vr(b+4*qb,4)}, v{vO[qb]}, s[24:27], s{sT1} offen sc1")
                vq.append(("O", i))
        for i in range(n0, nR):
            if i == self.xB:
                self.stamp(5)
                self.poll(sBATCH)
                a("s_barrier")
                self.stamp(6)
                for n in range(PDA): o_issue(n)
            vwait(("W", i))
            wo_read(i)
            if nextW < NST:
                a("s_waitcnt lgkmcnt(8)")
                self.wo_issue(nextW); nextW += 1
        a("s_waitcnt lgkmcnt(0)")
        self.wo_issue(nextW); nextW += 1
        assert nextW == nR + NS
        if self.xB >= nR:
            self.stamp(5)
            self.poll(sBATCH)
            a("s_barrier")
            self.stamp(6)
            for n in range(PDA): o_issue(n)
        if self.tstamps: self.stamp(1)
        pend = None
        def capture(fn, *args):
            n0 = len(a.lines)
            fn(*args)
            out = a.lines[n0:]
            del a.lines[n0:]
            return out
        for i in range(NST):
            blkA = AR + 16 * (i % PDA)
            vwait(("O", i))
            if self.tstamps and i == 0: self.stamp(4)
            if self.tstamps and i == 16: self.stamp(5)
            if i == NST - nR + 2: a("s_waitcnt lgkmcnt(0)")
            fill = []
            if i >= 1:
                if i - 1 + PDA < NST: fill += capture(o_issue, i - 1 + PDA)
                if i - 1 + nR < NST:
                    fill += capture(vwait, ("W", i - 1 + nR)) + capture(wo_read, i - 1 + nR)
                if pend is not None:
                    fill += ["    s_waitcnt lgkmcnt(8)"] + capture(self.wo_issue, pend); pend = None
                if i - 1 + nR < NST and nextW < NST:
                    pend = nextW; nextW += 1
            fi = 0
            NM_ = 8 if self.om32 else 16
            for mi in range(NM_):
                if self.om32:
                    kk, nb, qb = mi >> 2, (mi >> 1) & 1, mi & 1
                    acc = ACC + 16 * (nb * 2 + qb)
                    cc = "0" if (i == 0 and kk == 0) else vr(acc, 16)
                    a(f"{MF32} {vr(acc,16)}, {blk(i,4*(2*kk+nb),4)}, {vr(blkA+4*(2*kk+qb),4)}, {cc}")
                else:
                    nb, qb = mi // 4, mi % 4
                    acc = ACC + 4 * mi
                    cc = "0" if i == 0 else vr(acc, 4)
                    a(f"{MF} {vr(acc,4)}, {blk(i,4*nb,4)}, {vr(blkA+4*qb,4)}, {cc}")
                tgt = (len(fill) * (mi + 1) + NM_ - 1) // NM_
                while fi < tgt:
                    a.lines.append(fill[fi]); fi += 1
        assert nextW >= NST and pend is None, (nextW, pend)
        if self.tstamps: self.stamp(2)
        a(f"""
        s_lshl_b32 s3, s{sW}, 14
        v_add_u32 v{vA[0]}, s3, v{vT2}
        s_lshl_b32 s3, s{sW}, 12
        v_add_u32 v{vA[1]}, s3, v{vT2}
        s_nop 7
        s_barrier
        """)
        for j in range(16): a(f"ds_write_b128 v{vA[0]}, {vr(ACC+4*j,4)} offset:{1024*j}")
        a(f"""
        s_lshl_b32 s3, s{sRT}, 6
        s_mul_i32 s3, s3, 1280
        s_lshl_b32 s{sT1}, s{sCT}, 7
        s_add_u32 s3, s3, s{sT1}
        s_lshl_b32 s{sT0}, s{sW}, 5
        s_add_u32 s3, s3, s{sT0}
        v_and_b32 v64, 15, v{vLANE}
        v_mul_u32_u24 v64, 1280, v64
        v_lshrrev_b32 v65, 4, v{vLANE}
        v_lshl_add_u32 v64, v65, 3, v64
        v_add_u32 v64, s3, v64
        v_add_u32 v65, {16*1280}, v64
        v_add_u32 v66, {32*1280}, v64
        v_add_u32 v67, {48*1280}, v64
        """)
        if self.om32:
            a(f"""
            s_lshl_b32 s3, s{sRT}, 6
            s_and_b32 s{sT0}, s{sW}, 1
            s_lshl_b32 s{sT0}, s{sT0}, 5
            s_add_u32 s3, s3, s{sT0}
            s_mul_i32 s3, s3, 1280
            s_lshl_b32 s{sT1}, s{sCT}, 7
            s_add_u32 s3, s3, s{sT1}
            s_lshr_b32 s{sT0}, s{sW}, 1
            s_lshl_b32 s{sT0}, s{sT0}, 6
            s_add_u32 s3, s3, s{sT0}
            v_and_b32 v64, 31, v{vLANE}
            v_mul_u32_u24 v64, 1280, v64
            v_lshrrev_b32 v65, 5, v{vLANE}
            v_lshl_add_u32 v64, v65, 3, v64
            v_add_u32 v64, s3, v64
            v_add_u32 v65, 16, v64
            v_add_u32 v66, 32, v64
            v_add_u32 v67, 48, v64
            """)
        a("s_waitcnt lgkmcnt(0)\ns_barrier")
        for j in range(4):
            for w in range(4):
                a(f"ds_read_b128 {vr(16*w+4*j,4)}, v{vA[1]} offset:{w*16384 + 1024*j}")
        for qb in range(4):
            a(f"s_waitcnt lgkmcnt({12-4*qb})")
            for e in range(2):
                r = 4 * qb + 2 * e
                a(f"v_pk_add_f32 {vr(r,2)}, {vr(r,2)}, {vr(16+r,2)}")
                a(f"v_pk_add_f32 {vr(32+r,2)}, {vr(32+r,2)}, {vr(48+r,2)}")
            for e in range(2):
                r = 4 * qb + 2 * e
                a(f"v_pk_add_f32 {vr(r,2)}, {vr(r,2)}, {vr(32+r,2)}")
            a(f"v_cvt_pk_bf16_f32 v{68+2*qb}, v{4*qb}, v{4*qb+1}")
            a(f"v_cvt_pk_bf16_f32 v{69+2*qb}, v{4*qb+2}, v{4*qb+3}")
            a(f"buffer_store_dwordx2 {vr(68+2*qb,2)}, v{64+qb}, s[96:99], 0 offen")
        if self.stamps:
            a("s_waitcnt vmcnt(0)")
            if not (self.lstamps or self.qstamps): self.stamp(7)
            self.stamp_store("L1_end")
        a("s_branch L1_end")
        a.label("L1_notile")
        a("s_waitcnt vmcnt(0)\ns_barrier")
        self.signal()

    def kernel(self):
        a = self.a
        a.begin_kernel("attn_kernel", 256, 256, LDS1, 512, accum=256)
        self.prologue()
        self.qphase32() if self.qm32 else self.qphase()
        self.main_loop()
        if self.stamps and (self.lstamps or self.qstamps):
            st = self.stamps; self.stamps = False
            self.stamp = lambda i: None
            self.stamps = st
        self.tail()
        a.label("L1_end")
        a("s_endpgm")
        for stub, ret, h in self.stubs:
            a.label(stub)
            a(f"s_call_b64 s[{sRET}:{sRET+1}], L_slow{h}\ns_branch {ret}")
        for h in range(2): self.slow_sub(h)

def build(name, **kw):
    g = Gen(**kw)
    g.kernel()
    open(name, "w").write(g.a.text())

def rate(name, ahead, late, **kw):
    dist = tuple(2 if n < ahead else 1 for n in range(8))
    porder = tuple(range(ahead, 8)) + tuple(range(ahead))
    pos = list(range(8 - ahead)) + [late + 2 * i for i in range(ahead)]
    build(name, dist=dist, porder=porder, dma_pos=pos, **kw)

if __name__ == "__main__":
    kw = dict(qkorder=1, dist=(2,)*8, warm=30, PDA=6, xB=17, wcap=3, nfirst=2, qrot=5, touch=11, early={3: 4, 4: 4, 5: 4, 6: 4})
    build("f7_19.s", dma_pos=[0, 3, 7, 11, 15, 19, 24, 28], **kw)
    build("f7_18.s", dma_pos=[0, 3, 6, 10, 14, 18, 24, 28], **kw)
    build("f7_19b.s", dma_pos=[1, 4, 8, 12, 16, 19, 23, 27], **kw)
```

```python
import sys, struct
from asmlib import Asm

def f32(x):
    return "0x%08x" % struct.unpack("<I", struct.pack("<f", x))[0]
def vr(b, n): return f"v[{b}:{b+n-1}]"
def ar(b, n): return f"a[{b}:{b+n-1}]"

PIT = 1056
TS = 16 * PIT
VB0 = 4 * TS
SPARE = 8 * TS
LDS1 = 163840
XP = 6 * 1024 + 32
XSZ = 4 * XP
XST = [TS, TS + XSZ, SPARE]
WST = [VB0 + TS, VB0 + 2 * TS, VB0 + 3 * TS]
QP = 288
QA1 = VB0 + 3 * TS
THR = 4096.0
CSC = 1.4426950408889634 / (128 ** 0.5)
MF = "v_mfma_f32_16x16x32_bf16"
MF32 = "v_mfma_f32_32x32x16_bf16"
XP32, WP32 = 3088, 1088

OW, S, P, NM = 0, 96, 144, 168
QA_, KF, VF = 96, 192, 224
vL, vTS, vT = 192, 198, 202
vTSH = [198, 222]
vSUM = [201, 208]
vST, vSTS = 226, 234
vK, vVA, vVB, vDMA, vLANE = 209, 210, 211, 212, 253
vX, vW, vX2, vW2, vXD, vWD, vKW = 214, 215, 216, 217, 218, 219, 220
QACC = 0
QSET = [0, 80]
KVR = 160

def Or(j, qb):
    return vr(OW + (j * 6 + qb) * 4, 4) if j < 4 else ar(((j - 4) * 6 + qb) * 4, 4)
def Qf(s, qb): return ar(QA_ + 4 * (s * 6 + qb), 4)
def Si(kb, qb): return S + ((qb // 3) * 6 + kb * 3 + qb % 3) * 4

sW, sB, sH = 32, 33, 34
sTHR = [36, 36]
sKVO, sKVL = 40, 41
sCH, sXO, sWO, sT0, sT1 = 42, 43, 44, 45, 46
sLOOP = 47
sXB, sWB, sXS, sWS = 48, 49, 50, 51
sQH, sKH = 52, 53
sRET = 54
sTW = 37
vTW = 252
sD = [30, 31, 35]
SRD_K, SRD_V, SRD_X, SRD_W = 16, 20, 24, 96

class Gen:
    def __init__(self, stamps=False, kvstride=16384, abl=(), early=None, kvw=(8, 9), fused=True, nR=20, xB=12,
                 dma_pos=None, touch=2, kvf='nt', adapt=0, nfirst=3, pstamps=False, om32=False, tstamps=False, st0=True, orot=0, late_st=False, qm32=False, x4=False, ks=0, summode=0, wcap=63, tlbk=-1, dbgst=False, qrot=1, warm=0, qng=16, qrg=12, qng32=22, qrg32=20, pad=0, pvorder=0, qkorder=0, dist=(3,)*8, pre=None, porder=(0, 1, 2, 3, 4, 5, 6, 7), linear=False, korder=0, chain=False, head=12, target=2.4, gap_max=4, ds_cost=1, dma_cost=2, lstamps=False, qstamps=False, PDA=10, tilemap=0):
        self.a = Asm()
        self.__dict__.update(locals())
        if early is None: self.early = {3: 4, 4: 4, 5: 4, 6: 4, 7: 4, 8: 4}
        if pre is None: self.pre = self.dist
        self.dsq = []
        self.stubs = []
        self.src = {}

    def stamp(self, i):
        if self.pstamps and i in (3, 4, 5, 6): return
        if self.stamps:
            self.a(f"s_memrealtime s[{60+2*i}:{61+2*i}]")
            self.a(f"s_memtime s[{76+2*i}:{77+2*i}]")
    def stamp_store(self, end):
        a = self.a
        if self.dbgst:
            a(f"""
            s_cmp_eq_u32 s{sW}, 0
            s_cbranch_scc0 {end}
            s_and_b32 s3, s2, 0xef
            s_cmp_eq_u32 s3, 0x60
            s_cbranch_scc0 {end}
            s_waitcnt lgkmcnt(0)
            s_lshr_b32 s3, s2, 4
            s_and_b32 s3, s3, 1
            s_lshl_b32 s3, s3, 5
            v_mov_b32 v1, s3
            """)
            for i in range(1, 8):
                a(f"s_sub_u32 s3, s{60+2*i}, s60\nv_mov_b32 v{3+i}, s3")
            a(f"""
            v_cmp_eq_u32 vcc, 0, v{vLANE}
            s_and_saveexec_b64 s[54:55], vcc
            global_store_dwordx4 v1, v[4:7], s[28:29] offset:4
            global_store_dwordx3 v1, v[8:10], s[28:29] offset:20
            """)
            return
        a(f"""
        s_cmp_eq_u32 s{sW}, 0
        s_cbranch_scc0 {end}
        s_waitcnt lgkmcnt(0)
        s_add_u32 s14, s12, 0x10000000
        s_addc_u32 s15, s13, 0
        s_lshl_b32 s3, s2, 7
        v_mov_b32 v1, s3
        """)
        for i in range(32): a(f"v_mov_b32 v{4+i}, s{60+i}")
        a(f"v_cmp_eq_u32 vcc, 0, v{vLANE}\ns_and_saveexec_b64 s[54:55], vcc")
        for i in range(8): a(f"global_store_dwordx4 v1, v[{4+4*i}:{7+4*i}], s[14:15] offset:{16*i}")

    def ds(self, text, tag):
        self.a(text); self.dsq.append(tag)
    def need(self, tag):
        idx = [i for i, t in enumerate(self.dsq) if t == tag]
        if not idx: return
        cnt = min(len(self.dsq) - 1 - idx[-1], 15)
        self.a(f"s_waitcnt lgkmcnt({cnt})")
        self.dsq = self.dsq[len(self.dsq) - cnt:]

    def toff(self, t):
        if self.kvstride == 0: return 0
        m = 1 << self.ks
        return ((t & (m - 1)) << 12) | ((t >> self.ks) << (14 + self.ks))
    def kv_piece(self, t, n, reg=None, k=None):
        isv, j = n & 1, n >> 1
        srd = SRD_V if isv else SRD_K
        off = f" offset:{j*256}" if j else ""
        pre = ""
        if k is None:
            pre = f"s_add_u32 s{sT1}, s{sKVO}, {self.toff(t)}\n"
            so = sT1
        else:
            so = sD[t - k - 1]
        if reg is None:
            pre += f"s_add_u32 m0, s{sKVL}, {isv*VB0 + (t%4)*TS + j*(PIT-256)}"
            post = f"buffer_load_dwordx4 v{vDMA}, s[{srd}:{srd+3}], s{so} offen{off} {self.kvf} lds"
        else:
            post = f"buffer_load_dwordx4 {ar(reg+4*n,4)}, v{vDMA}, s[{srd}:{srd+3}], s{so} offen{off} {self.kvf}"
        return pre.rstrip("\n"), post
    def dist_of(self, n, k):
        return self.dist[n]
    def main_pieces(self, k):
        out = []
        for n in self.porder:
            t = k + self.dist[n]
            if t >= self.pre[n] and (k <= 29 or t <= 31):
                out.append((n, t))
        return out
    def warm_on(self, k): return self.warm and 1 <= k <= 29
    def warm_piece(self):
        pre = f"s_mov_b32 m0, {LDS1-1024}"
        post = f"""buffer_load_dwordx4 v{vTW}, s[92:95], s{sTW} offen lds
        s_add_u32 s39, s39, 1
        s_cmp_eq_u32 s39, 5
        s_cselect_b32 s3, {32*1280-4*128}, s{sT1}
        s_cselect_b32 s39, 0, s39
        s_add_u32 s{sTW}, s{sTW}, s3"""
        return pre, post
    def main_wait(self, k):
        order = []
        for kk in range(0, k):
            order += [t for n, t in self.main_pieces(kk)]
            if self.warm_on(kk): order.append(999)
        idx = [i for i, t in enumerate(order) if t <= k]
        return len(order) - 1 - idx[-1] if idx else len(order)
    def w_pieces(self, c):
        wb = self.wslot(c)
        head = f"""s_lshl_b32 s{sWO}, s{sCH}, 19
        s_add_u32 s{sWO}, s{sWO}, s{sWS}
        s_add_u32 s{sCH}, s{sCH}, 1
        s_cmp_ge_u32 s{sCH}, 10
        s_cselect_b32 s{sCH}, 0, s{sCH}
        """
        W = f"s[{SRD_W}:{SRD_W+3}]"
        return [((head if e == 0 else f"s_add_u32 s{sWO}, s{sWO}, 8192\n") + f"s_add_u32 m0, s{sWB}, {wb + e*(WP32 if self.qm32 else PIT)}",
                 f"buffer_load_dwordx4 v{vWD}, {W}, s{sWO} offen lds") for e in range(4)]
    def x_pieces(self, c):
        xb = self.xslot(c)
        head = f"""s_lshl_b32 s{sXO}, s39, 7
        s_add_u32 s{sXO}, s{sXO}, s{sXS}
        s_add_u32 s39, s39, 1
        s_cmp_ge_u32 s39, 10
        s_cselect_b32 s39, 0, s39
        """
        X = f"s[{SRD_X}:{SRD_X+3}]"
        if self.qm32:
            inc = [0, 64*1280, 64*1280, 1280 - 128*1280, 64*1280, 64*1280]
            return [((head if u == 0 else (f"s_add_u32 s{sXO}, s{sXO}, {inc[u]}\n" if inc[u] > 0 else f"s_sub_u32 s{sXO}, s{sXO}, {-inc[u]}\n"))
                     + f"s_add_u32 m0, s{sXB}, {xb + (u//3)*XP32 + (u%3)*1024}",
                     f"buffer_load_dwordx4 v{vXD}, {X}, s{sXO} offen lds") for u in range(6)]
        return [((head if u == 0 else f"s_add_u32 s{sXO}, s{sXO}, {32*1280}\n") + f"s_add_u32 m0, s{sXB}, {xb + u*1024}",
                 f"buffer_load_dwordx4 v{vXD}, {X}, s{sXO} offen lds") for u in range(6)]
    def xslot(self, c):
        if self.x4: return [0, XSZ, SPARE, 2 * XSZ][{6: 0, 8: 1, 9: 2, 7: 3}[6 + (c - 6) % 4]]
        return XST[(c + 2) % 3]
    def wslot(self, c):
        if self.x4: return 3 * XSZ + ((c - 7) % 3) * (16 * WP32 if self.qm32 else TS)
        return WST[(c + 2) % 3]
    def touch_pieces(self):
        return [(f"s_mov_b32 m0, {LDS1-1024}", f"buffer_load_dwordx4 v{vTW}, s[92:95], s{sTW} offen lds\ns_add_u32 s{sTW}, s{sTW}, 1024") for n in range(5)]
    def emit_piece(self, pc):
        self.a((pc[0] + "\ns_nop 0\n" if pc[0] else "") + pc[1])

    def kread(self, slot, f):
        if "nolds" in self.abl: return
        kb, s = f >> 2, f & 3
        self.ds(f"ds_read_b128 {ar(KF+4*f,4)}, v{vK} offset:{slot*TS + kb*256 + s*64}", ("K", f))
    def vread(self, slot, j):
        if "nolds" in self.abl: return
        ad = vVA if j < 4 else vVB
        for u in range(2):
            self.ds(f"ds_read_b64_tr_b16 {ar(VF+4*j+2*u,2)}, v{ad} offset:{slot*TS + u*256 + j*32}", ("V", j))

    def sm_stream(self, h, T=vT, check=True):
        out = []
        if "nosm" in self.abl: return out
        TSV = vTSH[h]
        pairs = [(kb, q3, e) for kb in range(2) for q3 in range(3) for e in range(2)]
        def tmp(i): return T + (i % 3) * 2
        def ex(i):
            kb, q3, e = pairs[i]
            r = Si(kb, 3 * h + q3) + 2 * e
            self.src[f"v_exp_f32 v{tmp(i)}, v{r}"] = (h, kb, q3)
            out.append((2, f"v_exp_f32 v{tmp(i)}, v{r}"))
            out.append((2, f"v_exp_f32 v{tmp(i)+1}, v{r+1}"))
        ex(0)
        late = []
        for i, (kb, q3, e) in enumerate(pairs):
            if i + 1 < len(pairs): ex(i + 1)
            else: out.append((1, f"v_add_f32 v{vSUM[h]}, v{TSV}, v{TSV+1}"))
            t = tmp(i)
            pr = P + 4 * (3 * h + q3) + 2 * kb + e
            cv = (1, f"v_cvt_pk_bf16_f32 v{pr}, v{t}, v{t+1}")
            if self.summode == 1:
                acc2 = 238 + 6 * h + 2 * q3
                if kb == 0 and e == 0: out.append((1, f"v_pk_add_f32 {vr(acc2,2)}, {vr(t,2)}, 0"))
                else: out.append((1, f"v_pk_add_f32 {vr(acc2,2)}, {vr(acc2,2)}, {vr(t,2)}"))
                if kb == 1 and e == 1: out.append((1, f"v_add_f32 v{TSV+q3}, v{acc2}, v{acc2+1}"))
            elif self.summode == 2:
                out.append(cv)
                if kb == 0 and e == 0: cv = (1, f"v_dot2_f32_bf16 v{TSV+q3}, v{pr}, v250, 0")
                else: cv = (1, f"v_dot2c_f32_bf16 v{TSV+q3}, v{pr}, v250")
                out.append(cv); cv = None
            elif kb == 0 and e == 0:
                out.append((1, f"v_add_f32 v{TSV+q3}, v{t}, v{t+1}"))
            elif "noadd" not in self.abl:
                out.append((1, f"v_add_f32 v{TSV+q3}, v{TSV+q3}, v{t}"))
                out.append((1, f"v_add_f32 v{TSV+q3}, v{TSV+q3}, v{t+1}"))
            if cv is None: continue
            if i >= len(pairs) - 1: late.append(cv)
            else: out.append(cv)
        if check:
            out.append((1, f"v_add_f32 v{vSUM[h]}, v{vSUM[h]}, v{TSV+2}"))
            out.append((1, f"v_cmp_lt_f32 vcc, s{sTHR[h]}, v{vSUM[h]}"))
        out += late
        return out
    def gated(self, items, G, start=0):
        return [(c, t, self.src.get(t, 0)) for c, t in items]
    def ninstr(self):
        return sum(1 for l in self.a.lines[-40:] if not l.strip().endswith(":") ) + 0
    def gate_ok(self, key):
        if key == 0: return True
        if key not in self.ready: return False
        n = sum(1 for l in self.a.lines[self.ready[key]:] if l.strip() and not l.strip().endswith(":"))
        return n >= 8
    def first_stream(self, h):
        out = []
        m = [vST, vST + 1, vST + 2]; n = [vST + 3, vST + 4, vST + 5]
        def add(t, key=0): out.append((1, t, key))
        for q3 in range(3):
            s0, s1 = Si(0, 3*h+q3), Si(1, 3*h+q3)
            add(f"v_max3_f32 v{m[q3]}, v{s0}, v{s0+1}, v{s0+2}", (h, 0, q3))
        for q3 in range(3):
            s0, s1 = Si(0, 3*h+q3), Si(1, 3*h+q3)
            add(f"v_max3_f32 v{m[q3]}, v{m[q3]}, v{s0+3}, v{s1}", (h, 1, q3))
            add(f"v_max3_f32 v{m[q3]}, v{m[q3]}, v{s1+1}, v{s1+2}")
            add(f"v_max_f32 v{m[q3]}, v{m[q3]}, v{s1+3}")
        for sw in ("v_permlane16_swap_b32", "v_permlane32_swap_b32"):
            for q3 in range(3): add(f"v_mov_b32 v{n[q3]}, v{m[q3]}")
            add("s_nop 1")
            for q3 in range(3): add(f"{sw} v{m[q3]}, v{n[q3]}")
            for q3 in range(3): add(f"v_max_f32 v{m[q3]}, v{m[q3]}, v{n[q3]}")
        for q3 in range(3):
            qb = 3 * h + q3
            for kb in range(2):
                for r in range(4): add(f"v_sub_f32 v{Si(kb,qb)+r}, v{Si(kb,qb)+r}, v{m[q3]}")
            for r in range(4): add(f"v_sub_f32 v{NM+4*qb+r}, 0, v{m[q3]}")
        return out
    def check_branch(self, h):
        a = self.a
        if "nosm" in self.abl: return []
        if not self.abl:
            stub = a.newlabel("L_stub"); ret = a.newlabel("L_ret")
            self.stubs.append((stub, ret, h))
            a(f"s_cbranch_vccnz {stub}\n{ret}:")
        return [(1, f"v_add_f32 v{vL+3*h+q3}, v{vL+3*h+q3}, v{vTSH[h]+q3}") for q3 in range(3)]

    def slow_sub(self, h):
        a = self.a
        a.label(f"L_slow{h}")
        m = [vST, vST + 1, vST + 2]; n = [vST + 3, vST + 4, vST + 5]
        for q3 in range(3):
            s0, s1 = Si(0, 3*h+q3), Si(1, 3*h+q3)
            a(f"v_max3_f32 v{m[q3]}, v{s0}, v{s0+1}, v{s0+2}")
            a(f"v_max3_f32 v{m[q3]}, v{m[q3]}, v{s0+3}, v{s1}")
            a(f"v_max3_f32 v{m[q3]}, v{m[q3]}, v{s1+1}, v{s1+2}")
            a(f"v_max_f32 v{m[q3]}, v{m[q3]}, v{s1+3}")
        for sw in ("v_permlane16_swap_b32", "v_permlane32_swap_b32"):
            for q3 in range(3): a(f"v_mov_b32 v{n[q3]}, v{m[q3]}")
            a("s_nop 1")
            for q3 in range(3): a(f"{sw} v{m[q3]}, v{n[q3]}")
            for q3 in range(3): a(f"v_max_f32 v{m[q3]}, v{m[q3]}, v{n[q3]}")
        for q3 in range(3): a(f"v_max_f32 v{m[q3]}, 0, v{m[q3]}")
        for q3 in range(3): a(f"v_exp_f32 v{n[q3]}, -v{m[q3]}")
        for q3 in range(3):
            qb = 3 * h + q3
            for kb in range(2):
                for r in range(4): a(f"v_sub_f32 v{Si(kb,qb)+r}, v{Si(kb,qb)+r}, v{m[q3]}")
            for r in range(4): a(f"v_sub_f32 v{NM+4*qb+r}, v{NM+4*qb+r}, v{m[q3]}")
            a(f"v_mul_f32 v{vL+qb}, v{vL+qb}, v{n[q3]}")
            for j in range(4):
                for r in range(4): a(f"v_mul_f32 v{OW+(j*6+qb)*4+r}, v{OW+(j*6+qb)*4+r}, v{n[q3]}")
            for j in range(4):
                t = [vSTS, vSTS + 1, vSTS + 2, vSTS + 3]
                for r in range(4): a(f"v_accvgpr_read_b32 v{t[r]}, a{(j*6+qb)*4+r}")
                for r in range(4): a(f"v_mul_f32 v{t[r]}, v{t[r]}, v{n[q3]}")
                for r in range(4): a(f"v_accvgpr_write_b32 a{(j*6+qb)*4+r}, v{t[r]}")
        for c, t in self.sm_stream(h, T=vST, check=False): a(t)
        a(f"s_nop 1\ns_setpc_b64 s[{sRET}:{sRET+1}]")

    def mk(self, kind, h, items, **kw):
        return dict(kind=kind, h=h, items=items, **kw)
    def pv_groups(self, h, first=False, after=None, js=range(8)):
        if self.pvorder == 0:
            return [self.mk("pv", h, [(j, q3) for q3 in range(3)], first=first, after=[(lambda j=j: after(j))] if after else []) for j in js]
        seq = [(j, q3) for q3 in range(3) for j in range(8)]
        out = []
        for g in range(8):
            it = seq[3 * g:3 * g + 3]
            aft = []
            if after:
                if self.pv_after_k:
                    aft = [(lambda j=g: after(j))]
                else:
                    aft = [(lambda j=j: after(j)) for j, q3 in it if q3 == 2]
            out.append(self.mk("pv", h, it, first=first, after=aft))
        return out
    def qk_groups(self, h):
        if self.qkorder == 0:
            return [self.mk("qk", h, [(f, q3) for q3 in range(3)]) for f in range(8)]
        seq = [(4 * kb + s, q3) for kb in range(2) for q3 in range(3) for s in range(4)]
        return [self.mk("qk", h, seq[3 * g:3 * g + 3]) for g in range(8)]

    def run(self, groups, vq, target, keep=False):
        a = self.a
        cum = 0.0; m = 0
        if not keep: self.ready = {}
        for gi, g in enumerate(groups):
            kind, h = g["kind"], g["h"]
            if g.get("check") is not None:
                vq[0:0] = [(c, t, 0) for c, t in self.check_branch(g["check"])]
                cum += 1
            dma = g.get("dma")
            if self.pad: a(f"s_nop {self.pad-1}")
            if dma and dma[0]: a(dma[0]); cum += 1
            for n, (j, q3) in enumerate(g["items"]):
                qb = 3 * h + q3
                n0 = len(a.lines)
                self.need(("V" if kind == "pv" else "K", j))
                cum += len(a.lines) - n0
                if kind == "pv":
                    c = "0" if g.get("first") else Or(j, qb)
                    a(f"{MF} {Or(j,qb)}, {ar(VF+4*j,4)}, {vr(P+4*qb,4)}, {c}")
                    self.ready[("pv", j, qb)] = len(a.lines)
                else:
                    kb, s = j >> 2, j & 3
                    c = vr(NM + 4 * qb, 4) if s == 0 else vr(Si(kb, qb), 4)
                    a(f"{MF} {vr(Si(kb,qb),4)}, {ar(KF+4*j,4)}, {Qf(s,qb)}, {c}")
                    if s == 3: self.ready[(h, kb, q3)] = len(a.lines)
                cur = 0
                if n == 0 and dma:
                    a(dma[1]); cur += self.dma_cost
                if n == 2:
                    n0 = len(a.lines)
                    for fn in g.get("after", []): fn()
                    cur += (len(a.lines) - n0) * self.ds_cost
                m += 1
                while vq and self.gate_ok(vq[0][2]) and (cur < 2 or cum + cur + vq[0][0] <= target * m + 0.5):
                    if cur >= 2 and cur + vq[0][0] > self.gap_max: break
                    if cur == 1 and vq[0][0] == 2 and cum + cur + 2 > target * m + 1.5: break
                    c, t, _ = vq.pop(0)
                    a(t); cur += c
                cum += max(cur, 0)

    def tlb_warm(self):
        a = self.a
        for l in self.tail_setup(): a(l)
        a(f"""
        s_mov_b32 s24, s12
        s_mov_b32 s25, s13
        s_mov_b32 s26, {96*128*1024}
        s_mov_b32 s27, 0x20000
        s_mul_i32 s3, s{sB}, 12
        s_lshl_b32 s3, s3, 17
        s_lshl_b32 s{sT0}, s{sH}, 12
        s_add_u32 s3, s3, s{sT0}
        v_and_b32 v238, 15, v{vLANE}
        v_lshlrev_b32 v238, 17, v238
        buffer_load_dword v239, v238, s[24:27], s3 offen sc1
        s_lshl_b32 s3, s{self.sRT}, 19
        v_lshlrev_b32 v238, 13, v{vLANE}
        buffer_load_dword v240, v238, s[24:27], s3 offen sc1
        s_mul_i32 s3, s{self.sRT}, {64*1280}
        v_mul_u32_u24 v238, 1280, v{vLANE}
        buffer_load_dword v241, v238, s[96:99], s3 offen sc1
        v_mov_b32 v238, 4
        global_load_dword v242, v238, s[28:29] sc1
        s_movk_i32 s{sT1}, 128
        """)
    def interval(self, k):
        a = self.a
        slot = k % 4
        H = self.head
        w = self.main_wait(k) if k <= 30 else 0
        if 2 <= k <= 5:
            w = min(self.main_wait(k + 4 * i) for i in range(7))
        wneed = w
        w = min(w, self.wcap)
        pcs = [self.kv_piece(t, n, k=k) for n, t in self.main_pieces(k)]
        if 2 <= k <= 5: assert len(pcs) == 8
        if "nodma" in self.abl: pcs = []
        pos = self.dma_pos or [1, 5, 9, 13, 17, 21, 25, 29]
        lead = []
        if k >= 1: lead = [(c, t, 0) for c, t in self.check_branch(0)]
        for d in sorted(set(self.dist)):
            if self.ks == 0 or self.kvstride == 0:
                if k == 0: a(f"s_add_u32 s{sD[d-1]}, s{sKVO}, {d*self.kvstride}")
                else: a(f"s_add_u32 s{sD[d-1]}, s{sD[d-1]}, {self.kvstride}")
            else:
                if k == 0: a(f"s_mov_b32 s{100+(d&1)}, {d}")
                else: a(f"s_add_u32 s{100+(d&1)}, s{100+(d&1)}, 1")
                a(f"""s_and_b32 s3, s{100+(d&1)}, {(1<<self.ks)-1}
                s_lshl_b32 s3, s3, 12
                s_lshr_b32 s{sD[d-1]}, s{100+(d&1)}, {self.ks}
                s_lshl_b32 s{sD[d-1]}, s{sD[d-1]}, {14+self.ks}
                s_add_u32 s{sD[d-1]}, s{sD[d-1]}, s3
                s_add_u32 s{sD[d-1]}, s{sD[d-1]}, s{sKVO}""")
        if self.adapt and wneed > w:
            lab = a.newlabel("L_deep")
            a(f"""s_getreg_b32 s3, hwreg(HW_REG_IB_STS)
            s_and_b32 s3, s3, 0x00c0000f""")
            if self.lstamps: a("s_mov_b32 s101, s3")
            a(f"""s_cmp_ge_u32 s3, {self.adapt}
            s_waitcnt vmcnt({wneed}) lgkmcnt(0)
            s_cbranch_scc1 {lab}
            s_waitcnt vmcnt({w})
            {lab}:
            s_barrier""")
        elif "nobar" in self.abl and 0 < k < 31: a(f"s_waitcnt vmcnt({w}) lgkmcnt(0)")
        else: a(f"s_waitcnt vmcnt({w}) lgkmcnt(0)\ns_barrier")
        self.dsq = []
        if k == self.tlbk: self.tlb_warm()
        smA = self.sm_stream(0); smB = self.sm_stream(1)
        if k == 0:
            for f in range(8): self.kread(slot, f)
            for j in range(8): self.vread(slot, j)
            groups = self.qk_groups(0) + self.qk_groups(1)
            for i, pc in enumerate(pcs): groups[i]["dma"] = pc
            vq = self.first_stream(0) + [(c, t, 0) for c, t in smA] + self.first_stream(1) + [(c, t, 0) for c, t in smB[:H]]
            self.run(groups, vq, 3.0)
        else:
            self.pv_after_k = True
            groups = self.pv_groups(0, k == 1, lambda j: self.kread(slot, j)) + self.qk_groups(0)
            self.pv_after_k = False
            groups += self.pv_groups(1, k == 1, lambda j: self.vread(slot, j)) + self.qk_groups(1)
            groups[16]["check"] = 1
            for i, pc in enumerate(pcs): groups[pos[i]]["dma"] = pc
            if self.warm_on(k): groups[self.warm]["dma"] = self.warm_piece()
            vq = lead + [(c, t, 0) for c, t in smB[H:]] + self.gated(smA, 24) + self.gated(smB[:H], 72)
            nB = len(lead) + len(smB) - H
            self.run(groups, vq, self.target)
        for c, t, key in vq:
            if not self.gate_ok(key): a("s_nop 7")
            a(t)

    def main_loop(self):
        a = self.a
        if self.warm:
            a(f"""
            s_lshr_b32 s3, s2, 3
            s_mul_i32 s{sTW}, s3, {128*1280}
            s_mul_i32 s3, s{sW}, {8*1280}
            s_add_u32 s{sTW}, s{sTW}, s3
            s_bfe_u32 s3, s2, 0x10002
            s_mul_i32 s3, s3, 640
            s_add_u32 s{sTW}, s{sTW}, s3
            s_mov_b32 s39, 0
            s_movk_i32 s{sT1}, 128
            v_lshrrev_b32 v{vTW}, 3, v{vLANE}
            v_mul_u32_u24 v{vTW}, 1280, v{vTW}
            v_and_b32 v{vT}, 7, v{vLANE}
            v_lshl_add_u32 v{vTW}, v{vT}, 4, v{vTW}
            """)
        if self.summode == 2: a("v_mov_b32 v250, 0x3f803f80")
        self.interval(0)
        self.interval(1)
        a(f"s_mov_b32 s{sLOOP}, 0")
        a.label("L1_loop")
        for k in range(2, 6): self.interval(k)
        if self.lstamps:
            if self.adapt: a(f"s_mov_b32 m0, s{sLOOP}\ns_mul_i32 s101, s101, 100\ns_add_u32 s101, s101, s60\nv_writelane_b32 v254, s101, m0")
            else: a(f"s_memrealtime s[100:101]\ns_mov_b32 m0, s{sLOOP}\ns_waitcnt lgkmcnt(0)\nv_writelane_b32 v254, s100, m0")
        a(f"s_add_u32 s{sLOOP}, s{sLOOP}, 1\ns_cmp_lt_u32 s{sLOOP}, 7\ns_cbranch_scc1 L1_loop")
        self.interval(30)
        self.interval(31)
        if self.lstamps:
            a("s_waitcnt lgkmcnt(0)")
            for i in range(7): a(f"v_readlane_b32 s{62+2*i}, v254, {i}\ns_mov_b32 s{63+2*i}, s61")
        self.endgame()

    def flush(self, vq):
        for c, t, key in vq:
            if not self.gate_ok(key): self.a("s_nop 7")
            self.a(t)
        del vq[:]

    def endgame(self):
        a = self.a
        js = [4, 5, 6, 7, 0, 1, 2, 3]
        ML = LDS1 - 4096
        vA, vB, vC = vX, vW, vX2
        mo, lo, g0, g1 = 224, 230, 236, 244
        t = [vST + 0, vST + 1, vST + 2, vST + 3, vST + 4, vST + 5]
        t = [202, 203, 204, 205, 206, 207]
        lead = [(c, tx, 0) for c, tx in self.check_branch(0)]
        setup = f"""v_lshlrev_b32 v{vA}, 4, v{vLANE}
        s_mul_i32 s{sT0}, s{sQH}, {VB0}
        s_mul_i32 s3, s{sKH}, 24576
        s_add_u32 s3, s3, s{sT0}
        v_add_u32 v{vB}, s3, v{vA}
        s_lshl_b32 s3, s{sW}, 10
        s_add_u32 s3, s3, {ML}
        v_and_b32 v{vC}, 15, v{vLANE}
        v_lshlrev_b32 v{vC}, 2, v{vC}
        v_add_u32 v{vC}, s3, v{vC}
        v_xor_b32 v{vW2}, 0x400, v{vC}
        s_xor_b32 s{sT1}, s{sKH}, 1
        s_mul_i32 s3, s{sT1}, 24576
        s_add_u32 s{sKVL}, s3, s{sT0}
        v_add_u32 v{vXD}, s{sKVL}, v{vA}
        s_mul_i32 s3, s{sB}, 12
        s_mul_i32 s{sT0}, s{sQH}, 6
        s_add_u32 s3, s3, s{sT0}
        s_lshl_b32 s3, s3, 7
        s_lshl_b32 s{sT0}, s{sH}, 2
        s_add_u32 s3, s3, s{sT0}
        s_lshl_b32 s{sT0}, s{sKH}, 1
        s_add_u32 s3, s3, s{sT0}
        s_lshl_b32 s3, s3, 10
        v_add_u32 v{vA}, s3, v{vA}
        s_mov_b32 s24, s12
        s_mov_b32 s25, s13
        s_mov_b32 s26, {96*128*1024}
        s_mov_b32 s27, 0x20000""".split("\n")
        if self.om32:
            setup += f"""s_mul_i32 s3, s{sB}, 6
            s_mul_i32 s{sT0}, s{sQH}, 3
            s_add_u32 s3, s3, s{sT0}
            s_lshl_b32 s3, s3, 8
            s_lshl_b32 s{sT0}, s{sH}, 3
            s_add_u32 s3, s3, s{sT0}
            s_lshl_b32 s{sT0}, s{sKH}, 2
            s_add_u32 s3, s3, s{sT0}
            s_lshl_b32 s3, s3, 10
            v_and_b32 v{vA}, 15, v{vLANE}
            v_lshlrev_b32 v{vA}, 4, v{vA}
            v_bfe_u32 v{vKW}, v{vLANE}, 4, 1
            v_lshl_or_b32 v{vA}, v{vKW}, 9, v{vA}
            v_lshrrev_b32 v{vKW}, 5, v{vLANE}
            v_lshl_or_b32 v{vA}, v{vKW}, 10, v{vA}
            v_add_u32 v{vA}, s3, v{vA}""".split("\n")
        vq = lead + [(c, tx, 0) for c, tx in self.sm_stream(1)[self.head:]] + [(1, l.strip(), 0) for l in setup + self.tail_setup()]
        self.run(self.pv_groups(0, js=js), vq, 4.5)
        self.flush(vq)
        for c, tx in self.check_branch(1): a(tx)
        def W(qb, jj): return (1, f"ds_write_b128 v{vB}, {ar((jj*6+qb)*4,4)} offset:{1024*(jj*6+qb)}", ("pv", jj + 4, qb))
        vq = []
        for sw in ("v_permlane16_swap_b32", "v_permlane32_swap_b32"):
            vq += [(1, f"v_mov_b32 v{t[qb]}, v{vL+qb}", 0) for qb in range(6)]
            vq += [(1, f"{sw} v{t[qb]}, v{vL+qb}", 0) for qb in range(6)]
            vq += [(1, f"v_add_f32 v{vL+qb}, v{vL+qb}, v{t[qb]}", 0) for qb in range(6)]
        for qb in range(6):
            vq += [(1, f"ds_write_b32 v{vC}, v{NM+4*qb} offset:{qb*64}", 0), (1, f"ds_write_b32 v{vC}, v{vL+qb} offset:{384+qb*64}", 0)]
        vq += [(1, "s_waitcnt lgkmcnt(0)", 0), (1, "s_barrier", 0)]
        for qb in range(6):
            vq += [(1, f"ds_read_b32 v{mo+qb}, v{vW2} offset:{qb*64}", 0), (1, f"ds_read_b32 v{lo+qb}, v{vW2} offset:{384+qb*64}", 0)]
        vq += [W(qb, jj) for jj in range(4) for qb in range(3)]
        vq += [(1, "s_waitcnt lgkmcnt(12)", 0)]
        for fn in (lambda qb: f"v_min_f32 v{t[qb]}, v{NM+4*qb}, v{mo+qb}",
                   lambda qb: f"v_sub_f32 v{g0+qb}, v{t[qb]}, v{NM+4*qb}",
                   lambda qb: f"v_sub_f32 v{g1+qb}, v{t[qb]}, v{mo+qb}",
                   lambda qb: f"v_exp_f32 v{g0+qb}, v{g0+qb}",
                   lambda qb: f"v_exp_f32 v{g1+qb}, v{g1+qb}",
                   lambda qb: f"v_mul_f32 v{t[qb]}, v{vL+qb}, v{g0+qb}",
                   lambda qb: f"v_fma_f32 v{t[qb]}, v{lo+qb}, v{g1+qb}, v{t[qb]}",
                   lambda qb: f"v_rcp_f32 v{t[qb]}, v{t[qb]}",
                   lambda qb: f"v_mul_f32 v{g0+qb}, v{g0+qb}, v{t[qb]}",
                   lambda qb: f"v_mul_f32 v{g1+qb}, v{g1+qb}, v{t[qb]}"):
            vq += [(1, fn(qb), 0) for qb in range(6)]
        vq += [W(qb, jj) for jj in range(4) for qb in range(3, 6)]
        self.dsq = []
        a("s_waitcnt lgkmcnt(0)")
        self.gap_max_save, self.gap_max = self.gap_max, 8
        self.run(self.pv_groups(1, js=js), vq, 6.0, keep=True)
        self.gap_max = self.gap_max_save
        self.flush(vq)
        self.stamp(7 if self.qstamps else 3) if not self.lstamps else None
        def pair(g, qb):
            r = g + qb
            return (vr(r & ~1, 2), 1 if r & 1 else 0)
        order = [(jj, qb) for qb in range(3) for jj in range(4)] + [(jj, qb) for qb in range(3, 6) for jj in range(4)]
        for jj, qb in order:
            if not self.gate_ok(("pv", jj, qb)): a("s_nop 7")
            pr, sel = pair(g0, qb)
            for e in range(2):
                r = OW + (jj * 6 + qb) * 4 + 2 * e
                a(f"v_pk_mul_f32 {vr(r,2)}, {vr(r,2)}, {pr} op_sel:[0,{sel}] op_sel_hi:[1,{sel}]")
        a("s_waitcnt lgkmcnt(0)\ns_barrier")
        RB = 96
        rd = [(jj, qb) for i in range(2) for qb in range(6) for jj in (2 * i, 2 * i + 1)]
        for jj, qb in rd:
            a(f"ds_read_b128 {vr(RB+(jj*6+qb)*4,4)}, v{vXD} offset:{1024*(jj*6+qb)}")
        self.tail_early()
        st = "sc1"
        stores = []
        n = 0
        for i in range(2):
            for qb in range(6):
                n += 2
                a(f"s_waitcnt lgkmcnt({min(15, 24 - n)})")
                pr, sel = pair(g1, qb)
                for jj in (2 * i, 2 * i + 1):
                    for e in range(2):
                        r = OW + (jj * 6 + qb) * 4 + 2 * e
                        rb = RB + (jj * 6 + qb) * 4 + 2 * e
                        a(f"v_pk_fma_f32 {vr(r,2)}, {vr(rb,2)}, {pr}, {vr(r,2)} op_sel:[0,{sel},0] op_sel_hi:[1,{sel},1]")
                pk = RB + (2 * i * 6 + qb) * 4
                o0, o1 = OW + (2 * i * 6 + qb) * 4, OW + ((2 * i + 1) * 6 + qb) * 4
                a(f"v_cvt_pk_bf16_f32 v{pk}, v{o0}, v{o0+1}")
                a(f"v_cvt_pk_bf16_f32 v{pk+1}, v{o0+2}, v{o0+3}")
                a(f"v_cvt_pk_bf16_f32 v{pk+2}, v{o1}, v{o1+1}")
                a(f"v_cvt_pk_bf16_f32 v{pk+3}, v{o1+2}, v{o1+3}")
                stl = f"s_mov_b32 s3, {qb*0x20000}\nbuffer_store_dwordx4 {vr(pk,4)}, v{vA}, s[24:27], s3 offen offset:{1024*i} {st}"
                if self.om32:
                    stl = f"""s_mov_b32 s3, {(qb>>1)*0x40000}
                    s_nop 0
                    v_permlane32_swap_b32 v{pk}, v{pk+2}
                    v_permlane32_swap_b32 v{pk+1}, v{pk+3}
                    buffer_store_dwordx4 {vr(pk,4)}, v{vA}, s[24:27], s3 offen offset:{2048*i + 256*(qb&1)} {st}"""
                if self.late_st: stores.append(stl)
                else: a(stl)
        if self.late_st:
            a(f"s_cmp_ge_u32 s{self.sJ}, 30\ns_cbranch_scc1 L1_noearly2")
            for i in range(3, 9): self.wo_issue(i)
            a("L1_noearly2:")
            for stl in stores: a(stl)
        self.vq += [("S", 0)] * 12

    def rot_code(self):
        if self.qrot == 0: return f"s_mov_b32 s{sCH}, 0"
        if self.qrot == 1:
            return f"""s_and_b32 s{sCH}, s{sH}, 7
            s_and_b32 s3, s{sB}, 3
            s_lshl_b32 s3, s3, 1
            s_add_u32 s{sCH}, s{sCH}, s3
            s_cmp_ge_u32 s{sCH}, 10
            s_cselect_b32 s3, 10, 0
            s_sub_u32 s{sCH}, s{sCH}, s3"""
        if self.qrot in (5, 6):
            return f"""s_and_b32 s{sCH}, s{sH}, 7
            s_mul_i32 s{sCH}, s{sCH}, 5
            s_add_u32 s{sCH}, s{sCH}, 2
            s_lshr_b32 s{sCH}, s{sCH}, 2
            s_and_b32 s3, s{sB}, 3
            s_mul_i32 s3, s3, 5
            s_add_u32 s3, s3, 1
            s_lshr_b32 s3, s3, 1
            s_add_u32 s{sCH}, s{sCH}, s3
            s_cmp_ge_u32 s{sCH}, 10
            s_cselect_b32 s3, 10, 0
            s_sub_u32 s{sCH}, s{sCH}, s3""" + (f"""
            s_and_b32 s3, s2, 7
            s_add_u32 s{sCH}, s{sCH}, s3
            s_cmp_ge_u32 s{sCH}, 10
            s_cselect_b32 s3, 10, 0
            s_sub_u32 s{sCH}, s{sCH}, s3""" if self.qrot == 6 else "")
        if self.qrot == 2:
            return f"""s_xor_b32 s{sCH}, s{sH}, s{sB}
            s_and_b32 s{sCH}, s{sCH}, 1
            s_mul_i32 s{sCH}, s{sCH}, 5"""
        if self.qrot == 3:
            return f"""s_add_u32 s{sCH}, s{sH}, s{sB}
            s_and_b32 s{sCH}, s{sCH}, 3
            s_mul_i32 s{sCH}, s{sCH}, 3"""
        if self.qrot == 4:
            return f"""s_add_u32 s{sCH}, s{sH}, s{sB}
            s_and_b32 s{sCH}, s{sCH}, 3"""
    def prologue(self):
        a = self.a
        a("s_cmp_ge_u32 s2, 256\ns_cbranch_scc1 L1_end")
        self.stamp(0)
        a(f"""
        s_load_dwordx8 s[4:11], s[0:1], 0
        s_load_dwordx2 s[12:13], s[0:1], 56
        s_load_dwordx4 s[56:59], s[0:1], 32
        s_load_dwordx2 s[28:29], s[0:1], 48
        v_lshrrev_b32 v1, 6, v0
        v_and_b32 v{vLANE}, 63, v0
        s_and_b32 s{sT0}, s2, 7
        v_readfirstlane_b32 s{sW}, v1
        s_lshr_b32 s{sT1}, s2, 3
        s_and_b32 s{sB}, s{sT0}, 1
        s_lshl_b32 s{sB}, s{sB}, 2
        s_and_b32 s3, s{sT1}, 3
        s_or_b32 s{sB}, s{sB}, s3
        s_lshr_b32 s{sH}, s{sT0}, 1
        s_lshl_b32 s{sH}, s{sH}, 3
        s_lshr_b32 s3, s{sT1}, 2
        s_or_b32 s{sH}, s{sH}, s3
        {self.rot_code()}
        v_lshrrev_b32 v1, 4, v{vLANE}             ; g
        v_and_b32 v2, 15, v{vLANE}                ; q
        v_lshlrev_b32 v3, {12+self.ks}, v1
        v_lshl_or_b32 v{vDMA}, v2, 4, v3
        v_lshlrev_b32 v3, 17, v1
        v_lshl_or_b32 v{vWD}, v2, 4, v3
        v_lshrrev_b32 v3, 3, v{vLANE}
        v_and_b32 v4, 7, v{vLANE}
        v_mul_u32_u24 v3, {4*1280}, v3
        v_lshl_add_u32 v{vXD}, v4, 4, v3
        s_lshr_b32 s{sQH}, s{sW}, 1
        s_and_b32 s{sKH}, s{sW}, 1
        s_mul_i32 s{sXB}, s{sW}, {XP}
        s_mul_i32 s{sXS}, s{sW}, 1280
        s_mul_i32 s{sWB}, s{sW}, {4*PIT}
        s_lshl_b32 s{sWS}, s{sKH}, 3
        s_lshl_b32 s3, s{sQH}, 2
        s_or_b32 s{sWS}, s{sWS}, s3
        s_lshl_b32 s{sWS}, s{sWS}, 13
        s_lshl_b32 s{sKVO}, s{sW}, 10
        s_mov_b32 s{sKVL}, s{sWB}
        s_lshl_b32 s{sT0}, s{sB}, 5
        s_add_u32 s{sT0}, s{sT0}, s{sH}
        s_lshl_b32 s{sT1}, s{sT0}, 19
        s_lshr_b32 s{sT0}, s{sT0}, 13
        s_waitcnt lgkmcnt(0)
        {"s_memrealtime s[66:67]" if self.pstamps else ""}
        s_add_u32 s{SRD_K}, s6, s{sT1}
        s_addc_u32 s{SRD_K+1}, s7, s{sT0}
        s_mov_b32 s{SRD_K+2}, 524288
        s_mov_b32 s{SRD_K+3}, 0x20000
        s_add_u32 s{SRD_V}, s8, s{sT1}
        s_addc_u32 s{SRD_V+1}, s9, s{sT0}
        s_mov_b32 s{SRD_V+2}, 524288
        s_mov_b32 s{SRD_V+3}, 0x20000
        s_mul_i32 s{sT0}, s{sB}, 245760
        s_add_u32 s{SRD_X}, s4, s{sT0}
        s_addc_u32 s{SRD_X+1}, s5, 0
        s_mov_b32 s{SRD_X+2}, 245760
        s_mov_b32 s{SRD_X+3}, 0x20000
        s_lshl_b32 s{sT0}, s{sH}, 8
        s_add_u32 s{SRD_W}, s10, s{sT0}
        s_addc_u32 s{SRD_W+1}, s11, 0
        s_sub_u32 s{SRD_W+2}, {640*8192}, s{sT0}
        s_mov_b32 s{SRD_W+3}, 0x20000
        """)
        a(f"""
        s_mov_b32 s92, s56
        s_mov_b32 s93, s57
        s_mov_b32 s94, {4096*1280}
        s_mov_b32 s95, 0x20000
        s_mul_i32 s{sTW}, s2, 20480
        s_mul_i32 s{sT1}, s{sW}, 5120
        s_add_u32 s{sTW}, s{sTW}, s{sT1}
        v_lshlrev_b32 v{vTW}, 4, v{vLANE}
        """)
        def touch():
            for pc in self.touch_pieces(): self.emit_piece(pc)
        if self.touch == 1: touch()
        if self.qm32:
            assert self.x4
            a(f"""
            v_lshrrev_b32 v3, 3, v{vLANE}
            v_and_b32 v4, 7, v{vLANE}
            v_mul_u32_u24 v3, {8*1280}, v3
            v_lshl_add_u32 v{vXD}, v4, 4, v3
            s_mul_i32 s{sXB}, s{sW}, {2*XP32}
            s_mul_i32 s{sXS}, s{sW}, {2*1280}
            s_mul_i32 s{sWB}, s{sW}, {4*WP32}
            s_lshl_b32 s{sWS}, s{sW}, 15
            """)
        a(f"s_mov_b32 s39, s{sCH}")
        for c in range(self.nfirst):
            for pc in self.w_pieces(c) + self.x_pieces(c): self.emit_piece(pc)
        if self.x4:
            for pc in self.x_pieces(3): self.emit_piece(pc)
        if self.pstamps: a("s_memrealtime s[68:69]")
        if self.touch == 2 and self.nfirst == 3: touch()
        if self.pstamps: a("s_memrealtime s[70:71]\ns_waitcnt vmcnt(34)\ns_memrealtime s[72:73]")
        a(f"""
        v_bfe_u32 v3, v{vLANE}, 2, 2              ; r
        v_and_b32 v4, 3, v{vLANE}                 ; c
        v_mul_u32_u24 v5, {PIT}, v2
        v_lshl_add_u32 v5, v1, 4, v5
        s_lshl_b32 s3, s{sKH}, 9
        v_add_u32 v{vK}, s3, v5
        v_lshl_add_u32 v5, v1, 2, v3
        v_mul_u32_u24 v5, {PIT}, v5
        v_lshl_add_u32 v5, v4, 3, v5
        s_mul_i32 s3, s{sKH}, {512+128}
        s_add_u32 s3, s3, {VB0}
        v_add_u32 v{vVA}, s3, v5
        s_mul_i32 s3, s{sKH}, {512-128}
        s_add_u32 s3, s3, {VB0}
        v_add_u32 v{vVB}, s3, v5
        v_mul_u32_u24 v5, {XP}, v4
        v_lshl_add_u32 v5, v3, 7, v5
        v_lshl_add_u32 v5, v1, 4, v5
        s_mul_i32 s3, s{sQH}, 3072
        v_add_u32 v{vX}, s3, v5
        v_and_b32 v5, 1, v1
        v_lshl_add_u32 v5, v5, 2, v3
        v_mul_u32_u24 v5, {PIT}, v5
        v_lshrrev_b32 v6, 1, v1
        v_lshl_add_u32 v5, v6, 8, v5
        v_lshl_add_u32 v5, v4, 3, v5
        s_lshl_b32 s3, s{sKH}, 7
        v_add_u32 v{vW}, s3, v5
        v_lshlrev_b32 v{vKW}, 4, v{vLANE}
        v_add_u32 v{vKW}, s{sKVL}, v{vKW}
        v_add_u32 v{vKW+1}, {VB0}, v{vKW}
        s_mov_b32 s{sTHR[0]}, {f32(THR)}
        """)
        if self.qm32:
            a(f"""
            v_and_b32 v5, 7, v{vLANE}
            v_mul_u32_u24 v5, {XP32}, v5
            v_bfe_u32 v6, v{vLANE}, 3, 2
            v_lshl_add_u32 v5, v6, 7, v5
            v_lshrrev_b32 v6, 5, v{vLANE}
            v_lshl_add_u32 v5, v6, 4, v5
            s_mul_i32 s3, s{sQH}, {12*128}
            v_add_u32 v{vX}, s3, v5
            v_lshl_add_u32 v5, v6, 3, v3
            v_mul_u32_u24 v5, {WP32}, v5
            v_bfe_u32 v6, v{vLANE}, 4, 1
            v_lshl_add_u32 v5, v6, 5, v5
            v_lshl_add_u32 v5, v4, 3, v5
            s_lshl_b32 s3, s{sKH}, 7
            v_add_u32 v{vW}, s3, v5
            """)
        for i in range(24): a(f"v_mov_b32 v{NM+i}, 0")
        for i in range(6): a(f"v_mov_b32 v{vL+i}, 0")

    def q_pack_setup(self):
        rlo, rhi, wlo, whi = vT, vT + 1, vT + 2, vT + 3
        self.a(f"""
        s_mul_i32 s{sT0}, s{sQH}, {96*QP}
        s_add_u32 s{sT0}, s{sT0}, {QA1}
        s_cmp_eq_u32 s{sQH}, 0
        s_mov_b32 s{sT1}, {3*TS}
        s_cselect_b32 s{sT1}, {QA1 + 48*QP}, s{sT1}
        v_and_b32 v{vT+4}, 15, v{vLANE}
        v_mul_u32_u24 v{vT+4}, {QP}, v{vT+4}
        v_lshrrev_b32 v{vT+5}, 4, v{vLANE}
        v_lshl_add_u32 v{vT+6}, v{vT+5}, 4, v{vT+4}
        v_add_u32 v{rlo}, s{sT0}, v{vT+6}
        v_add_u32 v{rhi}, s{sT1}, v{vT+6}
        v_lshl_add_u32 v{vT+6}, v{vT+5}, 3, v{vT+4}
        s_lshl_b32 s{sXO}, s{sKH}, 7
        v_add_u32 v{vT+6}, s{sXO}, v{vT+6}
        v_add_u32 v{wlo}, s{sT0}, v{vT+6}
        v_add_u32 v{whi}, s{sT1}, v{vT+6}
        v_mov_b32 v{vT+4}, {f32(CSC)}
        """)
    def q_pack(self, db, qb):
        wlo, whi = vT + 2, vT + 3
        acc = QACC + (db * 6 + qb) * 4
        cs = vr(vT + 4, 2)
        assert (vT + 4) % 2 == 0
        return [f"v_pk_mul_f32 {vr(acc,2)}, {vr(acc,2)}, {cs} op_sel_hi:[1,0]",
                f"v_pk_mul_f32 {vr(acc+2,2)}, {vr(acc+2,2)}, {cs} op_sel_hi:[1,0]",
                f"v_cvt_pk_bf16_f32 v{acc}, v{acc}, v{acc+1}",
                f"v_cvt_pk_bf16_f32 v{acc+1}, v{acc+2}, v{acc+3}",
                f"ds_write_b64 v{wlo if qb < 3 else whi}, {vr(acc,2)} offset:{(qb%3)*16*QP + db*32}"]
    def qphase(self):
        a = self.a
        order = []
        for c in range(self.nfirst): order += [f"c{c}"] * 10
        if self.x4: order += ["c3"] * 6
        if self.touch == 2 and self.nfirst == 3: order += ["t"] * 5
        kvl = [(t, n) for t in range(3) for n in range(8) if t < self.pre[n]]
        def next_kv():
            if not kvl: return None
            t, n = kvl.pop(0)
            order.append(f"kv{t}")
            if self.x4: return self.kv_piece(t, n, reg=KVR + 32 * t)
            return self.kv_piece(0, n) if t == 0 else self.kv_piece(t, n, reg=KVR + 32 * (t - 1))
        for _ in range(self.early.get(-1, 0)): self.emit_piece(next_kv())
        def xf(st, s, qb): return QSET[st] + (s * 6 + qb) * 4
        def wf(st, s, db): return QSET[st] + 48 + (s * 4 + db) * 4
        def reads(c):
            st = c & 1
            a(f"v_add_u32 v{vX2}, {self.xslot(c)}, v{vX}")
            a(f"v_add_u32 v{vW2}, {self.wslot(c)}, v{vW}")
            out = []
            for s in range(2):
                for qb in range(6):
                    out.append(f"ds_read_b128 {ar(xf(st,s,qb),4)}, v{vX2} offset:{qb*512 + s*64}")
                for db in range(4):
                    for u in range(2):
                        out.append(f"ds_read_b64_tr_b16 {ar(wf(st,s,db)+2*u,2)}, v{vW2} offset:{u*8*PIT + s*512 + db*32}")
            return out
        def after(tag):
            idx = [i for i, t in enumerate(order) if t == tag]
            if not idx: return 63
            return len(order) - 1 - idx[-1]
        a(f"s_waitcnt vmcnt({after('c0')})\ns_barrier")
        self.stamp(1)
        for r in reads(0): a(r)
        for c in range(self.nfirst, 3):
            for pc in self.w_pieces(c) + self.x_pieces(c): self.emit_piece(pc)
            order += [f"c{c}"] * 10
        if self.touch == 2 and self.nfirst < 3:
            for pc in self.touch_pieces(): self.emit_piece(pc)
            order += ["t"] * 5
        for c in range(10):
            if c + 1 < 10: a(f"s_waitcnt vmcnt({min(63, after(f'c{c+1}'))}) lgkmcnt(0)")
            else: a("s_waitcnt lgkmcnt(0)")
            a("s_barrier")
            rd = reads(c + 1) if c + 1 < 10 else []
            if "qnolds" in self.abl: rd = []
            todo = []
            xa = 4 if self.x4 else 3
            if c + 3 < 10: todo += [(f"c{c+3}", pc) for pc in self.w_pieces(c + 3)]
            if c + xa < 10: todo += [(f"c{c+xa}", pc) for pc in self.x_pieces(c + xa)]
            todo += [("kv", None)] * self.early.get(c, 0)
            if self.touch == 10 + c: todo += [("t", pc) for pc in self.touch_pieces()]
            st = c & 1
            NG = self.qng
            g = 0
            seq = [(s, db, hh) for s in range(2) for db in range(4) for hh in range(2)]
            packq = []
            if c == 9:
                seq = [(s, db, hh) for db in range(4) for hh in range(2) for s in range(2)]
                self.q_pack_setup()
            for (s, db, hh) in seq:
                if True:
                    if True:
                        mine = todo[(g * len(todo) + NG - 1) // NG:((g + 1) * len(todo) + NG - 1) // NG]
                        pcs = []
                        for kind, pc in mine:
                            if kind[0] == "c": order.append(kind); pcs.append(pc)
                            elif kind == "t": order.append("t"); pcs.append(pc)
                            else:
                                pc = next_kv()
                                if pc: pcs.append(pc)
                        if pcs and pcs[0][0]: a(pcs[0][0])
                        for q3 in range(3):
                            qb = 3 * hh + q3
                            acc = QACC + (db * 6 + qb) * 4
                            cc = "0" if (c == 0 and s == 0) else vr(acc, 4)
                            a(f"{MF} {vr(acc,4)}, {ar(wf(st,s,db),4)}, {ar(xf(st,s,qb),4)}, {cc}")
                            if c == 9:
                                for _ in range(3):
                                    if packq and packq[0][0] <= g - 3: a(packq.pop(0)[1])
                        if c == 9 and s == 1:
                            for q3 in range(3):
                                packq += [(g, l) for l in self.q_pack(db, 3 * hh + q3)]
                        if pcs: a(pcs[0][1])
                        for pc in pcs[1:]: self.emit_piece(pc)
                        ng = self.qrg
                        for r in rd[(g * 28) // ng:((g + 1) * 28) // ng]: a(r)
                        g += 1
                        for t, cw in (((0, self.kvw[0]), (1, self.kvw[1])) if self.x4 else ((1, self.kvw[0]), (2, self.kvw[1]))):
                            if c == cw and g == 12 and f"kv{t}" in order:
                                assert not any(tt == t for tt, _ in kvl)
                                a(f"s_waitcnt vmcnt({after(f'kv{t}')})")
                                for n in [n for n in range(8) if t < self.pre[n]]:
                                    a(f"ds_write_b128 v{vKW + (n & 1)}, {ar(KVR+32*(t-(0 if self.x4 else 1))+4*n,4)} offset:{t*TS + (n>>1)*PIT}")
            if self.qstamps and c in (2, 5, 8, 9): self.stamp({2: 3, 5: 4, 8: 5, 9: 6}[c])
        assert not kvl
        a('s_waitcnt vmcnt(0)') if False else None
        rlo, rhi = vT, vT + 1
        a("s_nop 4")
        for _, l in packq: a(l)
        a("s_waitcnt lgkmcnt(0)\ns_barrier")
        for s in range(4):
            for qb in range(6):
                a(f"ds_read_b128 {Qf(s,qb)}, v{rlo if qb < 3 else rhi} offset:{(qb%3)*16*QP + s*64}")
        self.stamp(2)

    def q_pack_setup32(self):
        rlo, rhi = vT, vT + 1
        w3 = [vT + 2, vT + 3, vT + 6]
        self.a(f"""
        s_mul_i32 s{sT0}, s{sQH}, {96*QP}
        s_add_u32 s{sT0}, s{sT0}, {QA1}
        s_cmp_eq_u32 s{sQH}, 0
        s_mov_b32 s{sT1}, {3*TS}
        s_cselect_b32 s{sT1}, {QA1 + 48*QP}, s{sT1}
        v_and_b32 v{vT+4}, 15, v{vLANE}
        v_mul_u32_u24 v{vT+4}, {QP}, v{vT+4}
        v_lshrrev_b32 v{vT+5}, 4, v{vLANE}
        v_lshl_add_u32 v{vT+6}, v{vT+5}, 4, v{vT+4}
        v_add_u32 v{rlo}, s{sT0}, v{vT+6}
        v_add_u32 v{rhi}, s{sT1}, v{vT+6}
        v_and_b32 v{vT+4}, 31, v{vLANE}
        v_mul_u32_u24 v{vT+4}, {QP}, v{vT+4}
        v_lshrrev_b32 v{vT+5}, 5, v{vLANE}
        v_lshl_add_u32 v{vT+4}, v{vT+5}, 3, v{vT+4}
        s_lshl_b32 s{sXO}, s{sKH}, 7
        v_add_u32 v{vT+4}, s{sXO}, v{vT+4}
        v_add_u32 v{w3[0]}, s{sT0}, v{vT+4}
        s_add_u32 s{sXO}, s{sT1}, {16*QP}
        v_add_u32 v{w3[2]}, s{sXO}, v{vT+4}
        s_add_u32 s{sT0}, s{sT0}, {32*QP}
        s_sub_u32 s{sT1}, s{sT1}, {16*QP}
        v_add_u32 v{w3[1]}, s{sT0}, v{vT+4}
        v_add_u32 v{vT+5}, s{sT1}, v{vT+4}
        v_and_b32 v{vT+4}, 16, v{vLANE}
        v_cmp_ne_u32 vcc, 0, v{vT+4}
        v_mov_b32 v{vT+4}, {f32(CSC)}
        s_nop 0
        v_cndmask_b32 v{w3[1]}, v{w3[1]}, v{vT+5}, vcc
        """)
    def q_pack32(self, db, qb):
        w3 = [vT + 2, vT + 3, vT + 6]
        cs = vr(vT + 4, 2)
        out = []
        for rq in range(4):
            acc = QACC + (db * 3 + qb) * 16 + 4 * rq
            out += [f"v_pk_mul_f32 {vr(acc,2)}, {vr(acc,2)}, {cs} op_sel_hi:[1,0]",
                    f"v_pk_mul_f32 {vr(acc+2,2)}, {vr(acc+2,2)}, {cs} op_sel_hi:[1,0]",
                    f"v_cvt_pk_bf16_f32 v{acc}, v{acc}, v{acc+1}",
                    f"v_cvt_pk_bf16_f32 v{acc+1}, v{acc+2}, v{acc+3}",
                    f"ds_write_b64 v{w3[qb]}, {vr(acc,2)} offset:{db*64 + rq*16}"]
        return out
    def qphase32(self):
        a = self.a
        order = []
        for c in range(self.nfirst): order += [f"c{c}"] * 10
        if self.x4: order += ["c3"] * 6
        if self.touch == 2 and self.nfirst == 3: order += ["t"] * 5
        kvl = [(t, n) for t in range(3) for n in range(8) if t < self.pre[n]]
        def next_kv():
            if not kvl: return None
            t, n = kvl.pop(0)
            order.append(f"kv{t}")
            if self.x4: return self.kv_piece(t, n, reg=KVR + 32 * t)
            return self.kv_piece(0, n) if t == 0 else self.kv_piece(t, n, reg=KVR + 32 * (t - 1))
        for _ in range(self.early.get(-1, 0)): self.emit_piece(next_kv())
        def xf(st, s, qb): return QSET[st] + (s * 3 + qb) * 4
        def wf(st, s, db): return QSET[st] + 48 + (s * 2 + db) * 4
        def reads(c):
            st = c & 1
            a(f"v_add_u32 v{vX2}, {self.xslot(c)}, v{vX}")
            a(f"v_add_u32 v{vW2}, {self.wslot(c)}, v{vW}")
            out = []
            for s in range(4):
                for qb in range(3):
                    out.append(f"ds_read_b128 {ar(xf(st,s,qb),4)}, v{vX2} offset:{qb*512 + s*32}")
                for db in range(2):
                    for u in range(2):
                        out.append(f"ds_read_b64_tr_b16 {ar(wf(st,s,db)+2*u,2)}, v{vW2} offset:{4*u*WP32 + s*256 + db*64}")
            return out
        def after(tag):
            idx = [i for i, t in enumerate(order) if t == tag]
            if not idx: return 63
            return len(order) - 1 - idx[-1]
        a(f"s_waitcnt vmcnt({after('c0')})\ns_barrier")
        self.stamp(1)
        for r in reads(0): a(r)
        for c in range(self.nfirst, 3):
            for pc in self.w_pieces(c) + self.x_pieces(c): self.emit_piece(pc)
            order += [f"c{c}"] * 10
        if self.touch == 2 and self.nfirst < 3:
            for pc in self.touch_pieces(): self.emit_piece(pc)
            order += ["t"] * 5
        for c in range(10):
            if c + 1 < 10: a(f"s_waitcnt vmcnt({min(63, after(f'c{c+1}'))}) lgkmcnt(0)")
            else: a("s_waitcnt lgkmcnt(0)")
            a("s_barrier")
            rd = reads(c + 1) if c + 1 < 10 else []
            if "qnolds" in self.abl: rd = []
            todo = []
            xa = 4 if self.x4 else 3
            if c + 3 < 10: todo += [(f"c{c+3}", pc) for pc in self.w_pieces(c + 3)]
            if c + xa < 10: todo += [(f"c{c+xa}", pc) for pc in self.x_pieces(c + xa)]
            todo += [("kv", None)] * self.early.get(c, 0)
            if self.touch == 10 + c: todo += [("t", pc) for pc in self.touch_pieces()]
            st = c & 1
            NG = self.qng
            g = 0
            seq = [(s, db, qb) for s in range(4) for db in range(2) for qb in range(3)]
            packq = []
            if c == 9:
                seq = [(s, db, qb) for db in range(2) for qb in range(3) for s in range(4)]
            NG = self.qng32
            for (s, db, qb) in seq:
                mine = todo[(g * len(todo) + NG - 1) // NG:((g + 1) * len(todo) + NG - 1) // NG]
                pcs = []
                for kind, pc in mine:
                    if kind[0] == "c" or kind == "t": order.append(kind); pcs.append(pc)
                    else:
                        pc = next_kv()
                        if pc: pcs.append(pc)
                if pcs and pcs[0][0]: a(pcs[0][0])
                acc = QACC + (db * 3 + qb) * 16
                cc = "0" if (c == 0 and s == 0) else vr(acc, 16)
                a(f"{MF32} {vr(acc,16)}, {ar(wf(st,s,db),4)}, {ar(xf(st,s,qb),4)}, {cc}")
                if c == 9:
                    mark = len(a.lines)
                    if g == 4: self.q_pack_setup32()
                    for _ in range(5):
                        if packq and sum(1 for l in a.lines[packq[0][0]:] if l.strip()) >= 12: a(packq.pop(0)[1])
                    if s == 3: packq += [(mark, l) for l in self.q_pack32(db, qb)]
                if pcs: a(pcs[0][1])
                for pc in pcs[1:]: self.emit_piece(pc)
                ng = self.qrg32
                for r in rd[(g * 28) // ng:((g + 1) * 28) // ng]: a(r)
                g += 1
                for t, cw in ((0, self.kvw[0]), (1, self.kvw[1])):
                    if c == cw and g == 18 and f"kv{t}" in order:
                        assert not any(tt == t for tt, _ in kvl)
                        a(f"s_waitcnt vmcnt({after(f'kv{t}')})")
                        for n in [n for n in range(8) if t < self.pre[n]]:
                            a(f"ds_write_b128 v{vKW + (n & 1)}, {ar(KVR+32*t+4*n,4)} offset:{t*TS + (n>>1)*PIT}")
            if self.qstamps and c in (2, 5, 8, 9): self.stamp({2: 3, 5: 4, 8: 5, 9: 6}[c])
        assert not kvl
        a('s_waitcnt vmcnt(0)') if False else None
        rlo, rhi = vT, vT + 1
        a("s_nop 11")
        for _, l in packq: a(l)
        a("s_waitcnt lgkmcnt(0)\ns_barrier")
        for s in range(4):
            for qb in range(6):
                a(f"ds_read_b128 {Qf(s,qb)}, v{rlo if qb < 3 else rhi} offset:{(qb%3)*16*QP + s*64}")
        self.stamp(2)

    def signal(self):
        a = self.a
        lab = a.newlabel("L_nosig")
        a(f"""
        s_cmp_lg_u32 s{sW}, 0
        s_cbranch_scc1 {lab}
        s_lshl_b32 s3, s{sB}, 5
        v_mov_b32 v254, s3
        v_mov_b32 v255, 1
        s_mov_b64 exec, 1
        global_atomic_add v254, v255, s[28:29] sc1
        s_mov_b64 exec, -1
        {lab}:
        """)
    def poll(self, sBATCH):
        a = self.a
        lab = a.newlabel("L_nopoll"); lp = a.newlabel("L_poll")
        a(f"""
        s_cmp_lg_u32 s{sW}, 0
        s_cbranch_scc1 {lab}
        s_lshl_b32 s3, s{sBATCH}, 5
        s_mov_b32 s{sLOOP}, 0
        v_mov_b32 v254, s3
        {lp}:
        global_load_dword v255, v254, s[28:29] sc1
        s_add_u32 s{sLOOP}, s{sLOOP}, 1
        s_waitcnt vmcnt(0)
        v_cmp_ne_u32 vcc, 32, v255
        s_cmp_gt_u32 s{sLOOP}, 0x40000
        s_cbranch_scc1 {lab}
        s_cbranch_vccz {lab}
        s_sleep 1
        s_branch {lp}
        {lab}:
        """)

    T_vO = [224, 225, 226, 227]; T_vA = [228, 229, 230, 231]; T_vE = [232, 233, 234, 235]
    T_vWD, T_vT2 = 250, 251
    sRT, sCT, sKW, sKO, sWOFF, sBATCH, sRX, sJ = 42, 43, 44, 48, 49, 50, 51, 38
    def tail_setup(self):
        sRT, sCT, sKW, sKO, sWOFF, sBATCH, sRX, sJ = self.sRT, self.sCT, self.sKW, self.sKO, self.sWOFF, self.sBATCH, self.sRX, self.sJ
        vWD2, t = self.T_vWD, self.T_vT2
        txt = f"""
        s_and_b32 s{sT0}, s2, 7
        s_lshr_b32 s{sJ}, s2, 3
        s_mul_i32 s{sRT}, s{sJ}, 52
        s_lshr_b32 s{sRT}, s{sRT}, 8
        s_mul_i32 s{sCT}, s{sRT}, 5
        s_sub_u32 s{sCT}, s{sJ}, s{sCT}
        s_add_u32 s{sKW}, s{sRT}, s{sCT}
        s_mul_i32 s{sKW}, s{sKW}, {self.orot}
        s_and_b32 s{sKW}, s{sKW}, 31
        s_mov_b32 s{sKO}, s{sKW}
        s_and_b32 s3, s{sT0}, 1
        s_mul_i32 s3, s3, 12
        s_add_u32 s{sRT}, s{sRT}, s3
        s_bfe_u32 s3, s{sT0}, 0x10001
        s_mul_i32 s3, s3, 6
        s_add_u32 s{sRT}, s{sRT}, s3
        s_lshr_b32 s3, s{sT0}, 2
        s_mul_i32 s3, s3, 5
        s_add_u32 s{sCT}, s{sCT}, s3
        s_mul_i32 s{sBATCH}, s{sRT}, 86
        s_lshr_b32 s{sBATCH}, s{sBATCH}, 8
        s_mov_b32 s96, s58
        s_mov_b32 s97, s59
        s_mov_b32 s98, {1536*1280}
        s_mov_b32 s99, 0x20000
        s_mul_i32 s{sWOFF}, s{sW}, {32*1280}
        s_lshl_b32 s3, s{sCT}, 7
        s_add_u32 s{sWOFF}, s{sWOFF}, s3
        s_mul_i32 s{sRX}, s{sW}, 12288
        s_add_u32 s{sRX}, s{sRX}, {116736 - 12288}
        s_cmp_eq_u32 s{sW}, 0
        s_cselect_b32 s{sRX}, 49152, s{sRX}
        v_lshrrev_b32 v{vWD2}, 3, v{vLANE}
        v_mul_u32_u24 v{vWD2}, 1280, v{vWD2}
        v_bfe_u32 v{t}, v{vLANE}, 4, 2
        v_lshlrev_b32 v{t}, 1, v{t}
        v_xor_b32 v{t}, v{t}, v{vLANE}
        v_and_b32 v{t}, 7, v{t}
        v_lshl_add_u32 v{vWD2}, v{t}, 4, v{vWD2}
        """
        if self.om32:
            txt += f"""v_lshrrev_b32 v{vWD2}, 3, v{vLANE}
            v_mul_u32_u24 v{vWD2}, 1280, v{vWD2}
            v_bfe_u32 v{t}, v{vLANE}, 4, 1
            v_lshlrev_b32 v{t}, 2, v{t}
            v_xor_b32 v{t}, v{t}, v{vLANE}
            v_and_b32 v{t}, 7, v{t}
            v_lshl_add_u32 v{vWD2}, v{t}, 4, v{vWD2}
            """
        return [l.strip() for l in txt.strip().split("\n")]
    def wo_issue(self, i):
        a = self.a
        sl = i % 9
        base = f"s{self.sRX}, {sl*4096}" if sl < 3 else f"s{sKVL}, {(sl-3)*4096}"
        if self.orot:
            a(f"s_mul_i32 s3, s{self.sKW}, {128*1280}\ns_add_u32 s{self.sKW}, s{self.sKW}, 1\ns_and_b32 s{self.sKW}, s{self.sKW}, 31\ns_add_u32 s3, s3, s{self.sWOFF}")
        else:
            a(f"s_add_u32 s3, s{self.sWOFF}, {i*128*1280}")
        a(f"s_add_u32 m0, {base}")
        for pc in range(4):
            if pc: a(f"s_add_u32 m0, m0, 1024\ns_add_u32 s3, s3, {8*1280}")
            else: a("s_nop 0")
            a(f"buffer_load_dwordx4 v{self.T_vWD}, s[92:95], s3 offen lds")
            self.vq.append(("W", i))
    def tail_early(self):
        a = self.a
        self.vq = []
        a(f"s_cmp_ge_u32 s{self.sJ}, 30\ns_cbranch_scc1 L1_noearly")
        for i in range(3): self.wo_issue(i)
        a("L1_noearly:")

    def tail(self):
        a = self.a
        NS, nR, PDA, NST = 9, self.nR, self.PDA, 32
        ACC, AR, BV = 0, 64, 160
        assert AR + 16 * PDA <= BV and nR <= 20
        vO, vA, vE, vT2 = self.T_vO, self.T_vA, self.T_vE, self.T_vT2
        sRT, sCT, sBATCH = self.sRT, self.sCT, self.sBATCH
        vq = self.vq
        def blk(i, off, n):
            b = i % nR
            return ar(16 * b + off, n) if b < 16 else vr(BV + 16 * (b - 16) + off, n)
        a(f"s_cmp_ge_u32 s{self.sJ}, 30\ns_cbranch_scc1 L1_notile")
        def vwait(tag):
            idx = [n for n, t in enumerate(vq) if t == tag]
            if not idx: return
            cnt = len(vq) - 1 - idx[-1]
            assert cnt <= 63
            a(f"s_waitcnt vmcnt({cnt})")
            del vq[:idx[-1] + 1]
        def wo_read(i):
            sl = i % NS
            ad, off = (vE, sl * 4096) if sl < 3 else (vA, (sl - 3) * 4096)
            for nb in range(4):
                for u in range(2):
                    if self.om32:
                        a(f"ds_read_b64_tr_b16 {blk(i,4*nb+2*u,2)}, v{ad[nb&1]} offset:{off + (nb>>1)*2048 + u*1024}")
                    else:
                        a(f"ds_read_b64_tr_b16 {blk(i,4*nb+2*u,2)}, v{ad[nb]} offset:{off + u*2048}")
        if not self.late_st:
            for i in range(3, NS): self.wo_issue(i)
        z = vO[3]
        a(f"""
        v_lshrrev_b32 v{vT2}, 2, v{vLANE}
        v_lshlrev_b32 v{z}, 7, v{vT2}
        v_bfe_u32 v{vT2}, v{vT2}, 1, 2
        v_lshl_or_b32 v{z}, v{vT2}, 5, v{z}
        v_and_b32 v{vT2}, 3, v{vLANE}
        v_lshl_or_b32 v{z}, v{vT2}, 3, v{z}
        v_xor_b32 v{vO[0]}, 32, v{z}
        v_xor_b32 v{vO[1]}, 64, v{z}
        v_xor_b32 v{vO[2]}, 96, v{z}
        v_add_u32 v{vA[0]}, s{sKVL}, v{z}
        v_add_u32 v{vA[1]}, s{sKVL}, v{vO[0]}
        v_add_u32 v{vA[2]}, s{sKVL}, v{vO[1]}
        v_add_u32 v{vA[3]}, s{sKVL}, v{vO[2]}
        v_add_u32 v{vE[0]}, s{self.sRX}, v{z}
        v_add_u32 v{vE[1]}, s{self.sRX}, v{vO[0]}
        v_add_u32 v{vE[2]}, s{self.sRX}, v{vO[1]}
        v_add_u32 v{vE[3]}, s{self.sRX}, v{vO[2]}
        s_lshl_b32 s3, s{sRT}, 19
        s_lshl_b32 s{sT0}, s{sW}, 10
        s_add_u32 s3, s3, s{sT0}
        v_lshlrev_b32 v{vT2}, 4, v{vLANE}
        v_add_u32 v{vO[0]}, s3, v{vT2}
        v_add_u32 v{vO[1]}, 0x20000, v{vO[0]}
        v_add_u32 v{vO[2]}, 0x40000, v{vO[0]}
        v_add_u32 v{vO[3]}, 0x60000, v{vO[0]}
        """)
        if self.om32:
            a(f"""
            v_lshrrev_b32 v{vE[2]}, 5, v{vLANE}
            v_bfe_u32 v{vE[3]}, v{vLANE}, 2, 2
            v_lshl_add_u32 v{vE[2]}, v{vE[2]}, 2, v{vE[3]}
            v_lshlrev_b32 v{vA[2]}, 7, v{vE[2]}
            v_bfe_u32 v{vE[3]}, v{vE[2]}, 1, 1
            v_lshl_or_b32 v{vA[2]}, v{vE[3]}, 6, v{vA[2]}
            v_bfe_u32 v{vE[3]}, v{vLANE}, 4, 1
            v_lshl_or_b32 v{vA[2]}, v{vE[3]}, 5, v{vA[2]}
            v_and_b32 v{vE[3]}, 3, v{vLANE}
            v_lshl_or_b32 v{vA[2]}, v{vE[3]}, 3, v{vA[2]}
            v_xor_b32 v{vA[3]}, 64, v{vA[2]}
            v_add_u32 v{vA[0]}, s{sKVL}, v{vA[2]}
            v_add_u32 v{vA[1]}, s{sKVL}, v{vA[3]}
            v_add_u32 v{vE[0]}, s{self.sRX}, v{vA[2]}
            v_add_u32 v{vE[1]}, s{self.sRX}, v{vA[3]}
            s_lshl_b32 s3, s{sRT}, 19
            s_lshl_b32 s{sT0}, s{sW}, 11
            s_add_u32 s3, s3, s{sT0}
            v_add_u32 v{vO[0]}, s3, v{vT2}
            v_add_u32 v{vO[1]}, 0x40000, v{vO[0]}
            """)
        nextW = NS
        n0 = NS if self.late_st else 3
        for i in range(n0):
            vwait(("W", i))
            wo_read(i)
            if i >= 1:
                a("s_waitcnt lgkmcnt(8)")
                self.wo_issue(nextW); nextW += 1
        if self.st0:
            a("s_waitcnt vmcnt(0)"); del vq[:]
        else: vwait(("S", 0))
        a("s_barrier")
        self.stamp(4)
        self.signal()
        def o_issue(i):
            b = AR + 16 * (i % PDA)
            if self.orot: a(f"s_lshl_b32 s{sT1}, s{self.sKO}, 12\ns_add_u32 s{self.sKO}, s{self.sKO}, 1\ns_and_b32 s{self.sKO}, s{self.sKO}, 31")
            else: a(f"s_mov_b32 s{sT1}, {i*(8192 if self.om32 else 4096)}")
            for qb in range(4):
                if self.om32:
                    a(f"buffer_load_dwordx4 {vr(b+4*qb,4)}, v{vO[qb&1]}, s[24:27], s{sT1} offen offset:{(qb>>1)*1024} sc1")
                else:
                    a(f"buffer_load_dwordx4 {vr(b+4*qb,4)}, v{vO[qb]}, s[24:27], s{sT1} offen sc1")
                vq.append(("O", i))
        for i in range(n0, nR):
            if i == self.xB:
                self.stamp(5)
                self.poll(sBATCH)
                a("s_barrier")
                self.stamp(6)
                for n in range(PDA): o_issue(n)
            vwait(("W", i))
            wo_read(i)
            if nextW < NST:
                a("s_waitcnt lgkmcnt(8)")
                self.wo_issue(nextW); nextW += 1
        a("s_waitcnt lgkmcnt(0)")
        self.wo_issue(nextW); nextW += 1
        assert nextW == nR + NS
        if self.xB >= nR:
            self.stamp(5)
            self.poll(sBATCH)
            a("s_barrier")
            self.stamp(6)
            for n in range(PDA): o_issue(n)
        if self.tstamps: self.stamp(1)
        pend = None
        def capture(fn, *args):
            n0 = len(a.lines)
            fn(*args)
            out = a.lines[n0:]
            del a.lines[n0:]
            return out
        for i in range(NST):
            blkA = AR + 16 * (i % PDA)
            vwait(("O", i))
            if self.tstamps and i == 0: self.stamp(4)
            if self.tstamps and i == 16: self.stamp(5)
            if i == NST - nR + 2: a("s_waitcnt lgkmcnt(0)")
            fill = []
            if i >= 1:
                if i - 1 + PDA < NST: fill += capture(o_issue, i - 1 + PDA)
                if i - 1 + nR < NST:
                    fill += capture(vwait, ("W", i - 1 + nR)) + capture(wo_read, i - 1 + nR)
                if pend is not None:
                    fill += ["    s_waitcnt lgkmcnt(8)"] + capture(self.wo_issue, pend); pend = None
                if i - 1 + nR < NST and nextW < NST:
                    pend = nextW; nextW += 1
            fi = 0
            NM_ = 8 if self.om32 else 16
            for mi in range(NM_):
                if self.om32:
                    kk, nb, qb = mi >> 2, (mi >> 1) & 1, mi & 1
                    acc = ACC + 16 * (nb * 2 + qb)
                    cc = "0" if (i == 0 and kk == 0) else vr(acc, 16)
                    a(f"{MF32} {vr(acc,16)}, {blk(i,4*(2*kk+nb),4)}, {vr(blkA+4*(2*kk+qb),4)}, {cc}")
                else:
                    nb, qb = mi // 4, mi % 4
                    acc = ACC + 4 * mi
                    cc = "0" if i == 0 else vr(acc, 4)
                    a(f"{MF} {vr(acc,4)}, {blk(i,4*nb,4)}, {vr(blkA+4*qb,4)}, {cc}")
                tgt = (len(fill) * (mi + 1) + NM_ - 1) // NM_
                while fi < tgt:
                    a.lines.append(fill[fi]); fi += 1
        assert nextW >= NST and pend is None, (nextW, pend)
        if self.tstamps: self.stamp(2)
        a(f"""
        s_lshl_b32 s3, s{sW}, 14
        v_add_u32 v{vA[0]}, s3, v{vT2}
        s_lshl_b32 s3, s{sW}, 12
        v_add_u32 v{vA[1]}, s3, v{vT2}
        s_nop 7
        s_barrier
        """)
        for j in range(16): a(f"ds_write_b128 v{vA[0]}, {vr(ACC+4*j,4)} offset:{1024*j}")
        a(f"""
        s_lshl_b32 s3, s{sRT}, 6
        s_mul_i32 s3, s3, 1280
        s_lshl_b32 s{sT1}, s{sCT}, 7
        s_add_u32 s3, s3, s{sT1}
        s_lshl_b32 s{sT0}, s{sW}, 5
        s_add_u32 s3, s3, s{sT0}
        v_and_b32 v64, 15, v{vLANE}
        v_mul_u32_u24 v64, 1280, v64
        v_lshrrev_b32 v65, 4, v{vLANE}
        v_lshl_add_u32 v64, v65, 3, v64
        v_add_u32 v64, s3, v64
        v_add_u32 v65, {16*1280}, v64
        v_add_u32 v66, {32*1280}, v64
        v_add_u32 v67, {48*1280}, v64
        """)
        if self.om32:
            a(f"""
            s_lshl_b32 s3, s{sRT}, 6
            s_and_b32 s{sT0}, s{sW}, 1
            s_lshl_b32 s{sT0}, s{sT0}, 5
            s_add_u32 s3, s3, s{sT0}
            s_mul_i32 s3, s3, 1280
            s_lshl_b32 s{sT1}, s{sCT}, 7
            s_add_u32 s3, s3, s{sT1}
            s_lshr_b32 s{sT0}, s{sW}, 1
            s_lshl_b32 s{sT0}, s{sT0}, 6
            s_add_u32 s3, s3, s{sT0}
            v_and_b32 v64, 31, v{vLANE}
            v_mul_u32_u24 v64, 1280, v64
            v_lshrrev_b32 v65, 5, v{vLANE}
            v_lshl_add_u32 v64, v65, 3, v64
            v_add_u32 v64, s3, v64
            v_add_u32 v65, 16, v64
            v_add_u32 v66, 32, v64
            v_add_u32 v67, 48, v64
            """)
        a("s_waitcnt lgkmcnt(0)\ns_barrier")
        for j in range(4):
            for w in range(4):
                a(f"ds_read_b128 {vr(16*w+4*j,4)}, v{vA[1]} offset:{w*16384 + 1024*j}")
        for qb in range(4):
            a(f"s_waitcnt lgkmcnt({12-4*qb})")
            for e in range(2):
                r = 4 * qb + 2 * e
                a(f"v_pk_add_f32 {vr(r,2)}, {vr(r,2)}, {vr(16+r,2)}")
                a(f"v_pk_add_f32 {vr(32+r,2)}, {vr(32+r,2)}, {vr(48+r,2)}")
            for e in range(2):
                r = 4 * qb + 2 * e
                a(f"v_pk_add_f32 {vr(r,2)}, {vr(r,2)}, {vr(32+r,2)}")
            a(f"v_cvt_pk_bf16_f32 v{68+2*qb}, v{4*qb}, v{4*qb+1}")
            a(f"v_cvt_pk_bf16_f32 v{69+2*qb}, v{4*qb+2}, v{4*qb+3}")
            a(f"buffer_store_dwordx2 {vr(68+2*qb,2)}, v{64+qb}, s[96:99], 0 offen")
        if self.stamps:
            a("s_waitcnt vmcnt(0)")
            if not (self.lstamps or self.qstamps): self.stamp(7)
            self.stamp_store("L1_end")
        a("s_branch L1_end")
        a.label("L1_notile")
        a("s_waitcnt vmcnt(0)\ns_barrier")
        self.signal()

    def kernel(self):
        a = self.a
        a.begin_kernel("attn_kernel", 256, 256, LDS1, 512, accum=256)
        self.prologue()
        self.qphase32() if self.qm32 else self.qphase()
        self.main_loop()
        if self.stamps and (self.lstamps or self.qstamps):
            st = self.stamps; self.stamps = False
            self.stamp = lambda i: None
            self.stamps = st
        self.tail()
        a.label("L1_end")
        a("s_endpgm")
        for stub, ret, h in self.stubs:
            a.label(stub)
            a(f"s_call_b64 s[{sRET}:{sRET+1}], L_slow{h}\ns_branch {ret}")
        for h in range(2): self.slow_sub(h)

def build(name, **kw):
    g = Gen(**kw)
    g.kernel()
    open(name, "w").write(g.a.text())

def rate(name, ahead, late, **kw):
    dist = tuple(2 if n < ahead else 1 for n in range(8))
    porder = tuple(range(ahead, 8)) + tuple(range(ahead))
    pos = list(range(8 - ahead)) + [late + 2 * i for i in range(ahead)]
    build(name, dist=dist, porder=porder, dma_pos=pos, **kw)

if __name__ == "__main__":
    kw = dict(qkorder=1, dist=(2,)*8, warm=30, PDA=6, xB=17, nfirst=2, qrot=5, touch=11, early={3: 4, 4: 4, 5: 4, 6: 4}, wcap=3)
    build("f8_13.s", dma_pos=[0, 2, 5, 8, 10, 13, 24, 28], **kw)
    build("f8_15.s", dma_pos=[0, 3, 6, 9, 12, 15, 24, 28], **kw)
    build("f8_17.s", dma_pos=[0, 3, 6, 9, 13, 17, 24, 28], **kw)
    build("f8_20.s", dma_pos=[0, 4, 8, 12, 16, 20, 24, 28], **kw)
```
